```python
import torch

def _softmax(x, axis=-1):
    return torch.softmax(x, dim=axis)
def _gelu(x):
    return torch.nn.functional.gelu(x, approximate="tanh")
def _silu(x):
    return torch.nn.functional.silu(x)
def _sigmoid(x):
    return torch.sigmoid(x)
def _layernorm(x, axis=-1, eps=1e-5):
    m = x.mean(dim=axis, keepdim=True)
    v = x.var(dim=axis, keepdim=True, unbiased=False)
    return (x - m) / torch.sqrt(v + eps)
def _scatter_add(tgt, idx, src, axis=0):
    return tgt.clone().index_add_(axis, idx, src)
def _segment_sum(src, seg, n):
    out = torch.zeros((n,) + src.shape[1:], dtype=src.dtype)
    return out.index_add_(0, seg, src)
def _pad(x, pw):
    flat = tuple(v for pair in reversed(pw) for v in pair)
    return torch.nn.functional.pad(x, flat)

kernel_name = 'standalone__adm_resblock__diffusion'

def setup_inputs():

    _w = (lambda a: (lambda t: t.to(torch.bfloat16) if t.is_floating_point() else t)(torch.as_tensor(a)))
    B, C, HW, E = 2, 512, 32, 768
    sc = (9.0 * C) ** -0.5
    return {
        "x": _w((lambda *s: torch.randn(*s, dtype=torch.bfloat16) * 0.05)(B, C, HW, HW)),
        "t_emb": _w((lambda *s: torch.randn(*s, dtype=torch.bfloat16) * 0.4)(B, E)),
        "g1": _w(1.0 + 0.1 * (lambda *s: torch.randn(*s, dtype=torch.bfloat16) * 0.4)(C)),
        "be1": _w(0.1 * (lambda *s: torch.randn(*s, dtype=torch.bfloat16) * 0.4)(C)),
        "w1": _w((lambda *s: torch.randn(*s, dtype=torch.bfloat16) * 0.4)(C, C, 3, 3) * sc),
        "w_emb": _w((lambda *s: torch.randn(*s, dtype=torch.bfloat16) * 0.4)(E, C) * (E ** -0.5)),
        "g2": _w(1.0 + 0.1 * (lambda *s: torch.randn(*s, dtype=torch.bfloat16) * 0.4)(C)),
        "be2": _w(0.1 * (lambda *s: torch.randn(*s, dtype=torch.bfloat16) * 0.4)(C)),
        "w2": _w((lambda *s: torch.randn(*s, dtype=torch.bfloat16) * 0.4)(C, C, 3, 3) * sc),
    }

def reference(x, t_emb, g1, be1, w1, w_emb, g2, be2, w2):
    B, C, H, W = x.shape
    G, eps = 4, 1e-5
    def gn(z, gamma, beta):
        zr = z.reshape(B, G, (C // G) * H * W)
        mu = zr.mean(-1).reshape(B, G, 1)
        var = ((zr - mu) ** 2).mean(-1).reshape(B, G, 1)
        zn = ((zr - mu) / torch.sqrt(var + eps)).reshape(B, C, H, W)
        return zn * gamma.reshape(1, C, 1, 1) + beta.reshape(1, C, 1, 1)
    def conv3(z, w):
        zp = _pad(z, ((0, 0), (0, 0), (1, 1), (1, 1)))
        taps = [torch.einsum("bchw,oc->bohw", zp[:, :, i:i+H, j:j+W], w[:, :, i, j]) for i in range(3) for j in range(3)]
        out = taps[0]
        for t in taps[1:]:
            out = out + t
        return out
    h = conv3(_silu(gn(x, g1, be1)), w1)
    emb = _silu(t_emb) @ w_emb
    h = h + emb.reshape(B, C, 1, 1)
    h = conv3(_silu(gn(h, g2, be2)), w2)
    return x + h
```

```python
import sys

A1_OFF = 0x100000
A2_OFF = 0x400000
EMB_OFF = 0x700000
ST1_OFF = 0x710000
ST2_OFF = 0x720000
TS_OFF = 0x8000000

LOG2E = 0x3fb8aa3b
NLOG2E = 0xbfb8aa3b

class Asm:
    def __init__(self):
        self.L = []
        self.vq = []
        self.lq = []
        self.uid = 0
    def __call__(self, s):
        for line in s.split('\n'):
            line = line.strip()
            if line:
                self.L.append(line)
    def label(self, s):
        self.L.append(s + ':')
    def vmem(self, s, tag=None):
        self(s); self.uid += 1
        t = tag if tag is not None else ('v', self.uid)
        self.vq.append(t); return t
    def lds(self, s, tag=None):
        self(s); self.uid += 1
        t = tag if tag is not None else ('l', self.uid)
        self.lq.append(t); return t
    def need(self, vtags=(), ltags=()):
        vn = None; ln = None
        for t in vtags:
            idx = [i for i, x in enumerate(self.vq) if x == t]
            if idx:
                n = len(self.vq) - 1 - idx[-1]
                vn = n if vn is None else min(vn, n)
        for t in ltags:
            idx = [i for i, x in enumerate(self.lq) if x == t]
            if idx:
                n = len(self.lq) - 1 - idx[-1]
                ln = n if ln is None else min(ln, n)
        parts = []
        if vn is not None:
            vn = min(vn, 63)
            parts.append(f'vmcnt({vn})'); self.vq = self.vq[len(self.vq)-vn:] if vn else []
        if ln is not None:
            ln = min(ln, 15)
            parts.append(f'lgkmcnt({ln})'); self.lq = self.lq[len(self.lq)-ln:] if ln else []
        if parts:
            self('s_waitcnt ' + ' '.join(parts))
    def wait_all(self, v=True, l=True):
        parts = []
        if v: parts.append('vmcnt(0)'); self.vq = []
        if l: parts.append('lgkmcnt(0)'); self.lq = []
        self('s_waitcnt ' + ' '.join(parts))
    def text(self):
        return '\n'.join(('' if l.endswith(':') else '    ') + l for l in self.L)

def srd(a, d, lo, hi, size, off=0):
    if off:
        a(f's_add_u32 s{d}, s{lo}, {off & 0xffffffff}')
        a(f's_addc_u32 s{d+1}, s{hi}, {-1 if off < 0 else 0}')
        a(f's_and_b32 s{d+1}, s{d+1}, 0xffff')
    else:
        a(f's_mov_b32 s{d}, s{lo}')
        a(f's_and_b32 s{d+1}, s{hi}, 0xffff')
    a(f's_mov_b32 s{d+2}, {size}')
    a(f's_mov_b32 s{d+3}, 0x20000')

def wave_sum2(a, v1, v2, t1, t2, s0):
    for mod in ('quad_perm:[1,0,3,2]', 'quad_perm:[2,3,0,1]', 'row_half_mirror', 'row_mirror'):
        a('s_nop 1')
        a(f'v_add_f32_dpp v{t1}, v{v1}, v{v1} {mod} row_mask:0xf bank_mask:0xf')
        a(f'v_add_f32_dpp v{t2}, v{v2}, v{v2} {mod} row_mask:0xf bank_mask:0xf')
        a(f'v_mov_b32 v{v1}, v{t1}\nv_mov_b32 v{v2}, v{t2}')
    a('s_nop 1')
    for i in range(4):
        a(f'v_readlane_b32 s{s0+i}, v{v1}, {16*i}')
        a(f'v_readlane_b32 s{s0+4+i}, v{v2}, {16*i}')
    a('s_nop 1')
    a(f'v_mov_b32 v{v1}, s{s0}\nv_mov_b32 v{v2}, s{s0+4}')
    for i in range(1, 4):
        a(f'v_add_f32 v{v1}, s{s0+i}, v{v1}\nv_add_f32 v{v2}, s{s0+4+i}, v{v2}')

def silu_inplace(a, regs, tmps):
    for r, t in zip(regs, tmps):
        a(f'v_mul_f32 v{t}, 0x{NLOG2E:x}, v{r}')
    for r, t in zip(regs, tmps):
        a(f'v_exp_f32 v{t}, v{t}')
    a('s_nop 0')
    for r, t in zip(regs, tmps):
        a(f'v_add_f32 v{t}, 1.0, v{t}')
    for r, t in zip(regs, tmps):
        a(f'v_rcp_f32 v{t}, v{t}')
    a('s_nop 0')
    for r, t in zip(regs, tmps):
        a(f'v_mul_f32 v{r}, v{r}, v{t}')

def kd(name, vgpr, accum, sgpr=102):
    return f'''.p2align 6
.amdhsa_kernel {name}
  .amdhsa_next_free_vgpr {vgpr}
  .amdhsa_next_free_sgpr {sgpr}
  .amdhsa_accum_offset {accum}
  .amdhsa_group_segment_fixed_size 0
  .amdhsa_kernarg_size 96
  .amdhsa_user_sgpr_count 2
  .amdhsa_user_sgpr_kernarg_segment_ptr 1
  .amdhsa_system_sgpr_workgroup_id_x 1
.end_amdhsa_kernel'''

def khead(name):
    return f'.globl {name}\n.p2align 8\n.type {name},@function\n{name}:\n'

def gen_s1():
    a = Asm()
    a('s_cmp_ge_u32 s2, 272\ns_cbranch_scc1 S1_end')
    a('s_load_dwordx4 s[4:7], s[0:1], 0')
    a('s_load_dwordx4 s[8:11], s[0:1], 32')
    a('s_load_dwordx2 s[12:13], s[0:1], 64')
    a('s_load_dwordx2 s[14:15], s[0:1], 88')
    a('s_cmp_ge_u32 s2, 256\ns_cbranch_scc1 S1_emb')
    a('v_lshlrev_b32 v1, 2, v0')
    a('s_lshr_b32 s16, s2, 1\ns_lshl_b32 s16, s16, 14')
    a('s_and_b32 s17, s2, 1\ns_lshl_b32 s17, s17, 10\ns_add_u32 s16, s16, s17')
    a('v_lshlrev_b32 v2, 4, v0')
    a('s_waitcnt lgkmcnt(0)')
    srd(a, 20, 4, 5, 2097152)
    srd(a, 24, 8, 9, 4718592)
    srd(a, 28, 12, 13, 4718592)
    srd(a, 32, 14, 15, 0x10000, ST1_OFF)
    srd(a, 36, 14, 15, 0x2000, ST2_OFF)
    xt = []
    for c in range(8):
        if c % 2 == 0 and c:
            a('s_add_u32 s16, s16, 4096')
        xt.append(a.vmem(f'buffer_load_dword v{8+c}, v1, s[20:23], s16 offen offset:{(c%2)*2048}'))
    a('s_mul_i32 s18, s2, 18432')
    for wi, sr in ((0, 24), (1, 28)):
        for i in range(5):
            r = 32 + (wi*5+i)*4
            if i < 4:
                a(f's_add_u32 s19, s18, {i*4096}')
                a.vmem(f'buffer_load_dwordx4 v[{r}:{r+3}], v2, s[{sr}:{sr+3}], s19 offen')
            else:
                a(f's_add_u32 s19, s18, {i*4096}')
                a.vmem(f'buffer_load_dwordx2 v[{r}:{r+1}], v3, s[{sr}:{sr+3}], s19 offen')
            if wi == 0 and i == 0:
                a('v_lshlrev_b32 v3, 3, v0')
    a('v_mov_b32 v4, 0\ns_lshl_b32 s19, s2, 10')
    a.vmem('buffer_store_dword v4, v1, s[36:39], s19 offen')
    a.need(vtags=xt)
    a('v_mov_b32 v5, 0\nv_mov_b32 v6, 0')
    for c in range(8):
        a(f'v_lshlrev_b32 v16, 16, v{8+c}\nv_and_b32 v17, 0xffff0000, v{8+c}')
        a('v_add_f32 v5, v5, v16\nv_fmac_f32 v6, v16, v16')
        a('v_add_f32 v5, v5, v17\nv_fmac_f32 v6, v17, v17')
    wave_sum2(a, 5, 6, 16, 17, 40)
    a('v_lshrrev_b32 v7, 6, v0\nv_lshlrev_b32 v7, 3, v7')
    a('ds_write_b64 v7, v[5:6]')
    a.L.pop()
    a('v_mov_b32 v16, v5\nv_mov_b32 v17, v6')
    a('ds_write_b64 v7, v[16:17]')
    a('s_waitcnt lgkmcnt(0)\ns_barrier')
    a('v_mov_b32 v7, 0')
    a('ds_read_b128 v[16:19], v7\nds_read_b128 v[20:23], v7 offset:16')
    a('s_waitcnt lgkmcnt(0)')
    a('v_add_f32 v16, v16, v18\nv_add_f32 v17, v17, v19\nv_add_f32 v20, v20, v22\nv_add_f32 v21, v21, v23')
    a('v_add_f32 v16, v16, v20\nv_add_f32 v17, v17, v21')
    a('s_lshl_b32 s19, s2, 3')
    a('v_cmp_eq_u32 vcc, 0, v0\ns_and_saveexec_b64 s[40:41], vcc\ns_cbranch_execz S1_end')
    a('buffer_store_dwordx2 v[16:17], v7, s[32:35], s19 offen')
    a('s_branch S1_end')
    a.label('S1_emb')
    a.vq = []; a.lq = []
    a('s_sub_u32 s16, s2, 256\ns_lshl_b32 s16, s16, 6')
    a('v_and_b32 v1, 3, v0\nv_lshrrev_b32 v2, 2, v0')
    a('v_lshlrev_b32 v3, 10, v2\nv_lshl_add_u32 v3, v1, 4, v3')
    a('v_lshlrev_b32 v4, 1, v2')
    a('s_waitcnt lgkmcnt(0)')
    srd(a, 20, 6, 7, 3072)
    srd(a, 24, 10, 11, 786432)
    srd(a, 32, 14, 15, 4096, EMB_OFF)
    tt = []
    for b in range(2):
        for i in range(12):
            tt.append(a.vmem(f'buffer_load_ushort v{8+b*12+i}, v4, s[20:23], 0 offen offset:{b*1536+i*128}'))
    wt = []
    for i in range(12):
        a(f's_add_u32 s17, s16, {i*65536}')
        wt.append(a.vmem(f'buffer_load_dwordx4 v[{64+4*i}:{67+4*i}], v3, s[24:27], s17 offen'))
    a.need(vtags=tt)
    for i in range(24):
        a(f'v_lshlrev_b32 v{8+i}, 16, v{8+i}')
    silu_inplace(a, list(range(8, 32)), list(range(32, 56)))
    for i in range(16):
        a(f'v_mov_b32 v{112+i}, 0')
    for i in range(12):
        a.need(vtags=[wt[i]])
        for d in range(4):
            a(f'v_lshlrev_b32 v56, 16, v{64+4*i+d}\nv_and_b32 v57, 0xffff0000, v{64+4*i+d}')
            for b in range(2):
                a(f'v_fmac_f32 v{112+b*8+2*d}, v56, v{8+b*12+i}')
                a(f'v_fmac_f32 v{112+b*8+2*d+1}, v57, v{8+b*12+i}')
    a('v_lshlrev_b32 v5, 6, v0')
    for i in range(4):
        a(f'ds_write_b128 v5, v[{112+4*i}:{115+4*i}] offset:{16*i}')
    a('s_waitcnt lgkmcnt(0)\ns_barrier')
    a('v_and_b32 v6, 63, v0\nv_lshrrev_b32 v7, 6, v0')
    a('v_lshlrev_b32 v5, 2, v6\nv_lshl_add_u32 v5, v7, 12, v5')
    for i in range(16):
        a(f'ds_read_b32 v{8+i}, v5 offset:{i*256}')
    a('s_waitcnt lgkmcnt(0)')
    for i in range(1, 16):
        a(f'v_add_f32 v8, v8, v{8+i}')
    a('s_barrier')
    a('v_lshlrev_b32 v5, 2, v0')
    a('ds_write_b32 v5, v8')
    a('s_waitcnt lgkmcnt(0)\ns_barrier')
    a('v_lshlrev_b32 v5, 2, v6')
    for i in range(4):
        a(f'ds_read_b32 v{8+i}, v5 offset:{i*256}')
    a('s_waitcnt lgkmcnt(0)')
    a('v_add_f32 v8, v8, v9\nv_add_f32 v10, v10, v11\nv_add_f32 v8, v8, v10')
    a('v_lshrrev_b32 v9, 4, v6\nv_bfe_u32 v10, v6, 3, 1\nv_and_b32 v11, 7, v6')
    a('v_lshlrev_b32 v9, 5, v9\nv_lshl_add_u32 v9, v10, 11, v9\nv_lshl_add_u32 v9, v11, 2, v9')
    a('s_lshl_b32 s16, s16, 1')
    a('v_cmp_gt_u32 vcc, 64, v0\ns_and_saveexec_b64 s[40:41], vcc\ns_cbranch_execz S1_end')
    a('buffer_store_dword v8, v9, s[32:35], s16 offen')
    a.label('S1_end')
    a('s_endpgm')
    return khead('s1_kernel') + a.text(), kd('s1_kernel', 128, 128)

def gen_s2():
    a = Asm()
    a('s_cmp_ge_u32 s2, 256\ns_cbranch_scc1 S2_end')
    a('s_load_dwordx2 s[4:5], s[0:1], 0')
    a('s_load_dwordx4 s[8:11], s[0:1], 16')
    a('s_load_dwordx2 s[14:15], s[0:1], 88')
    a('v_lshlrev_b32 v1, 2, v0')
    a('s_lshr_b32 s16, s2, 1\ns_lshl_b32 s16, s16, 14')
    a('s_mov_b32 s44, s16')
    a('s_and_b32 s17, s2, 1\ns_lshl_b32 s18, s17, 10\ns_add_u32 s16, s16, s18')
    a('s_lshl_b32 s18, s17, 13\ns_add_u32 s44, s44, s18')
    a('v_and_b32 v2, 31, v0\nv_lshlrev_b32 v2, 3, v2')
    a('s_lshr_b32 s19, s2, 1\ns_and_b32 s19, s19, 63\ns_lshl_b32 s19, s19, 4')
    a('s_waitcnt lgkmcnt(0)')
    srd(a, 20, 4, 5, 2097152)
    srd(a, 32, 14, 15, 0x800, ST1_OFF)
    srd(a, 36, 14, 15, 2097152, A1_OFF)
    a('s_add_u32 s8, s8, s19\ns_addc_u32 s9, s9, 0\ns_add_u32 s10, s10, s19\ns_addc_u32 s11, s11, 0')
    a('s_load_dwordx4 s[48:51], s[8:9], 0\ns_load_dwordx4 s[52:55], s[10:11], 0')
    a('s_lshr_b32 s19, s2, 5\ns_lshl_b32 s19, s19, 8')
    st = a.vmem('buffer_load_dwordx2 v[4:5], v2, s[32:35], s19 offen')
    xt = []
    for c in range(8):
        if c % 2 == 0 and c:
            a('s_add_u32 s16, s16, 4096')
        xt.append(a.vmem(f'buffer_load_dword v{8+c}, v1, s[20:23], s16 offen offset:{(c%2)*2048}'))
    a.need(vtags=[st])
    wave_sum2(a, 4, 5, 6, 7, 56)
    inv = 1.0/(2*131072)
    import struct
    invb = struct.unpack('<I', struct.pack('<f', inv))[0]
    a(f'v_mul_f32 v4, 0x{invb:x}, v4\nv_mul_f32 v5, 0x{invb:x}, v5')
    a('v_fma_f32 v5, -v4, v4, v5\nv_max_f32 v5, 0, v5')
    a('v_add_f32 v5, 0x3727c5ac, v5')
    a('v_rsq_f32 v5, v5')
    a('s_waitcnt lgkmcnt(0)')
    for c in range(8):
        g = 48 + c//2; be = 52 + c//2
        if c % 2 == 0:
            a(f's_lshl_b32 s60, s{g}, 16\ns_lshl_b32 s61, s{be}, 16')
        else:
            a(f's_and_b32 s60, s{g}, 0xffff0000\ns_and_b32 s61, s{be}, 0xffff0000')
        a(f'v_mul_f32 v{16+c}, s60, v5')
        a(f'v_mov_b32 v{24+c}, s61')
        a(f'v_fma_f32 v{24+c}, -v4, v{16+c}, v{24+c}')
    a.need(vtags=xt)
    for c in range(8):
        a(f'v_lshlrev_b32 v{32+c}, 16, v{8+c}\nv_and_b32 v{40+c}, 0xffff0000, v{8+c}')
        a(f'v_fma_f32 v{32+c}, v{32+c}, v{16+c}, v{24+c}\nv_fma_f32 v{40+c}, v{40+c}, v{16+c}, v{24+c}')
    silu_inplace(a, list(range(32, 48)), list(range(48, 64)))
    for i in range(8):
        a(f'v_cvt_pk_bf16_f32 v{64+i}, v{32+2*i}, v{33+2*i}')
    a('v_lshlrev_b32 v1, 5, v0')
    a('buffer_store_dwordx4 v[64:67], v1, s[36:39], s44 offen')
    a('buffer_store_dwordx4 v[68:71], v1, s[36:39], s44 offen offset:16')
    a.label('S2_end')
    a('s_endpgm')
    return khead('s2_kernel') + a.text(), kd('s2_kernel', 72, 72)

WAVE_LDS = 40960
WSLOT = 9216
NW = 2
NA = 5
A_BASE = NW*WSLOT
V_WD = 8
V_AD = 17
V_WR = 29
V_AR = 33
V_EX = 36
V_RAW = 56
V_WF = 92
V_T = 164
A_ACC = 0
A_AF = 64
def acc(ob, ro, half): return A_ACC + ((ob*4 + ro)*2 + half)*4
def af(r, half, dx): return A_AF + ((r*2 + half)*3 + dx)*4
def wf(buf, tap): return V_WF + buf*36 + tap*4

def gen_conv(which, ts=False):
    name = 'c1_kernel' if which == 1 else 'c2_kernel'
    P = f'C{which}'
    a = Asm()
    a(f's_cmp_ge_u32 s2, 256\ns_cbranch_scc1 {P}_end')
    if ts:
        a('s_memtime s[80:81]\ns_memrealtime s[82:83]')
    a(f's_load_dwordx2 s[4:5], s[0:1], {32 if which == 1 else 64}')
    a('s_load_dwordx2 s[6:7], s[0:1], 88')
    if which == 1:
        a('s_load_dwordx4 s[64:67], s[0:1], 48')
    else:
        a('s_load_dwordx2 s[64:65], s[0:1], 0\ns_load_dwordx2 s[66:67], s[0:1], 72')
    a('v_lshrrev_b32 v1, 6, v0\nv_and_b32 v2, 63, v0')
    a('v_readfirstlane_b32 s20, v1')
    a('s_and_b32 s21, s2, 7\ns_lshr_b32 s22, s2, 3')
    a('s_lshr_b32 s23, s21, 2\ns_and_b32 s24, s21, 3')
    a('s_and_b32 s25, s22, 3\ns_lshr_b32 s26, s22, 2')
    a('s_lshl_b32 s27, s24, 7\ns_lshl_b32 s28, s25, 5\ns_add_u32 s27, s27, s28')
    a('s_lshl_b32 s28, s26, 2')
    a('s_movk_i32 s30, 1821')
    a('s_movk_i32 s31, 9216')
    for n in range(9):
        a(f'v_add_u32 v3, {64*n}, v2')
        a('v_mul_u32_u24 v4, s30, v3\nv_lshrrev_b32 v4, 16, v4')
        a('v_mul_u32_u24 v5, 36, v4\nv_sub_u32 v5, v3, v5')
        a('v_bfe_u32 v6, v4, 3, 1\nv_lshlrev_b32 v6, 1, v6\nv_xor_b32 v5, v5, v6')
        a('v_add_u32 v4, s27, v4\nv_mul_u32_u24 v4, s31, v4')
        a(f'v_lshl_add_u32 v{V_WD+n}, v5, 4, v4')
        if n % 4:
            a(f'v_subrev_u32 v{V_WD+n}, {(n%4)*1024}, v{V_WD+n}')
    a('s_lshl_b32 s29, s23, 20\ns_add_u32 s29, s29, 4096')
    a('v_mov_b32 v5, 0x7ff00000')
    for j in range(3):
        a(f'v_lshrrev_b32 v3, 5, v2\nv_add_u32 v3, {2*j}, v3\nv_add_u32 v3, s28, v3\nv_subrev_u32 v3, 1, v3')
        a('v_and_b32 v4, 31, v2\nv_lshlrev_b32 v4, 4, v4\nv_lshl_add_u32 v4, v3, 9, v4')
        a('v_add_u32 v4, s29, v4')
        a('v_cmp_gt_u32 vcc, 32, v3\ns_nop 1')
        a(f'v_cndmask_b32 v{V_AD+4*j}, v5, v4, vcc')
        for kq in range(1, 4):
            a(f'v_add_u32 v{V_AD+4*j+kq}, {kq*15360}, v{V_AD+4*j}')
    a(f's_mul_i32 s34, s20, {WAVE_LDS}')
    a('s_waitcnt lgkmcnt(0)')
    srd(a, 8, 4, 5, 4718592)
    srd(a, 12, 6, 7, 2097152+4096, (A1_OFF if which == 1 else A2_OFF) - 4096)
    a('s_mul_i32 s36, s20, 2304')
    for k in range(1, 8):
        a(f's_add_u32 s{36+k}, s36, {(k//2)*576 + (k%2)*147456}')
    a('s_lshl_b32 s44, s20, 18')
    for s in range(1, 4):
        a(f's_add_u32 s{44+s}, s44, {s*65536}')

    m0cur = [None]
    def setm0(v):
        if m0cur[0] != v:
            a(f's_add_u32 m0, s34, {v}\ns_nop 0'); m0cur[0] = v
    def dma_w(k, n):
        setm0((k % NW)*WSLOT + (n - n % 4)*1024)
        a.vmem(f'buffer_load_dwordx4 v{V_WD+n}, s[8:11], s{36+k} offen offset:{(n%4)*1024} lds', tag=('W', k))
    def dma_a(u, kq):
        s, j = divmod(u, 3)
        setm0(A_BASE + (u % NA)*4096)
        a.vmem(f'buffer_load_dwordx4 v{V_AD+4*j+kq}, s[12:15], s{44+s} offen offset:{kq*1024} lds', tag=('A', u))
    for n in range(9): dma_w(0, n)
    for u in range(3):
        for kq in range(4): dma_a(u, kq)
    for n in range(9): dma_w(1, n)
    for u in range(3, NA):
        for kq in range(4): dma_a(u, kq)
    a('v_and_b32 v3, 15, v2\nv_lshrrev_b32 v4, 4, v2')
    a('v_bfe_u32 v5, v3, 3, 1\nv_lshlrev_b32 v5, 1, v5')
    a('v_mul_u32_u24 v6, 9, v4')
    a('s_movk_i32 s30, 576\nv_mul_u32_u24 v7, s30, v3\nv_add_u32 v7, s34, v7')
    for m in range(4):
        a(f'v_add_u32 v{V_T}, {m}, v6\nv_xor_b32 v{V_T}, v{V_T}, v5')
        a(f'v_lshl_add_u32 v{V_WR+m}, v{V_T}, 4, v7')
    a(f's_add_u32 s30, s34, {A_BASE - 16}')
    a(f'v_lshlrev_b32 v{V_AR}, 10, v4\nv_lshl_add_u32 v{V_AR}, v3, 4, v{V_AR}\nv_add_u32 v{V_AR}, s30, v{V_AR}')
    a(f'v_mov_b32 v{V_T}, 163840')
    a(f'v_cmp_eq_u32 vcc, 0, v3\ns_nop 1\nv_cndmask_b32 v{V_AR+1}, v{V_AR}, v{V_T}, vcc')
    a(f'v_cmp_eq_u32 vcc, 15, v3\ns_nop 1\nv_cndmask_b32 v{V_AR+2}, v{V_AR}, v{V_T}, vcc')
    a('s_mov_b32 s35, 0xffff')
    ex = []
    if which == 1:
        srd(a, 16, 6, 7, 2097152, A2_OFF)
        srd(a, 48, 6, 7, 4096, EMB_OFF)
        srd(a, 52, 64, 65, 1024)
        srd(a, 56, 66, 67, 1024)
        srd(a, 60, 6, 7, 8192, ST2_OFF)
        a(f'v_lshlrev_b32 v{V_T}, 2, v4\nv_add_u32 v{V_T}, s27, v{V_T}')
        a(f'v_lshlrev_b32 v{V_T+1}, 2, v{V_T}\nv_lshlrev_b32 v{V_T+2}, 1, v{V_T}')
        a('s_lshl_b32 s30, s23, 11')
        for ob in range(2):
            ex.append(a.vmem(f'buffer_load_dwordx4 v[{V_EX+4*ob}:{V_EX+4*ob+3}], v{V_T+1}, s[48:51], s30 offen offset:{ob*64}'))
            ex.append(a.vmem(f'buffer_load_dwordx2 v[{V_EX+8+2*ob}:{V_EX+9+2*ob}], v{V_T+2}, s[52:55], 0 offen offset:{ob*32}'))
            ex.append(a.vmem(f'buffer_load_dwordx2 v[{V_EX+12+2*ob}:{V_EX+13+2*ob}], v{V_T+2}, s[56:59], 0 offen offset:{ob*32}'))
        a(f'v_lshrrev_b32 v{V_T}, 1, v4\nv_lshlrev_b32 v{V_T}, 14, v{V_T}')
        a(f'v_lshl_add_u32 v{V_T}, v3, 4, v{V_T}')
        a(f'v_and_b32 v{V_T+1}, 1, v4\nv_lshl_add_u32 v{V_EX+16}, v{V_T+1}, 3, v{V_T}')
        a('s_lshl_b32 s30, s23, 20\ns_lshl_b32 s31, s27, 11\ns_add_u32 s30, s30, s31')
        a('s_add_u32 s31, s28, s20\ns_lshl_b32 s31, s31, 9\ns_add_u32 s68, s30, s31')
    else:
        srd(a, 16, 66, 67, 2097152)
        srd(a, 48, 64, 65, 2097152)
        a(f'v_lshlrev_b32 v{V_EX+16}, 11, v3\nv_lshl_add_u32 v{V_EX+16}, v4, 3, v{V_EX+16}')
        a('s_lshl_b32 s30, s23, 20\ns_lshl_b32 s31, s27, 11\ns_add_u32 s30, s30, s31')
        a('s_add_u32 s31, s28, s20\ns_lshl_b32 s31, s31, 6\ns_add_u32 s68, s30, s31\ns_add_u32 s69, s68, 32768')
        for ob in range(2):
            for half in range(2):
                r = V_EX + (ob*2+half)*2
                ex.append(a.vmem(f'buffer_load_dwordx2 v[{r}:{r+1}], v{V_EX+16}, s[48:51], s{68+ob} offen offset:{half*32}'))

    def rd_raw(k, j):
        a.need(vtags=[('W', k)])
        m = j % 4
        a.lds(f'ds_read_b128 v[{V_RAW+4*j}:{V_RAW+4*j+3}], v{V_WR+m} offset:{(k % NW)*WSLOT + (j-m)*16}', tag=('R', k, j))
    def perm(k, i):
        m, t = divmod(i, 9)
        lo = 9*m + t//2; hi = 9*m + (t+9)//2
        a.need(ltags=[('R', k, lo//4), ('R', k, hi//4)])
        d = wf(k % 2, t) + m
        if t % 2 == 0:
            a(f'v_bfi_b32 v{d}, s35, v{V_RAW+lo}, v{V_RAW+hi}')
        else:
            a(f'v_alignbit_b32 v{d}, v{V_RAW+hi}, v{V_RAW+lo}, 16')
    def rd_af(s, r, half, dx):
        u = s*3 + r//2
        a.need(vtags=[('A', u)])
        reg = V_AR
        if dx == 0 and half == 0: reg = V_AR+1
        if dx == 2 and half == 1: reg = V_AR+2
        off = (u % NA)*4096 + (r % 2)*512 + half*256 + dx*16
        d = af(r, half, dx)
        a.lds(f'ds_read_b128 a[{d}:{d+3}], v{reg} offset:{off}', tag=('F', s, r, half, dx))

    for j in range(9): rd_raw(0, j)
    for r in range(2):
        for half in range(2):
            for dx in range(3):
                rd_af(0, r, half, dx)
        if r == 0:
            for i in range(18): perm(0, i)
    for i in range(18, 36): perm(0, i)
    for half in range(2):
        for dx in range(3):
            rd_af(0, 2, half, dx)
    pending = []
    next_units_a = NA
    def sched_pass(k):
        s, ob = divmod(k, 2)
        fl = {i: [] for i in range(72)}
        def put(slot, fn): fl[min(max(slot, 0), 71)].append(fn)
        if k + 1 < 8:
            for j in range(9):
                put(2 + 2*j, (lambda j=j: rd_raw(k+1, j)))
            for i in range(36):
                put(10 + (i*3)//2, (lambda i=i: perm(k+1, i)))
            if k + 3 < 8:
                for n in range(9):
                    def f(n=n):
                        a.need(ltags=[('R', k+1, 8)])
                        dma_w(k+3, n)
                    put(30 + 4*n, f)
        rows = []
        if ob == 1 and s + 1 < 4:
            rows = [(s+1, 0, 18), (s+1, 1, 36), (s+1, 2, 54)]
        if ob == 0:
            rows = [(s, 3, 0), (s, 4, 14), (s, 5, 28)]
        for (ss, r, base) in rows:
            i = 0
            for half in range(2):
                for dx in range(3):
                    put(base + 1 + 2*i, (lambda ss=ss, r=r, half=half, dx=dx: rd_af(ss, r, half, dx)))
                    i += 1
            if r % 2 == 1:
                u = ss*3 + r//2
                if u + NA < 12:
                    for kq in range(4):
                        def f(u=u, kq=kq, ss=ss, r=r):
                            a.need(ltags=[('F', ss, r, 1, 2)])
                            dma_a(u + NA, kq)
                        put(base + 16 + 2*kq, f)
        if k == 0:
            for n in range(9):
                put(1 + 2*n, (lambda n=n: dma_w(2, n)))
            for kq in range(4):
                def f(kq=kq):
                    a.need(ltags=[('F', 0, 1, 1, 2)])
                    dma_a(NA, kq)
                put(20 + 2*kq, f)
        slot = 0
        for ro in range(4):
            for half in range(2):
                for dy in range(3):
                    for dx in range(3):
                        a.need(ltags=[('F', s, ro+dy, half, dx)])
                        c = acc(ob, ro, half); w_ = wf(k % 2, dy*3+dx); f_ = af(ro+dy, half, dx)
                        srcc = '0' if (s == 0 and dy == 0 and dx == 0) else f'a[{c}:{c+3}]'
                        if which == 1:
                            a(f'v_mfma_f32_16x16x32_bf16 a[{c}:{c+3}], v[{w_}:{w_+3}], a[{f_}:{f_+3}], {srcc}')
                        else:
                            a(f'v_mfma_f32_16x16x32_bf16 a[{c}:{c+3}], a[{f_}:{f_+3}], v[{w_}:{w_+3}], {srcc}')
                        for fn in fl[slot]: fn()
                        slot += 1
    a('s_nop 1')
    for k in range(8):
        sched_pass(k)
    a('s_nop 7\ns_nop 1')
    a(f'v_lshlrev_b32 v{V_T}, 4, v2\nv_add_u32 v{V_T+1}, s34, v{V_T}')
    for ro in range(4):
        for ob in range(2):
            for half in range(2):
                c = acc(ob, ro, half)
                a.lds(f'ds_write_b128 v{V_T+1}, a[{c}:{c+3}] offset:{(ro*4+ob*2+half)*1024}')
    a.wait_all(v=False)
    a('s_barrier')
    a(f's_lshl_b32 s30, s20, 12\nv_add_u32 v{V_T+1}, s30, v{V_T}')
    a(f'v_add_u32 v{V_T+2}, {2*WAVE_LDS}, v{V_T+1}')
    R = V_RAW
    for v in range(4):
        for i in range(4):
            base = V_T+1 if v < 2 else V_T+2
            a.lds(f'ds_read_b128 v[{R+(v*4+i)*4}:{R+(v*4+i)*4+3}], v{base} offset:{(v%2)*WAVE_LDS + i*1024}', tag=('P', v))
    a.need(ltags=[('P', 1)])
    for e in range(16):
        a(f'v_add_f32 v{R+e}, v{R+e}, v{R+16+e}')
    a.need(ltags=[('P', 3)])
    for e in range(16):
        a(f'v_add_f32 v{R+32+e}, v{R+32+e}, v{R+48+e}')
    for e in range(16):
        a(f'v_add_f32 v{R+e}, v{R+e}, v{R+32+e}')
    a.need(vtags=ex)
    if which == 1:
        for ob in range(2):
            for half in range(2):
                for i in range(4):
                    r = R + (ob*2+half)*4 + i
                    a(f'v_add_f32 v{r}, v{r}, v{V_EX+4*ob+i}')
        S, Q = V_T+4, V_T+5
        a(f'v_mov_b32 v{S}, v{R}\nv_mul_f32 v{Q}, v{R}, v{R}')
        for e in range(1, 16):
            a(f'v_add_f32 v{S}, v{S}, v{R+e}\nv_fmac_f32 v{Q}, v{R+e}, v{R+e}')
        wave_sum2(a, S, Q, V_T+6, V_T+7, 72)
        a(f'v_or_b32 v{Q}, 0x80000000, v{Q}')
        a('s_lshl_b32 s30, s21, 10\ns_lshl_b32 s31, s22, 5\ns_add_u32 s31, s31, s30\ns_lshl_b32 s32, s20, 3\ns_add_u32 s31, s31, s32')
        a(f'v_mov_b32 v{V_T+6}, 0')
        a('v_cmp_eq_u32 vcc, 0, v2\ns_and_saveexec_b64 s[70:71], vcc')
        a(f'buffer_store_dwordx2 v[{S}:{Q}], v{V_T+6}, s[60:63], s31 offen sc0 sc1')
        a('s_mov_b64 exec, s[70:71]')
        a('s_mov_b32 s33, 0')
        a.label(f'{P}_poll')
        a(f'buffer_load_dwordx4 v[{V_T+8}:{V_T+11}], v{V_T}, s[60:63], s30 offen sc0 sc1')
        a('s_waitcnt vmcnt(0)')
        a(f'v_and_b32 v{V_T+6}, v{V_T+9}, v{V_T+11}')
        a(f'v_cmp_gt_i32 vcc, 0, v{V_T+6}')
        a('s_add_u32 s33, s33, 1')
        a('s_cmp_eq_u64 vcc, exec')
        a(f's_cbranch_scc1 {P}_got')
        a('s_sleep 1')
        a(f's_cmp_lt_u32 s33, 0x100000\ns_cbranch_scc1 {P}_poll')
        a.label(f'{P}_got')
        a.vq = []
        a(f'v_add_f32 v{S}, v{V_T+8}, v{V_T+10}')
        a(f'v_add_f32 v{Q}, v{V_T+9}, v{V_T+11}')
        wave_sum2(a, S, Q, V_T+6, V_T+7, 72)
        import struct
        invb = struct.unpack('<I', struct.pack('<f', 1.0/131072))[0]
        a(f'v_mul_f32 v{S}, 0x{invb:x}, v{S}\nv_mul_f32 v{Q}, 0x{invb | 0x80000000:x}, v{Q}')
        a(f'v_fma_f32 v{Q}, -v{S}, v{S}, v{Q}\nv_max_f32 v{Q}, 0, v{Q}\nv_add_f32 v{Q}, 0x3727c5ac, v{Q}')
        a(f'v_rsq_f32 v{Q}, v{Q}')
        SC = R + 16; SH = R + 24
        for ob in range(2):
            for i in range(4):
                g = V_EX+8+2*ob+i//2; be = V_EX+12+2*ob+i//2
                e = ob*4+i
                if i % 2 == 0:
                    a(f'v_lshlrev_b32 v{SC+e}, 16, v{g}\nv_lshlrev_b32 v{SH+e}, 16, v{be}')
                else:
                    a(f'v_and_b32 v{SC+e}, 0xffff0000, v{g}\nv_and_b32 v{SH+e}, 0xffff0000, v{be}')
                a(f'v_mul_f32 v{SC+e}, v{SC+e}, v{Q}')
                a(f'v_fma_f32 v{SH+e}, -v{S}, v{SC+e}, v{SH+e}')
        for ob in range(2):
            for half in range(2):
                for i in range(4):
                    r = R + (ob*2+half)*4 + i
                    a(f'v_fma_f32 v{r}, v{r}, v{SC+ob*4+i}, v{SH+ob*4+i}')
        silu_inplace(a, list(range(R, R+16)), list(range(R+32, R+48)))
        for q in range(8):
            a(f'v_cvt_pk_bf16_f32 v{R+48+q}, v{R+2*q}, v{R+2*q+1}')
        a('s_add_u32 s69, s68, 32768')
        for ob in range(2):
            for half in range(2):
                r = R + 48 + (ob*2+half)*2
                a(f'buffer_store_dwordx2 v[{r}:{r+1}], v{V_EX+16}, s[16:19], s{68+ob} offen offset:{half*256}')
    else:
        for ob in range(2):
            for half in range(2):
                x = V_EX + (ob*2+half)*2
                r = R + (ob*2+half)*4
                a(f'v_lshlrev_b32 v{R+16}, 16, v{x}\nv_and_b32 v{R+17}, 0xffff0000, v{x}')
                a(f'v_lshlrev_b32 v{R+18}, 16, v{x+1}\nv_and_b32 v{R+19}, 0xffff0000, v{x+1}')
                for i in range(4):
                    a(f'v_add_f32 v{r+i}, v{r+i}, v{R+16+i}')
                o = R + 32 + (ob*2+half)*2
                a(f'v_cvt_pk_bf16_f32 v{o}, v{r}, v{r+1}\nv_cvt_pk_bf16_f32 v{o+1}, v{r+2}, v{r+3}')
                a(f'buffer_store_dwordx2 v[{o}:{o+1}], v{V_EX+16}, s[16:19], s{68+ob} offen offset:{half*32}')
    if ts:
        a('s_waitcnt vmcnt(0)')
        a('s_memtime s[84:85]\ns_memrealtime s[86:87]\ns_waitcnt lgkmcnt(0)')
        a('v_mov_b32 v4, s80\nv_mov_b32 v5, s84\nv_mov_b32 v6, s82\nv_mov_b32 v7, s86')
        a('s_lshl_b32 s37, s2, 6\ns_lshl_b32 s38, s20, 4\ns_add_u32 s37, s37, s38\nv_mov_b32 v8, s37')
        srd(a, 88, 6, 7, 0x10000, TS_OFF + which*0x10000)
        a('v_cmp_eq_u32 vcc, 0, v2\ns_and_saveexec_b64 s[70:71], vcc')
        a('buffer_store_dwordx4 v[4:7], v8, s[88:91], 0 offen')
    a.label(f'{P}_end')
    a('s_endpgm')
    return khead(name) + a.text(), kd(name, 256+208, 256)

def main():
    ts = '--ts' in sys.argv
    hdr = open('standalone__adm_resblock__diffusion.s.ref').read().split('\n')
    top = [l for l in hdr if l.startswith(';') and '@launch' not in l]
    top += ['; @launch kernel=s1_kernel grid=(272,1,1) block=(256,1,1) lds=16384',
            '; @launch kernel=s2_kernel grid=(256,1,1) block=(256,1,1) lds=0',
            '; @launch kernel=c1_kernel grid=(256,1,1) block=(256,1,1) lds=163840',
            '; @launch kernel=c2_kernel grid=(256,1,1) block=(256,1,1) lds=163840']
    ks = [gen_s1(), gen_s2(), gen_conv(1, ts), gen_conv(2, ts)]
    out = '\n'.join(top) + '\n.amdgcn_target "amdgcn-amd-amdhsa--gfx950"\n.text\n'
    out += '\n'.join(k[0] for k in ks) + '\n.section .rodata,"a"\n' + '\n'.join(k[1] for k in ks) + '\n'
    print(out)

main()
```

```python
import struct
LOG2E = 0x3fb8aa3b
NLOG2E = 0xbfb8aa3b

class Asm:
    def __init__(self):
        self.L = []
        self.vq = []
        self.lq = []
        self.uid = 0
    def __call__(self, s):
        for line in s.split('\n'):
            line = line.strip()
            if line:
                self.L.append(line)
    def label(self, s):
        self.L.append(s + ':')
    def vmem(self, s, tag=None):
        self(s); self.uid += 1
        t = tag if tag is not None else ('v', self.uid)
        self.vq.append(t); return t
    def lds(self, s, tag=None):
        self(s); self.uid += 1
        t = tag if tag is not None else ('l', self.uid)
        self.lq.append(t); return t
    def need(self, vtags=(), ltags=()):
        vn = None; ln = None
        for t in vtags:
            idx = [i for i, x in enumerate(self.vq) if x == t]
            if idx:
                n = len(self.vq) - 1 - idx[-1]
                vn = n if vn is None else min(vn, n)
        for t in ltags:
            idx = [i for i, x in enumerate(self.lq) if x == t]
            if idx:
                n = len(self.lq) - 1 - idx[-1]
                ln = n if ln is None else min(ln, n)
        parts = []
        if vn is not None:
            vn = min(vn, 63)
            parts.append(f'vmcnt({vn})'); self.vq = self.vq[len(self.vq)-vn:] if vn else []
        if ln is not None:
            ln = min(ln, 15)
            parts.append(f'lgkmcnt({ln})'); self.lq = self.lq[len(self.lq)-ln:] if ln else []
        if parts:
            self('s_waitcnt ' + ' '.join(parts))
    def wait_all(self, v=True, l=True):
        parts = []
        if v: parts.append('vmcnt(0)'); self.vq = []
        if l: parts.append('lgkmcnt(0)'); self.lq = []
        self('s_waitcnt ' + ' '.join(parts))
    def text(self):
        return '\n'.join(('' if l.endswith(':') else '    ') + l for l in self.L)

def srd(a, d, lo, hi, size, off=0):
    if off:
        a(f's_add_u32 s{d}, s{lo}, {off & 0xffffffff}')
        a(f's_addc_u32 s{d+1}, s{hi}, {-1 if off < 0 else 0}')
        a(f's_and_b32 s{d+1}, s{d+1}, 0xffff')
    else:
        a(f's_mov_b32 s{d}, s{lo}')
        a(f's_and_b32 s{d+1}, s{hi}, 0xffff')
    a(f's_mov_b32 s{d+2}, {size}')
    a(f's_mov_b32 s{d+3}, 0x20000')

def wave_sum2(a, v1, v2, t1, t2, s0):
    for mod in ('quad_perm:[1,0,3,2]', 'quad_perm:[2,3,0,1]', 'row_half_mirror', 'row_mirror'):
        a('s_nop 1')
        a(f'v_add_f32_dpp v{t1}, v{v1}, v{v1} {mod} row_mask:0xf bank_mask:0xf')
        a(f'v_add_f32_dpp v{t2}, v{v2}, v{v2} {mod} row_mask:0xf bank_mask:0xf')
        a(f'v_mov_b32 v{v1}, v{t1}\nv_mov_b32 v{v2}, v{t2}')
    a('s_nop 1')
    for i in range(4):
        a(f'v_readlane_b32 s{s0+i}, v{v1}, {16*i}')
        a(f'v_readlane_b32 s{s0+4+i}, v{v2}, {16*i}')
    a('s_nop 1')
    a(f'v_mov_b32 v{v1}, s{s0}\nv_mov_b32 v{v2}, s{s0+4}')
    for i in range(1, 4):
        a(f'v_add_f32 v{v1}, s{s0+i}, v{v1}\nv_add_f32 v{v2}, s{s0+4+i}, v{v2}')

def silu_inplace(a, regs, tmps):
    for r, t in zip(regs, tmps):
        a(f'v_mul_f32 v{t}, 0x{NLOG2E:x}, v{r}')
    for r, t in zip(regs, tmps):
        a(f'v_exp_f32 v{t}, v{t}')
    a('s_nop 0')
    for r, t in zip(regs, tmps):
        a(f'v_add_f32 v{t}, 1.0, v{t}')
    for r, t in zip(regs, tmps):
        a(f'v_rcp_f32 v{t}, v{t}')
    a('s_nop 0')
    for r, t in zip(regs, tmps):
        a(f'v_mul_f32 v{r}, v{r}, v{t}')

def kd(name, vgpr, accum, sgpr=102):
    return f'''.p2align 6
.amdhsa_kernel {name}
  .amdhsa_next_free_vgpr {vgpr}
  .amdhsa_next_free_sgpr {sgpr}
  .amdhsa_accum_offset {accum}
  .amdhsa_group_segment_fixed_size 0
  .amdhsa_kernarg_size 96
  .amdhsa_user_sgpr_count 2
  .amdhsa_user_sgpr_kernarg_segment_ptr 1
  .amdhsa_system_sgpr_workgroup_id_x 1
.end_amdhsa_kernel'''

def khead(name):
    return f'.globl {name}\n.p2align 8\n.type {name},@function\n{name}:\n'


def f2u(x):
    return struct.unpack("<I", struct.pack("<f", x))[0]
```

```python
import sys, struct, os
from genlib import *

E = os.environ.get
WARM = int(E('WARM', '3'))
TRK = E('TRK', '')
TOUCH = int(E('TOUCH', '1'))
PREF = int(E('PREF', '1'))
OUTF = E('OUTF', '')
DUP = int(E('DUP', '1'))
NT1 = E('NT1', ''); NT2 = E('NT2', ''); NTX = E('NTX', '')
WDLY = int(E('WDLY', '0'))
NOVM = E('NOVM', '')
EPS = E('EPS', '20,8')
DLY0 = int(E('DLY0', '0')); DLY1 = int(E('DLY1', '0'))
CAP = int(E('CAP', '2'))
BND = int(E('BND', '1'))
NLOC = int(E('NLOC', '48')); KGLOB = int(E('KGLOB', '6'))
SC = 'sc1'

A1_OFF = 0x100000
A2_OFF = 0x400000
EMBP_OFF = 0x700000
ST1L_OFF = 0x720000
ST2L_OFF = 0x724000
ST1G_OFF = 0x730000
F0_OFF = 0x738000
F1_OFF = 0x740000
ST2G_OFF = 0x760000
WS_SIZE = 0x800000
TS_OFF = 0x8000000

WAVE_LDS = 40960
WSLOT = 10240
NA = 5
A_BASE = 2*WSLOT
MISC = A_BASE

V_AD = 16; V_AR = 28; V_L16 = 31; V_EX = 32
V_PF0 = 49; V_PF1 = 50; V_PW = 51
V_T = 52
V_PF2 = 54; V_PFX = 55
V_WD = 64
V_WR = 74
V_WRX = 78
V_RAW = 82
V_WF = 118
V_P0 = 190
V_H = 216
A_ACC = 0; A_AF = 64; A_TS = 208
def acc(ob, ro, half): return A_ACC + ((ob*4 + ro)*2 + half)*4
def af(r, half, dx): return A_AF + ((r*2 + half)*3 + dx)*4
def wf(kk, tap): return V_WF + (kk % 2)*36 + tap*4

S_X, S_T, S_G1, S_B1, S_W1, S_WE, S_G2, S_B2, S_W2, S_OUT, S_DBG, S_WS = 4, 6, 8, 10, 12, 14, 16, 18, 20, 22, 24, 26
R_WS = 28; R_X = 32; R_A = 36; R_B = 40
S_WAVE = 44; S_XCD = 45; S_WITHIN = 46; S_BB = 47; S_G = 48; S_OCT = 49; S_PXT = 50; S_OC0 = 51; S_Y0 = 52
S_LDS = 53; S_E = 54; S_FFFF = 55
S_WOFF = 56
S_AOFF = 64
S_TMP = 68
S_C = 80
S_LIN = 84; S_IDX = 85; S_R1 = 86; S_R2 = 87
S_O1 = 88; S_O2 = 89; S_SAVE = 90
S_TS = 92
R_WQ = 96

def red2(a, v1, v2, s1, s2):
    for mod in ('quad_perm:[1,0,3,2] row_mask:0xf', 'quad_perm:[2,3,0,1] row_mask:0xf', 'row_half_mirror row_mask:0xf',
                'row_mirror row_mask:0xf', 'row_bcast:15 row_mask:0xa', 'row_bcast:31 row_mask:0xc'):
        a('s_nop 0')
        a(f'v_add_f32_dpp v{v1}, v{v1}, v{v1} {mod} bank_mask:0xf')
        a(f'v_add_f32_dpp v{v2}, v{v2}, v{v2} {mod} bank_mask:0xf')
    a(f'v_readlane_b32 s{s1}, v{v1}, 63\ns_nop 0\nv_readlane_b32 s{s2}, v{v2}, 63')

def silu_pk(a, z, t, n):
    for i in range(0, n, 2):
        a(f'v_pk_mul_f32 v[{t+i}:{t+i+1}], v[{z+i}:{z+i+1}], s[{S_C}:{S_C+1}]')
    for i in range(n):
        a(f'v_exp_f32 v{t+i}, v{t+i}')
    if n <= 4: a('s_nop 0')
    for i in range(0, n, 2):
        a(f'v_pk_add_f32 v[{t+i}:{t+i+1}], v[{t+i}:{t+i+1}], s[{S_C+2}:{S_C+3}]')
    for i in range(n):
        a(f'v_rcp_f32 v{t+i}, v{t+i}')
    if n <= 4: a('s_nop 0')
    for i in range(0, n, 2):
        a(f'v_pk_mul_f32 v[{z+i}:{z+i+1}], v[{z+i}:{z+i+1}], v[{t+i}:{t+i+1}]')

def gen(ts=False):
    a = Asm()
    stamps = [0]
    def stamp(idx=None):
        if ts:
            a(f's_memtime s[{S_TS}:{S_TS+1}]'); a.wait_all(v=False)
            i = stamps[0] if idx is None else idx
            a(f'v_mov_b32 v15, s{S_TS}\nv_accvgpr_write_b32 a{A_TS+i}, v15')
            if idx is None: stamps[0] += 1
    WSR = f's[{R_WS}:{R_WS+3}]'
    a('s_cmp_ge_u32 s2, 256\ns_cbranch_scc1 L_end')
    a('s_load_dwordx16 s[4:19], s[0:1], 0')
    a('s_load_dwordx8 s[20:27], s[0:1], 64')
    a(f's_memrealtime s[{S_TS+2}:{S_TS+3}]')
    if ts:
        a('s_memtime s[90:91]\ns_memrealtime s[100:101]\ns_waitcnt lgkmcnt(0)\nv_mov_b32 v15, s90\nv_accvgpr_write_b32 a229, v15')
    a('v_lshrrev_b32 v1, 6, v0\nv_and_b32 v2, 63, v0')
    a(f'v_readfirstlane_b32 s{S_WAVE}, v1')
    a(f's_and_b32 s{S_XCD}, s2, 7\ns_lshr_b32 s{S_WITHIN}, s2, 3')
    a(f's_lshr_b32 s{S_BB}, s{S_XCD}, 2\ns_and_b32 s{S_G}, s{S_XCD}, 3')
    a(f's_and_b32 s{S_OCT}, s{S_WITHIN}, 3\ns_lshr_b32 s{S_PXT}, s{S_WITHIN}, 2')
    a(f's_lshl_b32 s{S_OC0}, s{S_G}, 7\ns_lshl_b32 s{S_TMP}, s{S_OCT}, 5\ns_add_u32 s{S_OC0}, s{S_OC0}, s{S_TMP}')
    a(f's_lshl_b32 s{S_Y0}, s{S_PXT}, 2')
    a(f's_mul_i32 s{S_LDS}, s{S_WAVE}, {WAVE_LDS}')
    a(f's_lshl_b32 s{S_LIN}, s{S_XCD}, 5\ns_add_u32 s{S_LIN}, s{S_LIN}, s{S_WITHIN}')
    a(f's_lshr_b32 s{S_IDX}, s{S_LIN}, 1')
    a('v_lshlrev_b32 v3, 1, v2\nv_lshl_add_u32 v3, v1, 9, v3')
    a(f'v_lshlrev_b32 v{V_L16}, 4, v2')
    a(f's_lshl_b32 s{S_TMP+4}, s{S_IDX}, 14')
    a(f's_lshl_b32 s{S_TMP+6}, s{S_WAVE}, 12\ns_add_u32 s{S_O1}, s{S_TMP+4}, s{S_TMP+6}\ns_add_u32 s{S_O1}, s{S_O1}, {A1_OFF}')
    a(f's_and_b32 s{S_TMP+5}, s{S_IDX}, 63\ns_lshl_b32 s{S_TMP+5}, s{S_TMP+5}, 4')
    a(f's_or_b32 s{S_TMP+7}, s2, s{S_WAVE}')
    a(f's_mov_b32 s{S_C}, 0x{NLOG2E:x}\ns_mov_b32 s{S_C+1}, 0x{NLOG2E:x}\ns_mov_b32 s{S_C+2}, 1.0\ns_mov_b32 s{S_C+3}, 1.0')
    a('s_waitcnt lgkmcnt(0)')
    srd(a, R_B, S_DBG, S_DBG+1, 256)
    a(f's_cmp_lg_u32 s{S_TMP+7}, 0\ns_cbranch_scc1 L_noep')
    a(f's_or_b32 s{S_TS+2}, s{S_TS+2}, 1\nv_mov_b32 v5, s{S_TS+2}\nv_mov_b32 v4, 0')
    a(f'buffer_store_dword v5, v4, s[{R_B}:{R_B+3}], 0 offen {SC}')
    a.label('L_noep')
    srd(a, R_X, S_X, S_X+1, 2097152)
    srd(a, R_WS, S_WS, S_WS+1, WS_SIZE)
    a(f's_bitcmp1_b32 s{S_WITHIN}, 0\ns_cbranch_scc1 L_warm')

    def get_epoch(nm, v0_):
        a(f'v_mov_b32 v13, 0\ns_mov_b32 s{S_TMP+1}, 0')
        a.label(nm)
        a(f'v_readfirstlane_b32 s{S_E}, v{v0_}')
        a(f's_add_u32 s{S_TMP+1}, s{S_TMP+1}, 1')
        a(f's_cmp_lg_u32 s{S_E}, 0\ns_cbranch_scc1 {nm}ok')
        a(f's_cmp_gt_u32 s{S_TMP+1}, 0x40000\ns_cbranch_scc1 {nm}ok')
        a(f'buffer_load_dword v{v0_}, v13, s[{R_B}:{R_B+3}], 0 offen {SC}')
        a(f's_waitcnt vmcnt(0)\ns_branch {nm}')
        a.label(nm + 'ok')

    def exchange(nm, vS, loc_own, glob_own, publisher_cond, nld, lanemask, loc_base, glob_base, vA, vL, mid=None):
        loc_own(); glob_own()
        def pub(sreg, flag):
            if publisher_cond: a(f's_cmp_lg_u32 s{S_WAVE}, 0\ns_cbranch_scc1 {nm}_np{len(a.L)}'); lab = a.L[-1].split()[-1]
            a(f'v_mov_b32 v{vA+1}, 0\nv_cmp_eq_u32 vcc, 0, v2\ns_and_saveexec_b64 s[{S_SAVE}:{S_SAVE+1}], vcc')
            a(f'buffer_store_dwordx4 v[{vS}:{vS+3}], v{vA+1}, {WSR}, s{sreg} offen {flag}')
            a(f's_mov_b64 exec, s[{S_SAVE}:{S_SAVE+1}]')
            if publisher_cond: a.label(lab)
        pub(S_TMP+2, '')
        a(f'v_and_b32 v{vA}, {lanemask}, v2\nv_lshlrev_b32 v{vA}, 4, v{vA}')
        loc_base()
        a(f's_mov_b32 s{S_TMP+1}, 0\ns_movk_i32 s{S_TMP+4}, 1024')
        if mid: mid()
        a.label(nm)
        for i in range(nld):
            if i == 0:
                a(f'buffer_load_dwordx4 v[{vL}:{vL+3}], v{vA}, {WSR}, s{S_TMP} offen {SC}')
            else:
                a(f's_add_u32 s{S_TMP+5}, s{S_TMP}, s{S_TMP+4}')
                a(f'buffer_load_dwordx4 v[{vL+4}:{vL+7}], v{vA}, {WSR}, s{S_TMP+5} offen {SC}')
        a('s_waitcnt vmcnt(0)')
        a(f'v_xor_b32 v{vA+1}, s{S_E}, v{vL+1}\nv_xor_b32 v{vA+2}, s{S_E}, v{vL+3}')
        if nld == 2:
            a(f'v_xor_b32 v{vA+3}, s{S_E}, v{vL+5}\nv_or3_b32 v{vA+1}, v{vA+1}, v{vA+2}, v{vA+3}\nv_xor_b32 v{vA+2}, s{S_E}, v{vL+7}')
        a(f'v_or_b32 v{vA+1}, v{vA+1}, v{vA+2}')
        a(f'v_cmp_eq_u32 vcc, 0, v{vA+1}')
        a(f's_add_u32 s{S_TMP+1}, s{S_TMP+1}, 1')
        a(f's_cmp_eq_u64 vcc, exec\ns_cbranch_scc1 {nm}_ok')
        a(f's_cmp_lg_u32 s{S_TMP+1}, {KGLOB}\ns_cbranch_scc1 {nm}_c1')
        pub(S_TMP+3, SC)
        a.label(f'{nm}_c1')
        a(f's_cmp_lg_u32 s{S_TMP+1}, {NLOC}\ns_cbranch_scc1 {nm}_c2')
        a(f'v_lshlrev_b32 v{vA}, 3, v{vA}\ns_movk_i32 s{S_TMP+4}, 8192')
        glob_base()
        a.label(f'{nm}_c2')
        a(f's_cmp_lt_u32 s{S_TMP+1}, 0x40000\ns_cbranch_scc1 {nm}')
        a.label(f'{nm}_ok')
        a(f's_cmp_gt_u32 s{S_TMP+1}, {KGLOB}\ns_cbranch_scc1 {nm}_c3')
        pub(S_TMP+3, SC)
        a.label(f'{nm}_c3')
        if nld == 2:
            a(f'v_add_f32 v{vL}, v{vL}, v{vL+4}\nv_add_f32 v{vL+2}, v{vL+2}, v{vL+6}\ns_nop 0')
        red2(a, vL, vL+2, S_R1, S_R2)

    def mean_rstd(inv, vm):
        ib = f2u(inv)
        a(f'v_mov_b32 v{vm}, 0x{ib:x}\ns_nop 0')
        a(f'v_mul_f32 v{vm+2}, s{S_R2}, v{vm}\nv_mul_f32 v{vm}, s{S_R1}, v{vm}')
        a(f'v_fma_f32 v{vm+2}, -v{vm}, v{vm}, v{vm+2}\nv_max_f32 v{vm+2}, 0, v{vm+2}\nv_add_f32 v{vm+2}, 0x3727c5ac, v{vm+2}')
        a(f'v_rsq_f32 v{vm+2}, v{vm+2}\nv_sub_f32 v{vm}, 0, v{vm}\nv_mov_b32 v{vm+1}, v{vm}\nv_mov_b32 v{vm+3}, v{vm+2}')

    m0cur = [None]
    def set_m0(v):
        if m0cur[0] != v:
            a(f's_add_u32 m0, s{S_LDS}, {v}'); m0cur[0] = v
    def fix_m0():
        if a.L[-1].startswith('s_add_u32 m0'): a('s_nop 0')
    def wsegs(kk):
        return list(range(10)) if ((kk % 8)//2) % 2 == 0 else list(range(1, 9))
    wdone = set(); rawdone = set(); permdone = set()
    def dma_w_pre(kk, n):
        if kk >= 2: assert (kk-2) in rawdone, kk
        if 'w' in NOVM: return
        if kk >= 2: a.need(ltags=[('R', kk-2, 8)])
        if kk == 8 and n == 0:
            srd(a, R_WQ, S_W2, S_W2+1, 4718592+4096, -4096)
        set_m0((kk % 2)*WSLOT + (n - n % 4)*1024)
    def dma_w(kk, n):
        if n == wsegs(kk)[-1]: wdone.add(kk)
        if 'w' in NOVM: return
        assert m0cur[0] == (kk % 2)*WSLOT + (n - n % 4)*1024
        fix_m0()
        a.vmem(f'buffer_load_dwordx4 v{V_WD+n}, s[{R_WQ}:{R_WQ+3}], s{S_WOFF + kk % 8} offen offset:{(n%4)*1024} lds', tag=('W', kk))
    atmp = [None]; adone = set()
    def dma_a_pre(conv, u, kq):
        if 'a' in NOVM: return
        s, j = divmod(u, 3)
        set_m0(A_BASE + (u % NA)*4096)
        key = (conv, s)
        if atmp[0] != key:
            a(f's_add_u32 s{S_TMP+9}, s{S_AOFF+s}, {A1_OFF if conv == 0 else A2_OFF}'); atmp[0] = key
    def dma_a(conv, u, kq):
        if kq == 3: adone.add((conv, u))
        if 'a' in NOVM: return
        s, j = divmod(u, 3)
        assert m0cur[0] == A_BASE + (u % NA)*4096
        fix_m0()
        a.vmem(f'buffer_load_dwordx4 v{V_AD+4*j+kq}, {WSR}, s{S_TMP+9} offen offset:{kq*1024} lds', tag=('A', conv, u))
    def rd_raw(kk, j):
        assert kk in wdone, kk
        if kk >= 1: assert (kk-1) in permdone, kk
        a.need(vtags=[('W', kk)])
        m = j % 4
        odd = ((kk % 8)//2) % 2 == 1
        reg = (V_WRX if (odd and j < 4) else V_WR) + m
        a.lds(f'ds_read_b128 v[{V_RAW+4*j}:{V_RAW+4*j+3}], v{reg} offset:{(kk % 2)*WSLOT + (j//4)*1024}', tag=('R', kk, j))
        if j == 8: rawdone.add(kk)
    def perm(kk, i):
        assert kk in rawdone, kk
        m, t = divmod(i, 9)
        lo = 9*m + t//2; hi = 9*m + (t+9)//2
        if t == 0:
            a.need(ltags=[('R', kk, (9*m+8)//4)])
        d = wf(kk, t) + m
        if t % 2 == 0:
            a(f'v_bfi_b32 v{d}, s{S_FFFF}, v{V_RAW+lo}, v{V_RAW+hi}')
        else:
            a(f'v_alignbit_b32 v{d}, v{V_RAW+hi}, v{V_RAW+lo}, 16')
        if i == 35: permdone.add(kk)
    issued = set()
    def rd_af(conv, s, r, half, dx):
        u = s*3 + r//2
        assert (conv, u) in adone, (conv, u)
        a.need(vtags=[('A', conv, u)])
        reg = V_AR
        if dx == 0 and half == 0: reg = V_AR+1
        if dx == 2 and half == 1: reg = V_AR+2
        off = (u % NA)*4096 + (r % 2)*512 + half*256 + (dx-1)*16
        if reg == V_AR+1: off += 16
        d = af(r, half, dx)
        a.lds(f'ds_read_b128 a[{d}:{d+3}], v{reg} offset:{off}', tag=('F', s, r, half, dx))
        issued.add((conv, s, r, half, dx))
    def w_dma_all(kk):
        for n in wsegs(kk):
            dma_w_pre(kk, n); dma_w(kk, n)
    def w_rawperm(kk, doperm=True):
        for j in range(9): rd_raw(kk, j)
        if doperm:
            for i in range(36): perm(kk, i)

    def setup():
        a('v_lshrrev_b32 v4, 2, v2\nv_and_b32 v5, 3, v2')
        a('v_bfe_u32 v6, v4, 3, 1\nv_lshlrev_b32 v6, 1, v6\nv_xor_b32 v5, v5, v6')
        a(f's_movk_i32 s{S_TMP}, 9216\nv_add_u32 v4, s{S_OC0}, v4\nv_mul_u32_u24 v4, s{S_TMP}, v4\nv_lshl_add_u32 v4, v5, 4, v4')
        for n in range(10):
            a(f'v_add_u32 v{V_WD+n}, {4096 + n*64 - (n%4)*1024}, v4')
        srd(a, R_WQ, S_W1, S_W1+1, 4718592+4096, -4096)
        a(f's_mul_i32 s{S_WOFF}, s{S_WAVE}, 2304')
        for k in range(1, 8):
            a(f's_add_u32 s{S_WOFF+k}, s{S_WOFF}, {(k//2)*576 + (k%2)*147456}')
        a(f's_lshl_b32 s{S_TMP}, s{S_BB}, 20')
        a('v_mov_b32 v5, 0x7ff00000')
        for j in range(3):
            a(f'v_lshrrev_b32 v3, 5, v2\nv_add_u32 v3, {2*j}, v3\nv_add_u32 v3, s{S_Y0}, v3\nv_subrev_u32 v3, 1, v3')
            a('v_and_b32 v4, 31, v2\nv_lshlrev_b32 v4, 4, v4\nv_lshl_add_u32 v4, v3, 9, v4')
            a(f'v_add_u32 v4, s{S_TMP}, v4')
            a('v_cmp_gt_u32 vcc, 32, v3\ns_nop 1')
            a(f'v_cndmask_b32 v{V_AD+4*j}, v5, v4, vcc')
            for kq in range(1, 4):
                a(f'v_add_u32 v{V_AD+4*j+kq}, {kq*15360}, v{V_AD+4*j}')
        a('v_and_b32 v3, 15, v2\nv_lshrrev_b32 v4, 4, v2')
        a(f's_add_u32 s{S_TMP}, s{S_LDS}, {A_BASE}')
        a(f'v_lshlrev_b32 v{V_AR}, 10, v4\nv_lshl_add_u32 v{V_AR}, v3, 4, v{V_AR}\nv_add_u32 v{V_AR}, s{S_TMP}, v{V_AR}')
        a(f'v_mov_b32 v5, 163840\nv_subrev_u32 v6, 16, v{V_AR}')
        a(f'v_cmp_eq_u32 vcc, 0, v3\ns_nop 1\nv_cndmask_b32 v{V_AR+1}, v6, v5, vcc')
        a(f'v_cmp_eq_u32 vcc, 15, v3\ns_nop 1\nv_cndmask_b32 v{V_AR+2}, v{V_AR}, v5, vcc')
        a(f'v_add_u32 v{V_PW}, s{S_TMP}, v{V_L16}')
        a('v_bfe_u32 v6, v3, 3, 1\nv_lshlrev_b32 v6, 1, v6\nv_mul_u32_u24 v5, 9, v4')
        a(f'v_lshlrev_b32 v7, 6, v3\nv_add_u32 v7, s{S_LDS}, v7')
        a('v_mov_b32 v10, 0\nv_mov_b32 v11, 9216\nv_cmp_eq_u32 vcc, 0, v4\ns_nop 1\nv_cndmask_b32 v10, v10, v11, vcc')
        for m in range(4):
            a(f'v_add_u32 v8, {m}, v5\nv_lshrrev_b32 v9, 2, v8\nv_and_b32 v8, 3, v8\nv_xor_b32 v8, v8, v6')
            a(f'v_lshl_add_u32 v{V_WR+m}, v9, 10, v7\nv_lshl_add_u32 v{V_WR+m}, v8, 4, v{V_WR+m}')
            a(f'v_add_u32 v{V_WRX+m}, v{V_WR+m}, v10')
        a(f's_mov_b32 s{S_FFFF}, 0xffff')
        a(f's_lshl_b32 s{S_AOFF}, s{S_WAVE}, 18')
        for s in range(1, 4):
            a(f's_add_u32 s{S_AOFF+s}, s{S_AOFF}, {s*65536}')
        a(f's_lshl_b32 s{S_TMP}, s{S_BB}, 2\ns_add_u32 s{S_TMP}, s{S_TMP}, s{S_WAVE}\ns_lshl_b32 s{S_TMP}, s{S_TMP}, 5')
        a(f'v_lshlrev_b32 v6, 1, v3\nv_add_u32 v{V_PF0}, s{S_TMP}, v6')
        a('v_and_b32 v5, 31, v2')
        a(f'v_lshrrev_b32 v6, 2, v5\nv_subrev_u32 v7, s{S_PXT}, v6\nv_add_u32 v7, 1, v7')
        a(f'v_mov_b32 v8, s{S_PXT}\nv_cmp_gt_u32 vcc, 3, v7\ns_nop 1\nv_cndmask_b32 v6, v8, v6, vcc')
        a(f'v_and_b32 v7, 3, v5\nv_lshl_add_u32 v6, v6, 2, v7\nv_add_u32 v6, s{S_TMP}, v6\nv_lshlrev_b32 v{V_PF1}, 7, v6')
        a(f's_lshl_b32 s{S_TMP+1}, s{S_XCD}, 5\ns_lshl_b32 s{S_TMP+2}, s{S_OCT}, 1\ns_add_u32 s{S_TMP+1}, s{S_TMP+1}, s{S_TMP+2}\ns_add_u32 s{S_TMP+1}, s{S_TMP+1}, 1')
        a(f'v_and_b32 v6, 3, v2\nv_lshlrev_b32 v6, 3, v6\nv_add_u32 v6, s{S_TMP+1}, v6\nv_lshlrev_b32 v{V_PF2}, 7, v6')
        a(f'v_lshlrev_b32 v6, 6, v2\nv_mov_b32 v7, 0x7ff00000\nv_cmp_gt_u32 vcc, 18, v2\ns_nop 1\nv_cndmask_b32 v{V_PFX}, v7, v6, vcc')
        a(f'v_lshlrev_b32 v{V_PF0}, 7, v{V_PF0}')
    X0 = V_H
    for c in range(8):
        if c % 2 == 0 and c:
            a(f's_add_u32 s{S_TMP+4}, s{S_TMP+4}, 4096')
        for q in range(4):
            a(f'buffer_load_ushort v{X0+8*q+c}, v3, s[{R_X}:{R_X+3}], s{S_TMP+4} offen offset:{(c%2)*2048+q*128} {NTX}')
    a(f's_add_u32 s{S_G1}, s{S_G1}, s{S_TMP+5}\ns_addc_u32 s{S_G1+1}, s{S_G1+1}, 0')
    a(f's_add_u32 s{S_B1}, s{S_B1}, s{S_TMP+5}\ns_addc_u32 s{S_B1+1}, s{S_B1+1}, 0')
    GB = 72
    a(f's_load_dwordx4 s[{GB}:{GB+3}], s[{S_G1}:{S_G1+1}], 0\ns_load_dwordx4 s[{GB+4}:{GB+7}], s[{S_B1}:{S_B1+1}], 0')
    EP = V_H + 32
    eps = [int(x) for x in EPS.split(',')]
    def touch():
        if TOUCH:
            a(f's_lshl_b32 s{S_TMP}, s{S_XCD}, 8\ns_add_u32 s{S_TMP}, s{S_TMP}, {ST1L_OFF}')
            a(f'buffer_load_dword v{EP+4}, v{V_L16}, {WSR}, s{S_TMP} offen {SC}')
            a(f's_lshl_b32 s{S_TMP}, s{S_XCD}, 11\ns_add_u32 s{S_TMP}, s{S_TMP}, {ST2L_OFF}')
            a(f'buffer_load_dword v{EP+4}, v{V_L16}, {WSR}, s{S_TMP} offen {SC}')
            a(f'buffer_load_dword v{EP+4}, v{V_L16}, {WSR}, s{S_TMP} offen offset:1024 {SC}')
    touch()
    setup()
    a(f's_cmp_eq_u32 s{S_WAVE}, 0\ns_cbranch_scc1 L_w0a')
    a('s_waitcnt vmcnt(0)\ns_branch L_stat')
    a.label('L_w0a')
    a('v_mov_b32 v13, 0')
    for i in range(3):
        a(f'v_mov_b32 v{EP+i}, 0')
    for i, sl in enumerate(eps):
        a(f's_sleep {sl}')
        a(f'buffer_load_dword v{EP+i}, v13, s[{R_B}:{R_B+3}], 0 offen {SC}')
    a(f's_waitcnt vmcnt({len(eps)})')
    a.label('L_stat')
    stamp(0)
    for c in range(32):
        a(f'v_lshlrev_b32 v{X0+c}, 16, v{X0+c}')
    a(f'v_pk_add_f32 v[8:9], v[{X0}:{X0+1}], v[{X0+2}:{X0+3}]\nv_pk_mul_f32 v[10:11], v[{X0}:{X0+1}], v[{X0}:{X0+1}]')
    a(f'v_pk_fma_f32 v[10:11], v[{X0+2}:{X0+3}], v[{X0+2}:{X0+3}], v[10:11]')
    for c in range(4, 32, 2):
        a(f'v_pk_add_f32 v[8:9], v[8:9], v[{X0+c}:{X0+c+1}]\nv_pk_fma_f32 v[10:11], v[{X0+c}:{X0+c+1}], v[{X0+c}:{X0+c+1}], v[10:11]')
    a('v_add_f32 v8, v8, v9\nv_add_f32 v9, v10, v11\ns_nop 0')
    red2(a, 8, 9, S_R1, S_R2)
    a(f's_lshl_b32 s{S_TMP}, s{S_WAVE}, 3\ns_add_u32 s{S_TMP}, s{S_TMP}, {MISC}\nv_mov_b32 v10, s{S_TMP}')
    a(f'v_mov_b32 v8, s{S_R1}\nv_mov_b32 v9, s{S_R2}')
    a('ds_write_b64 v10, v[8:9]')
    a(f's_cmp_lg_u32 s{S_WAVE}, 0\ns_cbranch_scc1 L_b1')
    a('s_waitcnt vmcnt(0)')
    a(f'v_or3_b32 v12, v{EP}, v{EP+1}, v{EP+2}')
    get_epoch('L_ep', 12)
    a(f'v_mov_b32 v10, {MISC+32}\nds_write_b32 v10, v12')
    stamp(16)
    if ts: a(f'v_mov_b32 v15, s{S_TMP+1}\nv_accvgpr_write_b32 a{A_TS+19}, v15')
    a.label('L_b1')
    SCLV = V_P0; SHF = V_P0 + 8
    a('s_waitcnt lgkmcnt(0)')
    for c in range(8):
        g = GB + c//2; be = GB + 4 + c//2
        if c % 2 == 0:
            a(f's_lshl_b32 s{S_R1}, s{g}, 16\ns_lshl_b32 s{S_R2}, s{be}, 16')
        else:
            a(f's_and_b32 s{S_R1}, s{g}, 0xffff0000\ns_and_b32 s{S_R2}, s{be}, 0xffff0000')
        a(f'v_mov_b32 v{SCLV+c}, s{S_R1}\nv_mov_b32 v{SHF+c}, s{S_R2}')
    a('s_barrier')
    a(f'v_mov_b32 v12, {MISC}')
    a('ds_read_b128 v[4:7], v12\nds_read_b128 v[8:11], v12 offset:16\nds_read_b32 v13, v12 offset:32')
    a('s_waitcnt lgkmcnt(0)')
    a(f'v_readfirstlane_b32 s{S_E}, v13')
    a('v_pk_add_f32 v[4:5], v[4:5], v[6:7]\nv_pk_add_f32 v[8:9], v[8:9], v[10:11]\nv_pk_add_f32 v[4:5], v[4:5], v[8:9]')
    a('v_mov_b32 v6, v5\nv_mov_b32 v5, v13\nv_mov_b32 v7, v13')
    exchange('L_p1', 4,
             lambda: a(f's_lshl_b32 s{S_TMP+2}, s{S_IDX}, 4\ns_add_u32 s{S_TMP+2}, s{S_TMP+2}, {ST1L_OFF}'),
             lambda: a(f's_lshl_b32 s{S_TMP+3}, s{S_IDX}, 7\ns_add_u32 s{S_TMP+3}, s{S_TMP+3}, {ST1G_OFF}'),
             True, 1, 15,
             lambda: a(f's_lshl_b32 s{S_TMP}, s{S_XCD}, 8\ns_add_u32 s{S_TMP}, s{S_TMP}, {ST1L_OFF}'),
             lambda: a(f's_lshl_b32 s{S_TMP}, s{S_XCD}, 11\ns_add_u32 s{S_TMP}, s{S_TMP}, {ST1G_OFF}'),
             12, 8)
    stamp(1)
    if ts: a(f'v_mov_b32 v15, s{S_TMP+1}\nv_accvgpr_write_b32 a{A_TS+18}, v15')
    a.vq = []; a.lq = []
    mean_rstd(1.0/(4*131072), 8)
    for c in range(0, 8, 2):
        a(f'v_pk_mul_f32 v[{SCLV+c}:{SCLV+c+1}], v[{SCLV+c}:{SCLV+c+1}], v[10:11]')
        a(f'v_pk_fma_f32 v[{SHF+c}:{SHF+c+1}], v[{SCLV+c}:{SCLV+c+1}], v[8:9], v[{SHF+c}:{SHF+c+1}]')
    ZT = V_P0 + 16
    for q in range(4):
        Z = X0 + 8*q
        for c in range(0, 8, 2):
            a(f'v_pk_fma_f32 v[{Z+c}:{Z+c+1}], v[{Z+c}:{Z+c+1}], v[{SCLV+c}:{SCLV+c+1}], v[{SHF+c}:{SHF+c+1}]')
        silu_pk(a, Z, ZT, 8)
        for i in range(4):
            a(f'v_cvt_pk_bf16_f32 v{Z+i}, v{Z+2*i}, v{Z+2*i+1}')
        a.vmem(f'buffer_store_dwordx4 v[{Z}:{Z+3}], v{V_L16}, {WSR}, s{S_O1} offen offset:{1024*q} {SC}', tag='st')
    a('s_branch L_join')

    a.label('L_warm')
    wdone.clear(); m0cur[0] = None; a.vq = []; a.lq = []
    EW = V_WF
    EA = V_WF + 16
    ET = V_WF + 24
    a(f's_lshr_b32 s{S_TMP+8}, s{S_WITHIN}, 1\ns_and_b32 s{S_TMP+9}, s{S_TMP+8}, 3\ns_lshr_b32 s{S_TMP+10}, s{S_TMP+8}, 2')
    srd(a, R_A, S_WE, S_WE+1, 786432)
    a('v_lshrrev_b32 v6, 2, v0\nv_and_b32 v5, 3, v0')
    a('v_lshlrev_b32 v7, 10, v6\nv_lshl_add_u32 v7, v5, 4, v7')
    a(f's_mul_i32 s{S_TMP}, s{S_TMP+10}, {192*1024}\ns_lshl_b32 s{S_TMP+1}, s{S_G}, 8\ns_add_u32 s{S_TMP}, s{S_TMP}, s{S_TMP+1}')
    a(f's_lshl_b32 s{S_TMP+1}, s{S_TMP+9}, 6\ns_add_u32 s{S_TMP}, s{S_TMP}, s{S_TMP+1}')
    for i in range(3):
        if i: a(f's_add_u32 s{S_TMP}, s{S_TMP}, 65536')
        a(f'buffer_load_dwordx4 v[{EW+4*i}:{EW+4*i+3}], v7, s[{R_A}:{R_A+3}], s{S_TMP} offen')
    srd(a, R_A, S_T, S_T+1, 3072)
    a(f'v_lshlrev_b32 v7, 1, v6\ns_mul_i32 s{S_TMP}, s{S_BB}, 1536\ns_mul_i32 s{S_TMP+1}, s{S_TMP+10}, 384\ns_add_u32 s{S_TMP}, s{S_TMP}, s{S_TMP+1}')
    for i in range(3):
        a(f'buffer_load_ushort v{EW+12+i}, v7, s[{R_A}:{R_A+3}], s{S_TMP} offen offset:{128*i}')
    a(f'v_mov_b32 v{EW+15}, 0')
    if WDLY: a(f's_sleep {WDLY}')
    nbulk = 0
    DUM = V_H
    for bit, ptr in ((1, S_W1), (2, S_W2)):
        if WARM & bit:
            srd(a, R_A, ptr, ptr+1, 4718592)
            if DUP & bit:
                a(f's_lshl_b32 s{S_TMP}, s{S_G}, 6\ns_lshl_b32 s{S_TMP+1}, s{S_TMP+8}, 2\ns_add_u32 s{S_TMP}, s{S_TMP}, s{S_TMP+1}\ns_add_u32 s{S_TMP}, s{S_TMP}, s{S_WAVE}\ns_mul_i32 s{S_TMP}, s{S_TMP}, 18432')
                nl = 18
            else:
                a(f's_lshl_b32 s{S_TMP}, s{S_G}, 7\ns_lshl_b32 s{S_TMP+1}, s{S_TMP+8}, 2\ns_add_u32 s{S_TMP}, s{S_TMP}, s{S_TMP+1}\ns_add_u32 s{S_TMP}, s{S_TMP}, s{S_WAVE}')
                a(f's_lshl_b32 s{S_TMP+1}, s{S_BB}, 6\ns_add_u32 s{S_TMP}, s{S_TMP}, s{S_TMP+1}\ns_mul_i32 s{S_TMP}, s{S_TMP}, 9216')
                nl = 9
            for i in range(nl):
                if i % 4 == 0 and i: a(f's_add_u32 s{S_TMP}, s{S_TMP}, 4096')
                a(f'buffer_load_dwordx4 v[{DUM}:{DUM+3}], v{V_L16}, s[{R_A}:{R_A+3}], s{S_TMP} offen offset:{(i%4)*1024} {NT1 if bit == 1 else NT2}')
                nbulk += 1
    setup()
    a(f's_waitcnt vmcnt({nbulk})')
    stamp(0)
    for i in range(3):
        a(f'v_lshlrev_b32 v{EW+12+i}, 16, v{EW+12+i}')
    silu_pk(a, EW+12, ET, 4)
    for i in range(3):
        for d in range(4):
            op = 'v_mul_f32' if i == 0 else 'v_fmac_f32'
            a(f'v_lshlrev_b32 v4, 16, v{EW+4*i+d}\nv_and_b32 v5, 0xffff0000, v{EW+4*i+d}')
            a(f'{op} v{EA+2*d}, v4, v{EW+12+i}\n{op} v{EA+2*d+1}, v5, v{EW+12+i}')
    for mod in ('row_ror:4 row_mask:0xf', 'row_ror:8 row_mask:0xf'):
        a('s_nop 1')
        for e in range(8):
            a(f'v_add_f32_dpp v{EA+e}, v{EA+e}, v{EA+e} {mod} bank_mask:0xf')
    for sw in ('v_permlane16_swap_b32', 'v_permlane32_swap_b32'):
        for e in range(8):
            a(f'v_mov_b32 v{ET+e}, v{EA+e}')
        a('s_nop 1')
        for e in range(8):
            a(f'{sw} v{EA+e}, v{ET+e}')
        a('s_nop 1')
        for e in range(8):
            a(f'v_add_f32 v{EA+e}, v{EA+e}, v{ET+e}')
    a(f's_lshl_b32 s{S_TMP}, s{S_XCD}, 2\ns_add_u32 s{S_TMP}, s{S_TMP}, s{S_TMP+9}\ns_lshl_b32 s{S_TMP}, s{S_TMP}, 2\ns_add_u32 s{S_TMP}, s{S_TMP}, s{S_TMP+10}')
    a(f's_lshl_b32 s{S_TMP}, s{S_TMP}, 2\ns_add_u32 s{S_TMP}, s{S_TMP}, s{S_WAVE}\ns_lshl_b32 s{S_TMP}, s{S_TMP}, 7\ns_add_u32 s{S_TMP}, s{S_TMP}, {EMBP_OFF}')
    a('v_lshlrev_b32 v4, 5, v2')
    a(f'v_cmp_gt_u32 vcc, 4, v2\ns_and_saveexec_b64 s[{S_SAVE}:{S_SAVE+1}], vcc')
    a(f'buffer_store_dwordx4 v[{EA}:{EA+3}], v4, {WSR}, s{S_TMP} offen {SC}')
    a(f'buffer_store_dwordx4 v[{EA+4}:{EA+7}], v4, {WSR}, s{S_TMP} offen offset:16 {SC}')
    a(f's_mov_b64 exec, s[{S_SAVE}:{S_SAVE+1}]')
    a('v_mov_b32 v12, 0')
    get_epoch('L_ep2', 12)
    stamp(1)
    a.label('L_join')
    a.vq = ['st']; a.lq = []
    stamps[0] = 2
    m0cur[0] = None
    a('v_and_b32 v3, 15, v2\nv_lshrrev_b32 v4, 4, v2')
    w_dma_all(0)
    if PREF >= 2: w_dma_all(1)
    a.need(vtags=['st'])
    a('s_barrier')
    def flag_store(off):
        a(f's_cmp_lg_u32 s{S_WAVE}, 0\ns_cbranch_scc1 L_nf{off:x}')
        a(f's_lshl_b32 s{S_TMP}, s{S_LIN}, 7\ns_add_u32 s{S_TMP}, s{S_TMP}, {off}')
        a(f'v_mov_b32 v5, s{S_E}\nv_mov_b32 v6, 0')
        a(f'v_cmp_eq_u32 vcc, 0, v2\ns_and_saveexec_b64 s[{S_SAVE}:{S_SAVE+1}], vcc')
        a(f'buffer_store_dword v5, v6, {WSR}, s{S_TMP} offen {SC}')
        a(f's_mov_b64 exec, s[{S_SAVE}:{S_SAVE+1}]')
        a.label(f'L_nf{off:x}')
    def flag_poll(off, vaddr, name):
        a(f's_mov_b32 s{S_TMP+1}, 0\ns_mov_b32 s{S_TMP}, {off}')
        a.label(name)
        a(f'buffer_load_dword v5, v{vaddr}, {WSR}, s{S_TMP} offen {SC}')
        a('s_waitcnt vmcnt(0)')
        a(f'v_cmp_eq_u32 vcc, s{S_E}, v5')
        a(f's_add_u32 s{S_TMP+1}, s{S_TMP+1}, 1')
        a(f's_cmp_eq_u64 vcc, exec\ns_cbranch_scc1 {name}ok')
        a(f's_cmp_lt_u32 s{S_TMP+1}, 0x40000\ns_cbranch_scc1 {name}')
        a.label(name + 'ok')
        a.vq = []
    flag_store(F0_OFF)
    stamp()

    if PREF < 2: w_dma_all(1)
    w_rawperm(0)
    w_dma_all(2)
    if DLY0: a(f's_sleep {DLY0}')
    flag_poll(F0_OFF, V_PF0, 'L_p2')
    stamp()

    H = V_H; PL = V_H + 16
    def conv(ci):
        which = ci + 1
        PACE = float(E('PACE%d' % which, '5.0'))
        ex = []
        for u in range(3):
            dma_a_pre(ci, u, 0)
            for kq in range(4): dma_a(ci, u, kq)
        if ci == 0: w_rawperm(1)
        for r in range(3):
            for half in range(2):
                for dx in range(3):
                    rd_af(ci, 0, r, half, dx)
        items = []
        def put(gs, fn): items.append((gs, len(items), fn))
        row_slot = {}
        for s_ in range(4):
            for r in range(6):
                if r < 3:
                    if s_ == 0: row_slot[(s_, r)] = None; continue
                    base = 72*(2*s_-1) + 18*(r+1)
                else:
                    base = 72*(2*s_) + 18*(r-3) + (4 if r > 3 else 0)
                row_slot[(s_, r)] = base
                i = 0
                for half in range(2):
                    for dx in range(3):
                        put(base + 1 + (3*i)//2, (lambda ss=s_, r=r, half=half, dx=dx: rd_af(ci, ss, r, half, dx))); i += 1
        RAWS = 52
        raw_slot = {}
        for k_ in range(8):
            kk_ = ci*8 + k_
            p_ = kk_ + 1
            if p_ < 16 and p_ not in permdone and k_ >= 1:
                for i in range(36):
                    put(72*k_ + 1 + (i*4)//3, (lambda x=p_, i=i: perm(x, i)))
            r_ = kk_ + 2
            if r_ < 16 and r_ not in rawdone:
                rs = 72*k_ + (RAWS if k_ >= 1 else 30)
                raw_slot[r_] = rs
                for j in range(9):
                    put(rs + 2*j, (lambda x=r_, j=j: rd_raw(x, j)))
        ops = []
        for kk_ in range(ci*8, 16):
            if kk_ in wdone: continue
            if (kk_-2) in rawdone: ea = 0
            elif (kk_-2) in raw_slot: ea = raw_slot[kk_-2] + 22
            else: continue
            if ea > 560: continue
            dl = raw_slot.get(kk_, 72*8 + 40*(kk_ - ci*8))
            for n in wsegs(kk_):
                ops.append((dl, ea, (lambda x=kk_, n=n: dma_w_pre(x, n)), (lambda x=kk_, n=n: dma_w(x, n)), kk_))
        for u in range(3, 12):
            s_, j = divmod(u, 3)
            dl = row_slot[(s_, 2*j)] or 0
            ea = 0
            if u >= NA:
                ps, pj = divmod(u - NA, 3)
                ea = (row_slot[(ps, 2*pj+1)] or 0) + 14
            for kq in range(4):
                def pre(u=u, kq=kq):
                    if u >= NA:
                        ps, pj = divmod(u - NA, 3)
                        assert (ci, ps, 2*pj+1, 1, 2) in issued
                        a.need(ltags=[('F', ps, 2*pj+1, 1, 2)])
                    dma_a_pre(ci, u, kq)
                ops.append((dl, ea, pre, (lambda u=u, kq=kq: dma_a(ci, u, kq)), None))
        ops.sort(key=lambda o: o[0])
        cur = 4.0
        rem = list(ops)
        placed = []
        while rem:
            cand = [o for o in rem if o[1] <= cur]
            if not cand:
                cur = float(min(o[1] for o in rem)); continue
            o = cand[0]; rem.remove(o)
            placed.append((int(cur), o)); cur += PACE
        bad = set(o[4] for sl, o in placed if sl > 572)
        assert None not in bad
        for sl, o in placed:
            if o[4] in bad: continue
            if o[0] < 576 and sl > o[0] - 30: sys.stderr.write(f'warn conv{which}: op at {sl} deadline {o[0]}\n')
            put(sl-1, o[2]); put(sl, o[3])
        base = 72
        SCv = V_P0 + 4; SHv = V_P0 + 12
        if which == 1:
            ef = []
            put(72 + 2, lambda: a(f's_mov_b32 s{S_TMP+1}, {F0_OFF}'))
            put(72 + 4, lambda: ef.append(a.vmem(f'buffer_load_dword v{V_EX+16}, v{V_PF2}, {WSR}, s{S_TMP+1} offen {SC}')))
            def chk():
                a.need(vtags=ef)
                a(f'v_cmp_eq_u32 vcc, s{S_E}, v{V_EX+16}\ns_nop 0\ns_cmp_eq_u64 vcc, exec\ns_cbranch_scc0 L_embslow')
                a.label('L_embok')
            put(144 + 20, chk)
            for i, sl in enumerate([int(x) for x in TRK.split(',')] if TRK else []):
                h_, p_ = divmod(i, 2)
                def t0(i=i):
                    if i == 0:
                        srd(a, R_B, S_W2, S_W2+1, 4718592)
                def t1(i=i):
                    if i == 0:
                        a(f's_lshl_b32 s{S_TMP+10}, s{S_BB}, 5\ns_add_u32 s{S_TMP+10}, s{S_TMP+10}, s{S_WITHIN}\ns_lshl_b32 s{S_TMP+10}, s{S_TMP+10}, 2\ns_add_u32 s{S_TMP+10}, s{S_TMP+10}, s{S_WAVE}')
                        a(f's_lshl_b32 s{S_TMP+11}, s{S_G}, 8\ns_add_u32 s{S_TMP+10}, s{S_TMP+10}, s{S_TMP+11}\ns_mul_i32 s{S_TMP+10}, s{S_TMP+10}, 4608')
                def t2(h_=h_, p_=p_):
                    a.vmem(f'buffer_load_dword v{V_P0}, v{V_PFX}, s[{R_B}:{R_B+3}], s{S_TMP+10} offen offset:{p_*2304 + h_*1152}')
                put(sl-4, t0); put(sl-2, t1); put(sl, t2)
            seq = [lambda: a(f's_lshl_b32 s{S_TMP}, s{S_XCD}, 2\ns_add_u32 s{S_TMP}, s{S_TMP}, s{S_OCT}'),
                   lambda: a(f's_lshl_b32 s{S_TMP}, s{S_TMP}, 11\ns_add_u32 s{S_TMP}, s{S_TMP}, {EMBP_OFF}'),
                   lambda: a('v_lshlrev_b32 v5, 7, v3\nv_lshl_add_u32 v5, v4, 4, v5')]
            for o2 in range(2):
                seq.append(lambda o2=o2: ex.append(a.vmem(f'buffer_load_dwordx4 v[{V_EX+4*o2}:{V_EX+4*o2+3}], v5, {WSR}, s{S_TMP} offen offset:{64*o2} {SC}')))
            seq += [lambda: a(f's_mov_b32 s{R_A}, s{S_G2}\ns_and_b32 s{R_A+1}, s{S_G2+1}, 0xffff'), lambda: a(f's_movk_i32 s{R_A+2}, 1024\ns_mov_b32 s{R_A+3}, 0x20000'),
                    lambda: a(f'v_lshlrev_b32 v5, 3, v4\ns_lshl_b32 s{S_TMP}, s{S_OC0}, 1')]
            for o2 in range(2):
                seq.append(lambda o2=o2: ex.append(a.vmem(f'buffer_load_dwordx2 v[{V_EX+8+2*o2}:{V_EX+9+2*o2}], v5, s[{R_A}:{R_A+3}], s{S_TMP} offen offset:{o2*32}')))
            seq += [lambda: a(f's_mov_b32 s{R_A}, s{S_B2}\ns_and_b32 s{R_A+1}, s{S_B2+1}, 0xffff')]
            for o2 in range(2):
                seq.append(lambda o2=o2: ex.append(a.vmem(f'buffer_load_dwordx2 v[{V_EX+12+2*o2}:{V_EX+13+2*o2}], v5, s[{R_A}:{R_A+3}], s{S_TMP} offen offset:{o2*32}')))
            seq += [lambda: a('v_lshrrev_b32 v5, 1, v4\nv_lshlrev_b32 v5, 14, v5'), lambda: a('v_lshl_add_u32 v5, v3, 4, v5\nv_and_b32 v6, 1, v4'),
                    lambda: a(f'v_lshl_add_u32 v{V_EX+16}, v6, 8, v5\ns_lshl_b32 s{S_TMP}, s{S_BB}, 20'),
                    lambda: a(f's_lshl_b32 s{S_TMP+1}, s{S_OC0}, 11\ns_add_u32 s{S_TMP}, s{S_TMP}, s{S_TMP+1}'),
                    lambda: a(f's_add_u32 s{S_TMP+1}, s{S_Y0}, s{S_WAVE}\ns_lshl_b32 s{S_TMP+1}, s{S_TMP+1}, 9'),
                    lambda: a(f's_add_u32 s{S_O1}, s{S_TMP}, s{S_TMP+1}\ns_add_u32 s{S_O1}, s{S_O1}, {A2_OFF}'),
                    lambda: a(f's_add_u32 s{S_O2}, s{S_O1}, 32768')]
            for i, fn in enumerate(seq): put(144 + 24 + 3*i, fn)
            seq = [lambda: a.need(vtags=ex)]
            for mod in ('quad_perm:[1,0,3,2]', 'quad_perm:[2,3,0,1]', 'row_half_mirror', 'row_mirror'):
                for i in range(8):
                    seq.append(lambda mod=mod, i=i: a(f'v_add_f32_dpp v{V_EX+i}, v{V_EX+i}, v{V_EX+i} {mod} row_mask:0xf bank_mask:0xf'))
            for o2 in range(2):
                for i in range(4):
                    g = V_EX+8+2*o2+i//2; be = V_EX+12+2*o2+i//2; e = o2*4+i
                    if i % 2 == 0:
                        seq.append(lambda g=g, e=e: a(f'v_lshlrev_b32 v{SCv+e}, 16, v{g}')); seq.append(lambda be=be, e=e: a(f'v_lshlrev_b32 v{SHv+e}, 16, v{be}'))
                    else:
                        seq.append(lambda g=g, e=e: a(f'v_and_b32 v{SCv+e}, 0xffff0000, v{g}')); seq.append(lambda be=be, e=e: a(f'v_and_b32 v{SHv+e}, 0xffff0000, v{be}'))
            for i, fn in enumerate(seq): put(72*4 + 10 + 2*i, fn)
        else:
            seq = [lambda: a(f's_mov_b32 s{R_A}, s{S_OUT}\ns_and_b32 s{R_A+1}, s{S_OUT+1}, 0xffff'), lambda: a(f's_mov_b32 s{R_A+2}, 2097152\ns_mov_b32 s{R_A+3}, 0x20000'),
                   lambda: a(f'v_lshlrev_b32 v{V_EX+16}, 11, v3\nv_lshl_add_u32 v{V_EX+16}, v4, 3, v{V_EX+16}'),
                   lambda: a(f's_lshl_b32 s{S_TMP}, s{S_BB}, 20\ns_lshl_b32 s{S_TMP+1}, s{S_OC0}, 11'),
                   lambda: a(f's_add_u32 s{S_TMP}, s{S_TMP}, s{S_TMP+1}\ns_add_u32 s{S_TMP+1}, s{S_Y0}, s{S_WAVE}'),
                   lambda: a(f's_lshl_b32 s{S_TMP+1}, s{S_TMP+1}, 6\ns_add_u32 s{S_O1}, s{S_TMP}, s{S_TMP+1}'),
                   lambda: a(f's_add_u32 s{S_O2}, s{S_O1}, 32768')]
            for o2 in range(2):
                for half in range(2):
                    r = V_EX + (o2*2+half)*2
                    seq.append(lambda r=r, o2=o2, half=half: ex.append(a.vmem(f'buffer_load_dwordx2 v[{r}:{r+1}], v{V_EX+16}, s[{R_X}:{R_X+3}], s{S_O1 if o2 == 0 else S_O2} offen offset:{half*32}')))
            for i, fn in enumerate(seq): put(6 + 3*i, fn)
            seq = [lambda: a.need(vtags=ex)]
            for q in range(8):
                seq.append(lambda q=q: a(f'v_lshlrev_b32 v{V_P0+2*q}, 16, v{V_EX+q}')); seq.append(lambda q=q: a(f'v_and_b32 v{V_P0+2*q+1}, 0xffff0000, v{V_EX+q}'))
            for i, fn in enumerate(seq): put(72*3 + 3*i, fn)
        def poff(o2, ro, half): return (8192 if o2 == 0 else 0) + (ro*2+half)*1024
        def pw(o2, ro, half):
            c = acc(o2, ro, half)
            a.lds(f'ds_write_b128 v{V_PW}, a[{c}:{c+3}] offset:{poff(o2, ro, half)}', tag=('PW', o2))
        def prd(o2, v, half, dst):
            b_ = V_T if v < 2 else V_T+1
            a.lds(f'ds_read_b128 v[{dst}:{dst+3}], v{b_} offset:{(v%2)*WAVE_LDS + poff(o2, 0, half)}', tag=('P', o2, v, half))
        def red_reads(o2):
            outs = []
            for half in range(2):
                for v in range(4):
                    dst = (H + (o2*2+half)*4) if v == 0 else (PL + (half*3 + v-1)*4)
                    outs.append(lambda v=v, half=half, dst=dst: prd(o2, v, half, dst))
            return outs
        SQ = V_T + 8
        def red_adds(o2, pk):
            outs = []
            for half in range(2):
                h = H + (o2*2+half)*4
                extra = (V_EX + 4*o2) if which == 1 else (V_P0 + (o2*2+half)*4)
                for v in range(1, 5):
                    for i in range(0, 4, 2 if pk else 1):
                        def f(half=half, v=v, i=i, h=h, extra=extra):
                            a.need(ltags=[('P', o2, 3, half)])
                            src = (PL + (half*3+v-1)*4 + i) if v < 4 else extra + i
                            if pk: a(f'v_pk_add_f32 v[{h+i}:{h+i+1}], v[{h+i}:{h+i+1}], v[{src}:{src+1}]')
                            else: a(f'v_add_f32 v{h+i}, v{h+i}, v{src}')
                        outs.append(f)
                if which == 1:
                    if pk:
                        for i in range(0, 4, 2):
                            outs.append(lambda h=h, i=i: a(f'v_pk_fma_f32 v[{SQ+2}:{SQ+3}], v[{h+i}:{h+i+1}], v[{h+i}:{h+i+1}], v[{SQ+2}:{SQ+3}]'))
                            outs.append(lambda h=h, i=i: a(f'v_pk_add_f32 v[{SQ}:{SQ+1}], v[{SQ}:{SQ+1}], v[{h+i}:{h+i+1}]'))
                    else:
                        for i in range(4):
                            outs.append(lambda h=h, i=i: a(f'v_fmac_f32 v{SQ+2+i%2}, v{h+i}, v{h+i}'))
                            outs.append(lambda h=h, i=i: a(f'v_add_f32 v{SQ+i%2}, v{SQ+i%2}, v{h+i}'))
                else:
                    o = V_EX + (o2*2+half)*2
                    outs.append(lambda h=h, o=o: a(f'v_cvt_pk_bf16_f32 v{o}, v{h}, v{h+1}\nv_cvt_pk_bf16_f32 v{o+1}, v{h+2}, v{h+3}'))
                    outs.append(lambda o=o, half=half: a.vmem(f'buffer_store_dwordx2 v[{o}:{o+1}], v{V_EX+16}, s[{R_A}:{R_A+3}], s{S_O1 if o2 == 0 else S_O2} offen offset:{half*32} {OUTF}'))
            return outs
        b6 = 72*6; b7 = 72*7
        put(b6, lambda: a(f's_lshl_b32 s{S_TMP}, s{S_WAVE}, 11\ns_add_u32 s{S_TMP}, s{S_TMP}, {A_BASE}'))
        put(b6 + 2, lambda: a(f'v_add_u32 v{V_T}, s{S_TMP}, v{V_L16}\nv_add_u32 v{V_T+1}, {2*WAVE_LDS}, v{V_T}'))
        if which == 1:
            put(b6 + 4, lambda: a(f'v_mov_b32 v{SQ}, 0\nv_mov_b32 v{SQ+1}, 0'))
            put(b6 + 6, lambda: a(f'v_mov_b32 v{SQ+2}, 0\nv_mov_b32 v{SQ+3}, 0'))
        for o2 in range(2):
            for ro in range(4):
                for half in range(2):
                    sl = 72*(6+o2) + 18*ro + 9*half + 8 + 9
                    if sl <= 575 and not (o2 == 1 and ro == 3):
                        put(sl, (lambda o2=o2, ro=ro, half=half: pw(o2, ro, half)))
        def fbar():
            a.need(ltags=[('PW', 0)]); a('s_barrier')
        put(b7 + 14, fbar)
        for i, fn in enumerate(red_reads(0)): put(b7 + 15 + i, fn)
        for i, fn in enumerate(red_adds(0, False)): put(b7 + 26 + (i*7)//8, fn)
        items.sort(key=lambda x: (x[0], x[1]))
        qi = 0
        gs = 0
        for k in range(8):
            if k in (0, 1): stamp()
            if E('PSTAMP') and ci == int(E('PSTAMP'))-1: stamp(232 - A_TS + k)
            s, ob = divmod(k, 2)
            kk = ci*8 + k
            assert kk in permdone
            for ro in range(4):
                for half in range(2):
                    for dy in range(3):
                        for dx in range(3):
                            if dx == 0:
                                for d2 in range(3):
                                    assert (ci, s, ro+dy, half, d2) in issued, (ci, s, ro, dy, half, gs)
                                a.need(ltags=[('F', s, ro+dy, half, d2) for d2 in range(3)])
                            c = acc(ob, ro, half); w_ = wf(kk, dy*3+dx); f_ = af(ro+dy, half, dx)
                            srcc = '0' if (s == 0 and dy == 0 and dx == 0) else f'a[{c}:{c+3}]'
                            if which == 1:
                                a(f'v_mfma_f32_16x16x32_bf16 a[{c}:{c+3}], v[{w_}:{w_+3}], a[{f_}:{f_+3}], {srcc}')
                            else:
                                a(f'v_mfma_f32_16x16x32_bf16 a[{c}:{c+3}], a[{f_}:{f_+3}], v[{w_}:{w_+3}], {srcc}')
                            n1 = len(a.L)
                            last = (gs == 575)
                            while qi < len(items) and items[qi][0] <= gs and (len(a.L) - n1 < CAP or last):
                                items[qi][2](); qi += 1
                            gs += 1
        assert qi == len(items), (qi, len(items))
        if E('PSTAMP') and ci == int(E('PSTAMP'))-1: stamp(240 - A_TS)
        pw(1, 3, 0)
        a('s_nop 7')
        pw(1, 3, 1)
        a.need(ltags=[('PW', 1)]); a('s_barrier')
        for fn in red_reads(1): fn()
        for fn in red_adds(1, True): fn()
        stamp()
        if which == 1:
            G = V_T + 4
            a(f'v_add_f32 v{SQ}, v{SQ}, v{SQ+1}\nv_add_f32 v{SQ+1}, v{SQ+2}, v{SQ+3}\ns_nop 0')
            red2(a, SQ, SQ+1, S_R1, S_R2)
            a(f'v_mov_b32 v{G+1}, s{S_E}\nv_mov_b32 v{G+3}, s{S_E}\nv_mov_b32 v{G}, s{S_R1}\nv_mov_b32 v{G+2}, s{S_R2}')
            a(f's_lshl_b32 s{S_TMP+6}, s{S_LIN}, 2\ns_add_u32 s{S_TMP+6}, s{S_TMP+6}, s{S_WAVE}')
            def mid3():
                a.vq.append(('pub',))
                if 9 in rawdone and 9 not in permdone:
                    for i in range(36): perm(9, i)
            exchange('L_p3', G,
                     lambda: a(f's_lshl_b32 s{S_TMP+2}, s{S_TMP+6}, 4\ns_add_u32 s{S_TMP+2}, s{S_TMP+2}, {ST2L_OFF}'),
                     lambda: a(f's_lshl_b32 s{S_TMP+3}, s{S_TMP+6}, 7\ns_add_u32 s{S_TMP+3}, s{S_TMP+3}, {ST2G_OFF}'),
                     False, 2, 63,
                     lambda: a(f's_lshl_b32 s{S_TMP}, s{S_XCD}, 11\ns_add_u32 s{S_TMP}, s{S_TMP}, {ST2L_OFF}'),
                     lambda: a(f's_lshl_b32 s{S_TMP}, s{S_XCD}, 14\ns_add_u32 s{S_TMP}, s{S_TMP}, {ST2G_OFF}'),
                     V_T+8, PL, mid3)
            a.vq = []
            stamp()
            M = V_T + 8
            mean_rstd(1.0/131072, M)
            for e in range(0, 8, 2):
                a(f'v_pk_mul_f32 v[{SCv+e}:{SCv+e+1}], v[{SCv+e}:{SCv+e+1}], v[{M+2}:{M+3}]')
                a(f'v_pk_fma_f32 v[{SHv+e}:{SHv+e+1}], v[{SCv+e}:{SCv+e+1}], v[{M}:{M+1}], v[{SHv+e}:{SHv+e+1}]')
            for o2 in range(2):
                Z = H + o2*8
                for half in range(2):
                    for i in range(0, 4, 2):
                        r = Z + half*4 + i
                        a(f'v_pk_fma_f32 v[{r}:{r+1}], v[{r}:{r+1}], v[{SCv+o2*4+i}:{SCv+o2*4+i+1}], v[{SHv+o2*4+i}:{SHv+o2*4+i+1}]')
                silu_pk(a, Z, PL, 8)
                r = PL + 8 + o2*4
                for q in range(4):
                    a(f'v_cvt_pk_bf16_f32 v{r+q}, v{Z+2*q}, v{Z+2*q+1}')
                a('s_nop 1')
                a(f'v_permlane16_swap_b32 v{r}, v{r+2}\nv_permlane16_swap_b32 v{r+1}, v{r+3}')
                a(f'buffer_store_dwordx4 v[{r}:{r+3}], v{V_EX+16}, {WSR}, s{S_O1 if o2 == 0 else S_O2} offen {SC}')
            if BND and 10 in wdone and 10 not in rawdone:
                w_rawperm(10, False)
            a('s_waitcnt vmcnt(0)\ns_barrier')
            a.vq = []
            flag_store(F1_OFF)
            a.vq = [('flag',)]
            stamp()
            for kk_ in (10, 11, 12):
                if kk_ not in wdone and (kk_-2) in rawdone and (BND or kk_ < 12):
                    w_dma_all(kk_)
            if DLY1: a(f's_sleep {DLY1}')
            flag_poll(F1_OFF, V_PF1, 'L_p4')
            stamp()
    conv(0)
    conv(1)
    if ts:
        a('s_waitcnt vmcnt(0)')
        stamp()
        a('s_memrealtime s[98:99]\ns_waitcnt lgkmcnt(0)')
        for i in range(16):
            a(f'v_accvgpr_read_b32 v{72+i}, a{A_TS+i}')
        for i in range(4):
            a(f'v_accvgpr_read_b32 v{92+i}, a{A_TS+16+i}')
        a('v_accvgpr_read_b32 v88, a229\nv_mov_b32 v89, s100\nv_mov_b32 v90, s98\nv_mov_b32 v91, 0')
        a(f's_lshl_b32 s{S_TMP}, s2, 9\ns_lshl_b32 s{S_TMP+1}, s{S_WAVE}, 7\ns_add_u32 s{S_TMP}, s{S_TMP}, s{S_TMP+1}\nv_mov_b32 v8, s{S_TMP}')
        srd(a, R_B, S_WS, S_WS+1, 0x40000, TS_OFF)
        a(f'v_cmp_eq_u32 vcc, 0, v2\ns_and_saveexec_b64 s[{S_SAVE}:{S_SAVE+1}], vcc')
        for i in range(6):
            a(f'buffer_store_dwordx4 v[{72+4*i}:{75+4*i}], v8, s[{R_B}:{R_B+3}], 0 offen offset:{16*i}')
        if E('PSTAMP'):
            for i in range(12):
                a(f'v_accvgpr_read_b32 v{100+i}, a{232+i}')
            srd(a, R_B, S_WS, S_WS+1, 0x40000, TS_OFF + 0x100000)
            for i in range(3):
                a(f'buffer_store_dwordx4 v[{100+4*i}:{103+4*i}], v8, s[{R_B}:{R_B+3}], 0 offen offset:{16*i}')
    a.label('L_end')
    a('s_endpgm')
    a.label('L_embslow')
    a(f's_mov_b32 s{S_TMP+2}, 0')
    a.label('L_embslow2')
    a(f'buffer_load_dword v{V_EX+16}, v{V_PF2}, {WSR}, s{S_TMP+1} offen {SC}')
    a('s_waitcnt vmcnt(0)')
    a(f'v_cmp_eq_u32 vcc, s{S_E}, v{V_EX+16}')
    a(f's_add_u32 s{S_TMP+2}, s{S_TMP+2}, 1')
    a('s_cmp_eq_u64 vcc, exec\ns_cbranch_scc1 L_embok')
    a(f's_cmp_lt_u32 s{S_TMP+2}, 0x40000\ns_cbranch_scc1 L_embslow2')
    a('s_branch L_embok')
    name = 'standalone__adm_resblock__diffusion_kernel'
    return khead(name) + a.text(), kd(name, 256+(248 if ts else 208), 256)

def main():
    ts = '--ts' in sys.argv
    hdr = open('standalone__adm_resblock__diffusion.s.ref').read().split('\n')
    top = [l for l in hdr if l.startswith(';') and '@launch' not in l]
    top += ['; @launch grid=(256,1,1) block=(256,1,1) lds=163840']
    k = gen(ts)
    out = '\n'.join(top) + '\n.amdgcn_target "amdgcn-amd-amdhsa--gfx950"\n.text\n'
    out += k[0] + '\n.section .rodata,"a"\n' + k[1] + '\n'
    print(out)

main()
```

```python
import sys, struct, os
from genlib import *

E = os.environ.get
WARM = int(E('WARM', '3'))
TRK = E('TRK', '')
TOUCH = int(E('TOUCH', '1'))
PREF = int(E('PREF', '1'))
OUTF = E('OUTF', '')
DUP = int(E('DUP', '1'))
NT1 = E('NT1', ''); NT2 = E('NT2', ''); NTX = E('NTX', '')
WDLY = int(E('WDLY', '0'))
NOVM = E('NOVM', '')
EPS = E('EPS', '20,8')
DLY0 = int(E('DLY0', '0')); DLY1 = int(E('DLY1', '0'))
CAP = int(E('CAP', '2'))
BND = int(E('BND', '1'))
NLOC = int(E('NLOC', '48')); KGLOB = int(E('KGLOB', '6'))
SC = 'sc1'

A1_OFF = 0x100000
A2_OFF = 0x400000
EMBP_OFF = 0x700000
ST1L_OFF = 0x720000
ST2L_OFF = 0x724000
ST1G_OFF = 0x730000
F0_OFF = 0x738000
F1_OFF = 0x740000
ST2G_OFF = 0x760000
WS_SIZE = 0x800000
TS_OFF = 0x8000000

WAVE_LDS = 40960
WSLOT = 10240
NA = 5
A_BASE = 2*WSLOT
MISC = A_BASE

V_AD = 16; V_AR = 28; V_L16 = 31; V_EX = 32
V_PF0 = 49; V_PF1 = 50; V_PW = 51
V_T = 52
V_PF2 = 54; V_PFX = 55
V_WD = 64
V_WR = 74
V_WRX = 78
V_RAW = 82
V_WF = 118
V_P0 = 190
V_H = 216
A_ACC = 0; A_AF = 64; A_TS = 208
def acc(ob, ro, half): return A_ACC + ((ob*4 + ro)*2 + half)*4
def af(r, half, dx): return A_AF + ((r*2 + half)*3 + dx)*4
def wf(kk, tap): return V_WF + (kk % 2)*36 + tap*4

S_X, S_T, S_G1, S_B1, S_W1, S_WE, S_G2, S_B2, S_W2, S_OUT, S_DBG, S_WS = 4, 6, 8, 10, 12, 14, 16, 18, 20, 22, 24, 26
R_WS = 28; R_X = 32; R_A = 36; R_B = 40
S_WAVE = 44; S_XCD = 45; S_WITHIN = 46; S_BB = 47; S_G = 48; S_OCT = 49; S_PXT = 50; S_OC0 = 51; S_Y0 = 52
S_LDS = 53; S_E = 54; S_FFFF = 55
S_WOFF = 56
S_AOFF = 64
S_TMP = 68
S_C = 80
S_LIN = 84; S_IDX = 85; S_R1 = 86; S_R2 = 87
S_O1 = 88; S_O2 = 89; S_SAVE = 90
S_TS = 92
R_WQ = 96

def red2(a, v1, v2, s1, s2):
    for mod in ('quad_perm:[1,0,3,2] row_mask:0xf', 'quad_perm:[2,3,0,1] row_mask:0xf', 'row_half_mirror row_mask:0xf',
                'row_mirror row_mask:0xf', 'row_bcast:15 row_mask:0xa', 'row_bcast:31 row_mask:0xc'):
        a('s_nop 0')
        a(f'v_add_f32_dpp v{v1}, v{v1}, v{v1} {mod} bank_mask:0xf')
        a(f'v_add_f32_dpp v{v2}, v{v2}, v{v2} {mod} bank_mask:0xf')
    a(f'v_readlane_b32 s{s1}, v{v1}, 63\ns_nop 0\nv_readlane_b32 s{s2}, v{v2}, 63')

def silu_pk(a, z, t, n):
    for i in range(0, n, 2):
        a(f'v_pk_mul_f32 v[{t+i}:{t+i+1}], v[{z+i}:{z+i+1}], s[{S_C}:{S_C+1}]')
    for i in range(n):
        a(f'v_exp_f32 v{t+i}, v{t+i}')
    if n <= 4: a('s_nop 0')
    for i in range(0, n, 2):
        a(f'v_pk_add_f32 v[{t+i}:{t+i+1}], v[{t+i}:{t+i+1}], s[{S_C+2}:{S_C+3}]')
    for i in range(n):
        a(f'v_rcp_f32 v{t+i}, v{t+i}')
    if n <= 4: a('s_nop 0')
    for i in range(0, n, 2):
        a(f'v_pk_mul_f32 v[{z+i}:{z+i+1}], v[{z+i}:{z+i+1}], v[{t+i}:{t+i+1}]')

def gen(ts=False):
    a = Asm()
    stamps = [0]
    def stamp(idx=None):
        if ts:
            a(f's_memtime s[{S_TS}:{S_TS+1}]'); a.wait_all(v=False)
            i = stamps[0] if idx is None else idx
            a(f'v_mov_b32 v15, s{S_TS}\nv_accvgpr_write_b32 a{A_TS+i}, v15')
            if idx is None: stamps[0] += 1
    WSR = f's[{R_WS}:{R_WS+3}]'
    a('s_cmp_ge_u32 s2, 256\ns_cbranch_scc1 L_end')
    a('s_load_dwordx16 s[4:19], s[0:1], 0')
    a('s_load_dwordx8 s[20:27], s[0:1], 64')
    a(f's_memrealtime s[{S_TS+2}:{S_TS+3}]')
    if ts:
        a('s_memtime s[90:91]\ns_memrealtime s[100:101]\ns_waitcnt lgkmcnt(0)\nv_mov_b32 v15, s90\nv_accvgpr_write_b32 a229, v15')
    a('v_lshrrev_b32 v1, 6, v0\nv_and_b32 v2, 63, v0')
    a(f'v_readfirstlane_b32 s{S_WAVE}, v1')
    a(f's_and_b32 s{S_XCD}, s2, 7\ns_lshr_b32 s{S_WITHIN}, s2, 3')
    a(f's_lshr_b32 s{S_BB}, s{S_XCD}, 2\ns_and_b32 s{S_G}, s{S_XCD}, 3')
    a(f's_and_b32 s{S_OCT}, s{S_WITHIN}, 3\ns_lshr_b32 s{S_PXT}, s{S_WITHIN}, 2')
    a(f's_lshl_b32 s{S_OC0}, s{S_G}, 7\ns_lshl_b32 s{S_TMP}, s{S_OCT}, 5\ns_add_u32 s{S_OC0}, s{S_OC0}, s{S_TMP}')
    a(f's_lshl_b32 s{S_Y0}, s{S_PXT}, 2')
    a(f's_mul_i32 s{S_LDS}, s{S_WAVE}, {WAVE_LDS}')
    a(f's_lshl_b32 s{S_LIN}, s{S_XCD}, 5\ns_add_u32 s{S_LIN}, s{S_LIN}, s{S_WITHIN}')
    a(f's_lshr_b32 s{S_IDX}, s{S_LIN}, 1')
    a('v_lshlrev_b32 v3, 1, v2\nv_lshl_add_u32 v3, v1, 9, v3')
    a(f'v_lshlrev_b32 v{V_L16}, 4, v2')
    a(f's_lshl_b32 s{S_TMP+4}, s{S_IDX}, 14')
    a(f's_lshl_b32 s{S_TMP+6}, s{S_WAVE}, 12\ns_add_u32 s{S_O1}, s{S_TMP+4}, s{S_TMP+6}\ns_add_u32 s{S_O1}, s{S_O1}, {A1_OFF}')
    a(f's_and_b32 s{S_TMP+5}, s{S_IDX}, 63\ns_lshl_b32 s{S_TMP+5}, s{S_TMP+5}, 4')
    a(f's_or_b32 s{S_TMP+7}, s2, s{S_WAVE}')
    a(f's_mov_b32 s{S_C}, 0x{NLOG2E:x}\ns_mov_b32 s{S_C+1}, 0x{NLOG2E:x}\ns_mov_b32 s{S_C+2}, 1.0\ns_mov_b32 s{S_C+3}, 1.0')
    a('s_waitcnt lgkmcnt(0)')
    srd(a, R_B, S_DBG, S_DBG+1, 256)
    a(f's_cmp_lg_u32 s{S_TMP+7}, 0\ns_cbranch_scc1 L_noep')
    a(f's_or_b32 s{S_TS+2}, s{S_TS+2}, 1\nv_mov_b32 v5, s{S_TS+2}\nv_mov_b32 v4, 0')
    a(f'buffer_store_dword v5, v4, s[{R_B}:{R_B+3}], 0 offen {SC}')
    a.label('L_noep')
    srd(a, R_X, S_X, S_X+1, 2097152)
    srd(a, R_WS, S_WS, S_WS+1, WS_SIZE)
    a(f's_bitcmp1_b32 s{S_WITHIN}, 0\ns_cbranch_scc1 L_warm')

    def get_epoch(nm, v0_):
        a(f'v_mov_b32 v13, 0\ns_mov_b32 s{S_TMP+1}, 0')
        a.label(nm)
        a(f'v_readfirstlane_b32 s{S_E}, v{v0_}')
        a(f's_add_u32 s{S_TMP+1}, s{S_TMP+1}, 1')
        a(f's_cmp_lg_u32 s{S_E}, 0\ns_cbranch_scc1 {nm}ok')
        a(f's_cmp_gt_u32 s{S_TMP+1}, 0x40000\ns_cbranch_scc1 {nm}ok')
        a(f'buffer_load_dword v{v0_}, v13, s[{R_B}:{R_B+3}], 0 offen {SC}')
        a(f's_waitcnt vmcnt(0)\ns_branch {nm}')
        a.label(nm + 'ok')

    def exchange(nm, vS, loc_own, glob_own, publisher_cond, nld, lanemask, loc_base, glob_base, vA, vL, mid=None):
        loc_own(); glob_own()
        def pub(sreg, flag):
            if publisher_cond: a(f's_cmp_lg_u32 s{S_WAVE}, 0\ns_cbranch_scc1 {nm}_np{len(a.L)}'); lab = a.L[-1].split()[-1]
            a(f'v_mov_b32 v{vA+1}, 0\nv_cmp_eq_u32 vcc, 0, v2\ns_and_saveexec_b64 s[{S_SAVE}:{S_SAVE+1}], vcc')
            a(f'buffer_store_dwordx4 v[{vS}:{vS+3}], v{vA+1}, {WSR}, s{sreg} offen {flag}')
            a(f's_mov_b64 exec, s[{S_SAVE}:{S_SAVE+1}]')
            if publisher_cond: a.label(lab)
        pub(S_TMP+2, '')
        a(f'v_and_b32 v{vA}, {lanemask}, v2\nv_lshlrev_b32 v{vA}, 4, v{vA}')
        loc_base()
        a(f's_mov_b32 s{S_TMP+1}, 0\ns_movk_i32 s{S_TMP+4}, 1024')
        if mid: mid()
        a.label(nm)
        for i in range(nld):
            if i == 0:
                a(f'buffer_load_dwordx4 v[{vL}:{vL+3}], v{vA}, {WSR}, s{S_TMP} offen {SC}')
            else:
                a(f's_add_u32 s{S_TMP+5}, s{S_TMP}, s{S_TMP+4}')
                a(f'buffer_load_dwordx4 v[{vL+4}:{vL+7}], v{vA}, {WSR}, s{S_TMP+5} offen {SC}')
        a('s_waitcnt vmcnt(0)')
        a(f'v_xor_b32 v{vA+1}, s{S_E}, v{vL+1}\nv_xor_b32 v{vA+2}, s{S_E}, v{vL+3}')
        if nld == 2:
            a(f'v_xor_b32 v{vA+3}, s{S_E}, v{vL+5}\nv_or3_b32 v{vA+1}, v{vA+1}, v{vA+2}, v{vA+3}\nv_xor_b32 v{vA+2}, s{S_E}, v{vL+7}')
        a(f'v_or_b32 v{vA+1}, v{vA+1}, v{vA+2}')
        a(f'v_cmp_eq_u32 vcc, 0, v{vA+1}')
        a(f's_add_u32 s{S_TMP+1}, s{S_TMP+1}, 1')
        a(f's_cmp_eq_u64 vcc, exec\ns_cbranch_scc1 {nm}_ok')
        a(f's_cmp_lg_u32 s{S_TMP+1}, {KGLOB}\ns_cbranch_scc1 {nm}_c1')
        pub(S_TMP+3, SC)
        a.label(f'{nm}_c1')
        a(f's_cmp_lg_u32 s{S_TMP+1}, {NLOC}\ns_cbranch_scc1 {nm}_c2')
        a(f'v_lshlrev_b32 v{vA}, 3, v{vA}\ns_movk_i32 s{S_TMP+4}, 8192')
        glob_base()
        a.label(f'{nm}_c2')
        a(f's_cmp_lt_u32 s{S_TMP+1}, 0x40000\ns_cbranch_scc1 {nm}')
        a.label(f'{nm}_ok')
        a(f's_cmp_gt_u32 s{S_TMP+1}, {KGLOB}\ns_cbranch_scc1 {nm}_c3')
        pub(S_TMP+3, SC)
        a.label(f'{nm}_c3')
        if nld == 2:
            a(f'v_add_f32 v{vL}, v{vL}, v{vL+4}\nv_add_f32 v{vL+2}, v{vL+2}, v{vL+6}\ns_nop 0')
        red2(a, vL, vL+2, S_R1, S_R2)

    def mean_rstd(inv, vm):
        ib = f2u(inv)
        a(f'v_mov_b32 v{vm}, 0x{ib:x}\ns_nop 0')
        a(f'v_mul_f32 v{vm+2}, s{S_R2}, v{vm}\nv_mul_f32 v{vm}, s{S_R1}, v{vm}')
        a(f'v_fma_f32 v{vm+2}, -v{vm}, v{vm}, v{vm+2}\nv_max_f32 v{vm+2}, 0, v{vm+2}\nv_add_f32 v{vm+2}, 0x3727c5ac, v{vm+2}')
        a(f'v_rsq_f32 v{vm+2}, v{vm+2}\nv_sub_f32 v{vm}, 0, v{vm}\nv_mov_b32 v{vm+1}, v{vm}\nv_mov_b32 v{vm+3}, v{vm+2}')

    m0cur = [None]
    def set_m0(v):
        if m0cur[0] != v:
            a(f's_add_u32 m0, s{S_LDS}, {v}'); m0cur[0] = v
    def fix_m0():
        if a.L[-1].startswith('s_add_u32 m0'): a('s_nop 0')
    def wsegs(kk):
        return list(range(10)) if ((kk % 8)//2) % 2 == 0 else list(range(1, 9))
    wdone = set(); rawdone = set(); permdone = set()
    def dma_w_pre(kk, n):
        if kk >= 2: assert (kk-2) in rawdone, kk
        if 'w' in NOVM: return
        if kk >= 2: a.need(ltags=[('R', kk-2, 8)])
        if kk == 8 and n == 0:
            srd(a, R_WQ, S_W2, S_W2+1, 4718592+4096, -4096)
        set_m0((kk % 2)*WSLOT + (n - n % 4)*1024)
    def dma_w(kk, n):
        if n == wsegs(kk)[-1]: wdone.add(kk)
        if 'w' in NOVM: return
        assert m0cur[0] == (kk % 2)*WSLOT + (n - n % 4)*1024
        fix_m0()
        a.vmem(f'buffer_load_dwordx4 v{V_WD+n}, s[{R_WQ}:{R_WQ+3}], s{S_WOFF + kk % 8} offen offset:{(n%4)*1024} lds', tag=('W', kk))
    atmp = [None]; adone = set()
    def dma_a_pre(conv, u, kq):
        if 'a' in NOVM: return
        s, j = divmod(u, 3)
        set_m0(A_BASE + (u % NA)*4096)
        key = (conv, s)
        if atmp[0] != key:
            a(f's_add_u32 s{S_TMP+9}, s{S_AOFF+s}, {A1_OFF if conv == 0 else A2_OFF}'); atmp[0] = key
    def dma_a(conv, u, kq):
        if kq == 3: adone.add((conv, u))
        if 'a' in NOVM: return
        s, j = divmod(u, 3)
        assert m0cur[0] == A_BASE + (u % NA)*4096
        fix_m0()
        a.vmem(f'buffer_load_dwordx4 v{V_AD+4*j+kq}, {WSR}, s{S_TMP+9} offen offset:{kq*1024} lds', tag=('A', conv, u))
    def rd_raw(kk, j):
        assert kk in wdone, kk
        if kk >= 1: assert (kk-1) in permdone, kk
        a.need(vtags=[('W', kk)])
        m = j % 4
        odd = ((kk % 8)//2) % 2 == 1
        reg = (V_WRX if (odd and j < 4) else V_WR) + m
        a.lds(f'ds_read_b128 v[{V_RAW+4*j}:{V_RAW+4*j+3}], v{reg} offset:{(kk % 2)*WSLOT + (j//4)*1024}', tag=('R', kk, j))
        if j == 8: rawdone.add(kk)
    def perm(kk, i):
        assert kk in rawdone, kk
        m, t = divmod(i, 9)
        lo = 9*m + t//2; hi = 9*m + (t+9)//2
        if t == 0:
            a.need(ltags=[('R', kk, (9*m+8)//4)])
        d = wf(kk, t) + m
        if t % 2 == 0:
            a(f'v_bfi_b32 v{d}, s{S_FFFF}, v{V_RAW+lo}, v{V_RAW+hi}')
        else:
            a(f'v_alignbit_b32 v{d}, v{V_RAW+hi}, v{V_RAW+lo}, 16')
        if i == 35: permdone.add(kk)
    issued = set()
    def rd_af(conv, s, r, half, dx):
        u = s*3 + r//2
        assert (conv, u) in adone, (conv, u)
        a.need(vtags=[('A', conv, u)])
        reg = V_AR
        if dx == 0 and half == 0: reg = V_AR+1
        if dx == 2 and half == 1: reg = V_AR+2
        off = (u % NA)*4096 + (r % 2)*512 + half*256 + (dx-1)*16
        if reg == V_AR+1: off += 16
        d = af(r, half, dx)
        a.lds(f'ds_read_b128 a[{d}:{d+3}], v{reg} offset:{off}', tag=('F', s, r, half, dx))
        issued.add((conv, s, r, half, dx))
    def w_dma_all(kk):
        for n in wsegs(kk):
            dma_w_pre(kk, n); dma_w(kk, n)
    def w_rawperm(kk, doperm=True):
        for j in range(9): rd_raw(kk, j)
        if doperm:
            for i in range(36): perm(kk, i)

    def setup():
        a('v_lshrrev_b32 v4, 2, v2\nv_and_b32 v5, 3, v2')
        a('v_bfe_u32 v6, v4, 3, 1\nv_lshlrev_b32 v6, 1, v6\nv_xor_b32 v5, v5, v6')
        a(f's_movk_i32 s{S_TMP}, 9216\nv_add_u32 v4, s{S_OC0}, v4\nv_mul_u32_u24 v4, s{S_TMP}, v4\nv_lshl_add_u32 v4, v5, 4, v4')
        for n in range(10):
            a(f'v_add_u32 v{V_WD+n}, {4096 + n*64 - (n%4)*1024}, v4')
        srd(a, R_WQ, S_W1, S_W1+1, 4718592+4096, -4096)
        a(f's_mul_i32 s{S_WOFF}, s{S_WAVE}, 2304')
        for k in range(1, 8):
            a(f's_add_u32 s{S_WOFF+k}, s{S_WOFF}, {(k//2)*576 + (k%2)*147456}')
        a(f's_lshl_b32 s{S_TMP}, s{S_BB}, 20')
        a('v_mov_b32 v5, 0x7ff00000')
        for j in range(3):
            a(f'v_lshrrev_b32 v3, 5, v2\nv_add_u32 v3, {2*j}, v3\nv_add_u32 v3, s{S_Y0}, v3\nv_subrev_u32 v3, 1, v3')
            a('v_and_b32 v4, 31, v2\nv_lshlrev_b32 v4, 4, v4\nv_lshl_add_u32 v4, v3, 9, v4')
            a(f'v_add_u32 v4, s{S_TMP}, v4')
            a('v_cmp_gt_u32 vcc, 32, v3\ns_nop 1')
            a(f'v_cndmask_b32 v{V_AD+4*j}, v5, v4, vcc')
            for kq in range(1, 4):
                a(f'v_add_u32 v{V_AD+4*j+kq}, {kq*15360}, v{V_AD+4*j}')
        a('v_and_b32 v3, 15, v2\nv_lshrrev_b32 v4, 4, v2')
        a(f's_add_u32 s{S_TMP}, s{S_LDS}, {A_BASE}')
        a(f'v_lshlrev_b32 v{V_AR}, 10, v4\nv_lshl_add_u32 v{V_AR}, v3, 4, v{V_AR}\nv_add_u32 v{V_AR}, s{S_TMP}, v{V_AR}')
        a(f'v_mov_b32 v5, 163840\nv_subrev_u32 v6, 16, v{V_AR}')
        a(f'v_cmp_eq_u32 vcc, 0, v3\ns_nop 1\nv_cndmask_b32 v{V_AR+1}, v6, v5, vcc')
        a(f'v_cmp_eq_u32 vcc, 15, v3\ns_nop 1\nv_cndmask_b32 v{V_AR+2}, v{V_AR}, v5, vcc')
        a(f'v_add_u32 v{V_PW}, s{S_TMP}, v{V_L16}')
        a('v_bfe_u32 v6, v3, 3, 1\nv_lshlrev_b32 v6, 1, v6\nv_mul_u32_u24 v5, 9, v4')
        a(f'v_lshlrev_b32 v7, 6, v3\nv_add_u32 v7, s{S_LDS}, v7')
        a('v_mov_b32 v10, 0\nv_mov_b32 v11, 9216\nv_cmp_eq_u32 vcc, 0, v4\ns_nop 1\nv_cndmask_b32 v10, v10, v11, vcc')
        for m in range(4):
            a(f'v_add_u32 v8, {m}, v5\nv_lshrrev_b32 v9, 2, v8\nv_and_b32 v8, 3, v8\nv_xor_b32 v8, v8, v6')
            a(f'v_lshl_add_u32 v{V_WR+m}, v9, 10, v7\nv_lshl_add_u32 v{V_WR+m}, v8, 4, v{V_WR+m}')
            a(f'v_add_u32 v{V_WRX+m}, v{V_WR+m}, v10')
        a(f's_mov_b32 s{S_FFFF}, 0xffff')
        a(f's_lshl_b32 s{S_AOFF}, s{S_WAVE}, 18')
        for s in range(1, 4):
            a(f's_add_u32 s{S_AOFF+s}, s{S_AOFF}, {s*65536}')
        a(f's_lshl_b32 s{S_TMP}, s{S_BB}, 2\ns_add_u32 s{S_TMP}, s{S_TMP}, s{S_WAVE}\ns_lshl_b32 s{S_TMP}, s{S_TMP}, 5')
        a(f'v_lshlrev_b32 v6, 1, v3\nv_add_u32 v{V_PF0}, s{S_TMP}, v6')
        a('v_and_b32 v5, 31, v2')
        a(f'v_lshrrev_b32 v6, 2, v5\nv_subrev_u32 v7, s{S_PXT}, v6\nv_add_u32 v7, 1, v7')
        a(f'v_mov_b32 v8, s{S_PXT}\nv_cmp_gt_u32 vcc, 3, v7\ns_nop 1\nv_cndmask_b32 v6, v8, v6, vcc')
        a(f'v_and_b32 v7, 3, v5\nv_lshl_add_u32 v6, v6, 2, v7\nv_add_u32 v6, s{S_TMP}, v6\nv_lshlrev_b32 v{V_PF1}, 7, v6')
        a(f's_lshl_b32 s{S_TMP+1}, s{S_XCD}, 5\ns_lshl_b32 s{S_TMP+2}, s{S_OCT}, 1\ns_add_u32 s{S_TMP+1}, s{S_TMP+1}, s{S_TMP+2}\ns_add_u32 s{S_TMP+1}, s{S_TMP+1}, 1')
        a(f'v_and_b32 v6, 3, v2\nv_lshlrev_b32 v6, 3, v6\nv_add_u32 v6, s{S_TMP+1}, v6\nv_lshlrev_b32 v{V_PF2}, 7, v6')
        a(f'v_lshlrev_b32 v6, 6, v2\nv_mov_b32 v7, 0x7ff00000\nv_cmp_gt_u32 vcc, 18, v2\ns_nop 1\nv_cndmask_b32 v{V_PFX}, v7, v6, vcc')
        a(f'v_lshlrev_b32 v{V_PF0}, 7, v{V_PF0}')
    X0 = V_H
    for c in range(8):
        if c % 2 == 0 and c:
            a(f's_add_u32 s{S_TMP+4}, s{S_TMP+4}, 4096')
        for q in range(4):
            a(f'buffer_load_ushort v{X0+8*q+c}, v3, s[{R_X}:{R_X+3}], s{S_TMP+4} offen offset:{(c%2)*2048+q*128} {NTX}')
    a(f's_add_u32 s{S_G1}, s{S_G1}, s{S_TMP+5}\ns_addc_u32 s{S_G1+1}, s{S_G1+1}, 0')
    a(f's_add_u32 s{S_B1}, s{S_B1}, s{S_TMP+5}\ns_addc_u32 s{S_B1+1}, s{S_B1+1}, 0')
    GB = 72
    a(f's_load_dwordx4 s[{GB}:{GB+3}], s[{S_G1}:{S_G1+1}], 0\ns_load_dwordx4 s[{GB+4}:{GB+7}], s[{S_B1}:{S_B1+1}], 0')
    EP = V_H + 32
    eps = [int(x) for x in EPS.split(',')]
    def touch():
        if TOUCH:
            a(f's_lshl_b32 s{S_TMP}, s{S_XCD}, 8\ns_add_u32 s{S_TMP}, s{S_TMP}, {ST1L_OFF}')
            a(f'buffer_load_dword v{EP+4}, v{V_L16}, {WSR}, s{S_TMP} offen {SC}')
            a(f's_lshl_b32 s{S_TMP}, s{S_XCD}, 11\ns_add_u32 s{S_TMP}, s{S_TMP}, {ST2L_OFF}')
            a(f'buffer_load_dword v{EP+4}, v{V_L16}, {WSR}, s{S_TMP} offen {SC}')
            a(f'buffer_load_dword v{EP+4}, v{V_L16}, {WSR}, s{S_TMP} offen offset:1024 {SC}')
    touch()
    setup()
    a(f's_cmp_eq_u32 s{S_WAVE}, 0\ns_cbranch_scc1 L_w0a')
    a('s_waitcnt vmcnt(0)\ns_branch L_stat')
    a.label('L_w0a')
    a('v_mov_b32 v13, 0')
    for i in range(3):
        a(f'v_mov_b32 v{EP+i}, 0')
    for i, sl in enumerate(eps):
        a(f's_sleep {sl}')
        a(f'buffer_load_dword v{EP+i}, v13, s[{R_B}:{R_B+3}], 0 offen {SC}')
    a(f's_waitcnt vmcnt({len(eps)})')
    a.label('L_stat')
    stamp(0)
    for c in range(32):
        a(f'v_lshlrev_b32 v{X0+c}, 16, v{X0+c}')
    a(f'v_pk_add_f32 v[8:9], v[{X0}:{X0+1}], v[{X0+2}:{X0+3}]\nv_pk_mul_f32 v[10:11], v[{X0}:{X0+1}], v[{X0}:{X0+1}]')
    a(f'v_pk_fma_f32 v[10:11], v[{X0+2}:{X0+3}], v[{X0+2}:{X0+3}], v[10:11]')
    for c in range(4, 32, 2):
        a(f'v_pk_add_f32 v[8:9], v[8:9], v[{X0+c}:{X0+c+1}]\nv_pk_fma_f32 v[10:11], v[{X0+c}:{X0+c+1}], v[{X0+c}:{X0+c+1}], v[10:11]')
    a('v_add_f32 v8, v8, v9\nv_add_f32 v9, v10, v11\ns_nop 0')
    red2(a, 8, 9, S_R1, S_R2)
    a(f's_lshl_b32 s{S_TMP}, s{S_WAVE}, 3\ns_add_u32 s{S_TMP}, s{S_TMP}, {MISC}\nv_mov_b32 v10, s{S_TMP}')
    a(f'v_mov_b32 v8, s{S_R1}\nv_mov_b32 v9, s{S_R2}')
    a('ds_write_b64 v10, v[8:9]')
    a(f's_cmp_lg_u32 s{S_WAVE}, 0\ns_cbranch_scc1 L_b1')
    a('s_waitcnt vmcnt(0)')
    a(f'v_or3_b32 v12, v{EP}, v{EP+1}, v{EP+2}')
    get_epoch('L_ep', 12)
    a(f'v_mov_b32 v10, {MISC+32}\nds_write_b32 v10, v12')
    stamp(16)
    if ts: a(f'v_mov_b32 v15, s{S_TMP+1}\nv_accvgpr_write_b32 a{A_TS+19}, v15')
    a.label('L_b1')
    SCLV = V_P0; SHF = V_P0 + 8
    a('s_waitcnt lgkmcnt(0)')
    for c in range(8):
        g = GB + c//2; be = GB + 4 + c//2
        if c % 2 == 0:
            a(f's_lshl_b32 s{S_R1}, s{g}, 16\ns_lshl_b32 s{S_R2}, s{be}, 16')
        else:
            a(f's_and_b32 s{S_R1}, s{g}, 0xffff0000\ns_and_b32 s{S_R2}, s{be}, 0xffff0000')
        a(f'v_mov_b32 v{SCLV+c}, s{S_R1}\nv_mov_b32 v{SHF+c}, s{S_R2}')
    a('s_barrier')
    a(f'v_mov_b32 v12, {MISC}')
    a('ds_read_b128 v[4:7], v12\nds_read_b128 v[8:11], v12 offset:16\nds_read_b32 v13, v12 offset:32')
    a('s_waitcnt lgkmcnt(0)')
    a(f'v_readfirstlane_b32 s{S_E}, v13')
    a('v_pk_add_f32 v[4:5], v[4:5], v[6:7]\nv_pk_add_f32 v[8:9], v[8:9], v[10:11]\nv_pk_add_f32 v[4:5], v[4:5], v[8:9]')
    a('v_mov_b32 v6, v5\nv_mov_b32 v5, v13\nv_mov_b32 v7, v13')
    exchange('L_p1', 4,
             lambda: a(f's_lshl_b32 s{S_TMP+2}, s{S_IDX}, 4\ns_add_u32 s{S_TMP+2}, s{S_TMP+2}, {ST1L_OFF}'),
             lambda: a(f's_lshl_b32 s{S_TMP+3}, s{S_IDX}, 7\ns_add_u32 s{S_TMP+3}, s{S_TMP+3}, {ST1G_OFF}'),
             True, 1, 15,
             lambda: a(f's_lshl_b32 s{S_TMP}, s{S_XCD}, 8\ns_add_u32 s{S_TMP}, s{S_TMP}, {ST1L_OFF}'),
             lambda: a(f's_lshl_b32 s{S_TMP}, s{S_XCD}, 11\ns_add_u32 s{S_TMP}, s{S_TMP}, {ST1G_OFF}'),
             12, 8)
    stamp(1)
    if ts: a(f'v_mov_b32 v15, s{S_TMP+1}\nv_accvgpr_write_b32 a{A_TS+18}, v15')
    a.vq = []; a.lq = []
    mean_rstd(1.0/(4*131072), 8)
    for c in range(0, 8, 2):
        a(f'v_pk_mul_f32 v[{SCLV+c}:{SCLV+c+1}], v[{SCLV+c}:{SCLV+c+1}], v[10:11]')
        a(f'v_pk_fma_f32 v[{SHF+c}:{SHF+c+1}], v[{SCLV+c}:{SCLV+c+1}], v[8:9], v[{SHF+c}:{SHF+c+1}]')
    ZT = V_P0 + 16
    for q in range(4):
        Z = X0 + 8*q
        for c in range(0, 8, 2):
            a(f'v_pk_fma_f32 v[{Z+c}:{Z+c+1}], v[{Z+c}:{Z+c+1}], v[{SCLV+c}:{SCLV+c+1}], v[{SHF+c}:{SHF+c+1}]')
        silu_pk(a, Z, ZT, 8)
        for i in range(4):
            a(f'v_cvt_pk_bf16_f32 v{Z+i}, v{Z+2*i}, v{Z+2*i+1}')
        a.vmem(f'buffer_store_dwordx4 v[{Z}:{Z+3}], v{V_L16}, {WSR}, s{S_O1} offen offset:{1024*q} {SC}', tag='st')
    a('s_branch L_join')

    a.label('L_warm')
    wdone.clear(); m0cur[0] = None; a.vq = []; a.lq = []
    EW = V_WF
    EA = V_WF + 16
    ET = V_WF + 24
    a(f's_lshr_b32 s{S_TMP+8}, s{S_WITHIN}, 1\ns_and_b32 s{S_TMP+9}, s{S_TMP+8}, 3\ns_lshr_b32 s{S_TMP+10}, s{S_TMP+8}, 2')
    srd(a, R_A, S_WE, S_WE+1, 786432)
    a('v_lshrrev_b32 v6, 2, v0\nv_and_b32 v5, 3, v0')
    a('v_lshlrev_b32 v7, 10, v6\nv_lshl_add_u32 v7, v5, 4, v7')
    a(f's_mul_i32 s{S_TMP}, s{S_TMP+10}, {192*1024}\ns_lshl_b32 s{S_TMP+1}, s{S_G}, 8\ns_add_u32 s{S_TMP}, s{S_TMP}, s{S_TMP+1}')
    a(f's_lshl_b32 s{S_TMP+1}, s{S_TMP+9}, 6\ns_add_u32 s{S_TMP}, s{S_TMP}, s{S_TMP+1}')
    for i in range(3):
        if i: a(f's_add_u32 s{S_TMP}, s{S_TMP}, 65536')
        a(f'buffer_load_dwordx4 v[{EW+4*i}:{EW+4*i+3}], v7, s[{R_A}:{R_A+3}], s{S_TMP} offen')
    srd(a, R_A, S_T, S_T+1, 3072)
    a(f'v_lshlrev_b32 v7, 1, v6\ns_mul_i32 s{S_TMP}, s{S_BB}, 1536\ns_mul_i32 s{S_TMP+1}, s{S_TMP+10}, 384\ns_add_u32 s{S_TMP}, s{S_TMP}, s{S_TMP+1}')
    for i in range(3):
        a(f'buffer_load_ushort v{EW+12+i}, v7, s[{R_A}:{R_A+3}], s{S_TMP} offen offset:{128*i}')
    a(f'v_mov_b32 v{EW+15}, 0')
    if WDLY: a(f's_sleep {WDLY}')
    nbulk = 0
    DUM = V_H
    for bit, ptr in ((1, S_W1), (2, S_W2)):
        if WARM & bit:
            srd(a, R_A, ptr, ptr+1, 4718592)
            if DUP & bit:
                a(f's_lshl_b32 s{S_TMP}, s{S_G}, 6\ns_lshl_b32 s{S_TMP+1}, s{S_TMP+8}, 2\ns_add_u32 s{S_TMP}, s{S_TMP}, s{S_TMP+1}\ns_add_u32 s{S_TMP}, s{S_TMP}, s{S_WAVE}\ns_mul_i32 s{S_TMP}, s{S_TMP}, 18432')
                nl = 18
            else:
                a(f's_lshl_b32 s{S_TMP}, s{S_G}, 7\ns_lshl_b32 s{S_TMP+1}, s{S_TMP+8}, 2\ns_add_u32 s{S_TMP}, s{S_TMP}, s{S_TMP+1}\ns_add_u32 s{S_TMP}, s{S_TMP}, s{S_WAVE}')
                a(f's_lshl_b32 s{S_TMP+1}, s{S_BB}, 6\ns_add_u32 s{S_TMP}, s{S_TMP}, s{S_TMP+1}\ns_mul_i32 s{S_TMP}, s{S_TMP}, 9216')
                nl = 9
            for i in range(nl):
                if i % 4 == 0 and i: a(f's_add_u32 s{S_TMP}, s{S_TMP}, 4096')
                a(f'buffer_load_dwordx4 v[{DUM}:{DUM+3}], v{V_L16}, s[{R_A}:{R_A+3}], s{S_TMP} offen offset:{(i%4)*1024} {NT1 if bit == 1 else NT2}')
                nbulk += 1
    setup()
    a(f's_waitcnt vmcnt({nbulk})')
    stamp(0)
    for i in range(3):
        a(f'v_lshlrev_b32 v{EW+12+i}, 16, v{EW+12+i}')
    silu_pk(a, EW+12, ET, 4)
    for i in range(3):
        for d in range(4):
            op = 'v_mul_f32' if i == 0 else 'v_fmac_f32'
            a(f'v_lshlrev_b32 v4, 16, v{EW+4*i+d}\nv_and_b32 v5, 0xffff0000, v{EW+4*i+d}')
            a(f'{op} v{EA+2*d}, v4, v{EW+12+i}\n{op} v{EA+2*d+1}, v5, v{EW+12+i}')
    for mod in ('row_ror:4 row_mask:0xf', 'row_ror:8 row_mask:0xf'):
        a('s_nop 1')
        for e in range(8):
            a(f'v_add_f32_dpp v{EA+e}, v{EA+e}, v{EA+e} {mod} bank_mask:0xf')
    for sw in ('v_permlane16_swap_b32', 'v_permlane32_swap_b32'):
        for e in range(8):
            a(f'v_mov_b32 v{ET+e}, v{EA+e}')
        a('s_nop 1')
        for e in range(8):
            a(f'{sw} v{EA+e}, v{ET+e}')
        a('s_nop 1')
        for e in range(8):
            a(f'v_add_f32 v{EA+e}, v{EA+e}, v{ET+e}')
    a(f's_lshl_b32 s{S_TMP}, s{S_XCD}, 2\ns_add_u32 s{S_TMP}, s{S_TMP}, s{S_TMP+9}\ns_lshl_b32 s{S_TMP}, s{S_TMP}, 2\ns_add_u32 s{S_TMP}, s{S_TMP}, s{S_TMP+10}')
    a(f's_lshl_b32 s{S_TMP}, s{S_TMP}, 2\ns_add_u32 s{S_TMP}, s{S_TMP}, s{S_WAVE}\ns_lshl_b32 s{S_TMP}, s{S_TMP}, 7\ns_add_u32 s{S_TMP}, s{S_TMP}, {EMBP_OFF}')
    a('v_lshlrev_b32 v4, 5, v2')
    a(f'v_cmp_gt_u32 vcc, 4, v2\ns_and_saveexec_b64 s[{S_SAVE}:{S_SAVE+1}], vcc')
    a(f'buffer_store_dwordx4 v[{EA}:{EA+3}], v4, {WSR}, s{S_TMP} offen {SC}')
    a(f'buffer_store_dwordx4 v[{EA+4}:{EA+7}], v4, {WSR}, s{S_TMP} offen offset:16 {SC}')
    a(f's_mov_b64 exec, s[{S_SAVE}:{S_SAVE+1}]')
    a('v_mov_b32 v12, 0')
    get_epoch('L_ep2', 12)
    stamp(1)
    a.label('L_join')
    a.vq = ['st']; a.lq = []
    stamps[0] = 2
    m0cur[0] = None
    a('v_and_b32 v3, 15, v2\nv_lshrrev_b32 v4, 4, v2')
    w_dma_all(0)
    if PREF >= 2: w_dma_all(1)
    a.need(vtags=['st'])
    a('s_barrier')
    def flag_store(off):
        a(f's_cmp_lg_u32 s{S_WAVE}, 0\ns_cbranch_scc1 L_nf{off:x}')
        a(f's_lshl_b32 s{S_TMP}, s{S_LIN}, 7\ns_add_u32 s{S_TMP}, s{S_TMP}, {off}')
        a(f'v_mov_b32 v5, s{S_E}\nv_mov_b32 v6, 0')
        a(f'v_cmp_eq_u32 vcc, 0, v2\ns_and_saveexec_b64 s[{S_SAVE}:{S_SAVE+1}], vcc')
        a(f'buffer_store_dword v5, v6, {WSR}, s{S_TMP} offen {SC}')
        a(f's_mov_b64 exec, s[{S_SAVE}:{S_SAVE+1}]')
        a.label(f'L_nf{off:x}')
    def flag_poll(off, vaddr, name):
        a(f's_mov_b32 s{S_TMP+1}, 0\ns_mov_b32 s{S_TMP}, {off}')
        a.label(name)
        a(f'buffer_load_dword v5, v{vaddr}, {WSR}, s{S_TMP} offen {SC}')
        a('s_waitcnt vmcnt(0)')
        a(f'v_cmp_eq_u32 vcc, s{S_E}, v5')
        a(f's_add_u32 s{S_TMP+1}, s{S_TMP+1}, 1')
        a(f's_cmp_eq_u64 vcc, exec\ns_cbranch_scc1 {name}ok')
        a(f's_cmp_lt_u32 s{S_TMP+1}, 0x40000\ns_cbranch_scc1 {name}')
        a.label(name + 'ok')
        a.vq = []
    flag_store(F0_OFF)
    stamp()

    if PREF < 2: w_dma_all(1)
    w_rawperm(0)
    w_dma_all(2)
    if DLY0: a(f's_sleep {DLY0}')
    flag_poll(F0_OFF, V_PF0, 'L_p2')
    stamp()

    H = V_H; PL = V_H + 16
    def conv(ci):
        which = ci + 1
        PACE = float(E('PACE%d' % which, '5.0'))
        ex = []
        for u in range(3):
            dma_a_pre(ci, u, 0)
            for kq in range(4): dma_a(ci, u, kq)
        if ci == 0: w_rawperm(1)
        for r in range(3):
            for half in range(2):
                for dx in range(3):
                    rd_af(ci, 0, r, half, dx)
        items = []
        def put(gs, fn): items.append((gs, len(items), fn))
        row_slot = {}
        for s_ in range(4):
            for r in range(6):
                if r < 3:
                    if s_ == 0: row_slot[(s_, r)] = None; continue
                    base = 72*(2*s_-1) + 18*(r+1)
                else:
                    base = 72*(2*s_) + 18*(r-3) + (4 if r > 3 else 0)
                row_slot[(s_, r)] = base
                i = 0
                for half in range(2):
                    for dx in range(3):
                        put(base + 1 + (3*i)//2, (lambda ss=s_, r=r, half=half, dx=dx: rd_af(ci, ss, r, half, dx))); i += 1
        RAWS = 52
        raw_slot = {}
        for k_ in range(8):
            kk_ = ci*8 + k_
            p_ = kk_ + 1
            if p_ < 16 and p_ not in permdone and k_ >= 1:
                for i in range(36):
                    put(72*k_ + 1 + (i*4)//3, (lambda x=p_, i=i: perm(x, i)))
            r_ = kk_ + 2
            if r_ < 16 and r_ not in rawdone:
                rs = 72*k_ + (RAWS if k_ >= 1 else 30)
                raw_slot[r_] = rs
                for j in range(9):
                    put(rs + 2*j, (lambda x=r_, j=j: rd_raw(x, j)))
        ops = []
        for kk_ in range(ci*8, 16):
            if kk_ in wdone: continue
            if (kk_-2) in rawdone: ea = 0
            elif (kk_-2) in raw_slot: ea = raw_slot[kk_-2] + 22
            else: continue
            if ea > 560: continue
            dl = raw_slot.get(kk_, 72*8 + 40*(kk_ - ci*8))
            for n in wsegs(kk_):
                ops.append((dl, ea, (lambda x=kk_, n=n: dma_w_pre(x, n)), (lambda x=kk_, n=n: dma_w(x, n)), kk_))
        for u in range(3, 12):
            s_, j = divmod(u, 3)
            dl = row_slot[(s_, 2*j)] or 0
            ea = 0
            if u >= NA:
                ps, pj = divmod(u - NA, 3)
                ea = (row_slot[(ps, 2*pj+1)] or 0) + 14
            for kq in range(4):
                def pre(u=u, kq=kq):
                    if u >= NA:
                        ps, pj = divmod(u - NA, 3)
                        assert (ci, ps, 2*pj+1, 1, 2) in issued
                        a.need(ltags=[('F', ps, 2*pj+1, 1, 2)])
                    dma_a_pre(ci, u, kq)
                ops.append((dl, ea, pre, (lambda u=u, kq=kq: dma_a(ci, u, kq)), None))
        ops.sort(key=lambda o: o[0])
        cur = 4.0
        rem = list(ops)
        placed = []
        while rem:
            cand = [o for o in rem if o[1] <= cur]
            if not cand:
                cur = float(min(o[1] for o in rem)); continue
            o = cand[0]; rem.remove(o)
            placed.append((int(cur), o)); cur += PACE
        bad = set(o[4] for sl, o in placed if sl > 572)
        assert None not in bad
        for sl, o in placed:
            if o[4] in bad: continue
            if o[0] < 576 and sl > o[0] - 30: sys.stderr.write(f'warn conv{which}: op at {sl} deadline {o[0]}\n')
            put(sl-1, o[2]); put(sl, o[3])
        base = 72
        SCv = V_P0 + 4; SHv = V_P0 + 12
        if which == 1:
            ef = []
            put(72 + 2, lambda: a(f's_mov_b32 s{S_TMP+1}, {F0_OFF}'))
            put(72 + 4, lambda: ef.append(a.vmem(f'buffer_load_dword v{V_EX+16}, v{V_PF2}, {WSR}, s{S_TMP+1} offen {SC}')))
            def chk():
                a.need(vtags=ef)
                a(f'v_cmp_eq_u32 vcc, s{S_E}, v{V_EX+16}\ns_nop 0\ns_cmp_eq_u64 vcc, exec\ns_cbranch_scc0 L_embslow')
                a.label('L_embok')
            put(144 + 20, chk)
            for i, sl in enumerate([int(x) for x in TRK.split(',')] if TRK else []):
                h_, p_ = divmod(i, 2)
                def t0(i=i):
                    if i == 0:
                        srd(a, R_B, S_W2, S_W2+1, 4718592)
                def t1(i=i):
                    if i == 0:
                        a(f's_lshl_b32 s{S_TMP+10}, s{S_BB}, 5\ns_add_u32 s{S_TMP+10}, s{S_TMP+10}, s{S_WITHIN}\ns_lshl_b32 s{S_TMP+10}, s{S_TMP+10}, 2\ns_add_u32 s{S_TMP+10}, s{S_TMP+10}, s{S_WAVE}')
                        a(f's_lshl_b32 s{S_TMP+11}, s{S_G}, 8\ns_add_u32 s{S_TMP+10}, s{S_TMP+10}, s{S_TMP+11}\ns_mul_i32 s{S_TMP+10}, s{S_TMP+10}, 4608')
                def t2(h_=h_, p_=p_):
                    a.vmem(f'buffer_load_dword v{V_P0}, v{V_PFX}, s[{R_B}:{R_B+3}], s{S_TMP+10} offen offset:{p_*2304 + h_*1152}')
                put(sl-4, t0); put(sl-2, t1); put(sl, t2)
            seq = [lambda: a(f's_lshl_b32 s{S_TMP}, s{S_XCD}, 2\ns_add_u32 s{S_TMP}, s{S_TMP}, s{S_OCT}'),
                   lambda: a(f's_lshl_b32 s{S_TMP}, s{S_TMP}, 11\ns_add_u32 s{S_TMP}, s{S_TMP}, {EMBP_OFF}'),
                   lambda: a('v_lshlrev_b32 v5, 7, v3\nv_lshl_add_u32 v5, v4, 4, v5')]
            for o2 in range(2):
                seq.append(lambda o2=o2: ex.append(a.vmem(f'buffer_load_dwordx4 v[{V_EX+4*o2}:{V_EX+4*o2+3}], v5, {WSR}, s{S_TMP} offen offset:{64*o2} {SC}')))
            seq += [lambda: a(f's_mov_b32 s{R_A}, s{S_G2}\ns_and_b32 s{R_A+1}, s{S_G2+1}, 0xffff'), lambda: a(f's_movk_i32 s{R_A+2}, 1024\ns_mov_b32 s{R_A+3}, 0x20000'),
                    lambda: a(f'v_lshlrev_b32 v5, 3, v4\ns_lshl_b32 s{S_TMP}, s{S_OC0}, 1')]
            for o2 in range(2):
                seq.append(lambda o2=o2: ex.append(a.vmem(f'buffer_load_dwordx2 v[{V_EX+8+2*o2}:{V_EX+9+2*o2}], v5, s[{R_A}:{R_A+3}], s{S_TMP} offen offset:{o2*32}')))
            seq += [lambda: a(f's_mov_b32 s{R_A}, s{S_B2}\ns_and_b32 s{R_A+1}, s{S_B2+1}, 0xffff')]
            for o2 in range(2):
                seq.append(lambda o2=o2: ex.append(a.vmem(f'buffer_load_dwordx2 v[{V_EX+12+2*o2}:{V_EX+13+2*o2}], v5, s[{R_A}:{R_A+3}], s{S_TMP} offen offset:{o2*32}')))
            seq += [lambda: a('v_lshrrev_b32 v5, 1, v4\nv_lshlrev_b32 v5, 14, v5'), lambda: a('v_lshl_add_u32 v5, v3, 4, v5\nv_and_b32 v6, 1, v4'),
                    lambda: a(f'v_lshl_add_u32 v{V_EX+16}, v6, 8, v5\ns_lshl_b32 s{S_TMP}, s{S_BB}, 20'),
                    lambda: a(f's_lshl_b32 s{S_TMP+1}, s{S_OC0}, 11\ns_add_u32 s{S_TMP}, s{S_TMP}, s{S_TMP+1}'),
                    lambda: a(f's_add_u32 s{S_TMP+1}, s{S_Y0}, s{S_WAVE}\ns_lshl_b32 s{S_TMP+1}, s{S_TMP+1}, 9'),
                    lambda: a(f's_add_u32 s{S_O1}, s{S_TMP}, s{S_TMP+1}\ns_add_u32 s{S_O1}, s{S_O1}, {A2_OFF}'),
                    lambda: a(f's_add_u32 s{S_O2}, s{S_O1}, 32768')]
            for i, fn in enumerate(seq): put(144 + 24 + 3*i, fn)
            seq = [lambda: a.need(vtags=ex)]
            for mod in ('quad_perm:[1,0,3,2]', 'quad_perm:[2,3,0,1]', 'row_half_mirror', 'row_mirror'):
                for i in range(8):
                    seq.append(lambda mod=mod, i=i: a(f'v_add_f32_dpp v{V_EX+i}, v{V_EX+i}, v{V_EX+i} {mod} row_mask:0xf bank_mask:0xf'))
            for o2 in range(2):
                for i in range(4):
                    g = V_EX+8+2*o2+i//2; be = V_EX+12+2*o2+i//2; e = o2*4+i
                    if i % 2 == 0:
                        seq.append(lambda g=g, e=e: a(f'v_lshlrev_b32 v{SCv+e}, 16, v{g}')); seq.append(lambda be=be, e=e: a(f'v_lshlrev_b32 v{SHv+e}, 16, v{be}'))
                    else:
                        seq.append(lambda g=g, e=e: a(f'v_and_b32 v{SCv+e}, 0xffff0000, v{g}')); seq.append(lambda be=be, e=e: a(f'v_and_b32 v{SHv+e}, 0xffff0000, v{be}'))
            for i, fn in enumerate(seq): put(72*4 + 10 + 2*i, fn)
        else:
            seq = [lambda: a(f's_mov_b32 s{R_A}, s{S_OUT}\ns_and_b32 s{R_A+1}, s{S_OUT+1}, 0xffff'), lambda: a(f's_mov_b32 s{R_A+2}, 2097152\ns_mov_b32 s{R_A+3}, 0x20000'),
                   lambda: a(f'v_lshlrev_b32 v{V_EX+16}, 11, v3\nv_lshl_add_u32 v{V_EX+16}, v4, 3, v{V_EX+16}'),
                   lambda: a(f's_lshl_b32 s{S_TMP}, s{S_BB}, 20\ns_lshl_b32 s{S_TMP+1}, s{S_OC0}, 11'),
                   lambda: a(f's_add_u32 s{S_TMP}, s{S_TMP}, s{S_TMP+1}\ns_add_u32 s{S_TMP+1}, s{S_Y0}, s{S_WAVE}'),
                   lambda: a(f's_lshl_b32 s{S_TMP+1}, s{S_TMP+1}, 6\ns_add_u32 s{S_O1}, s{S_TMP}, s{S_TMP+1}'),
                   lambda: a(f's_add_u32 s{S_O2}, s{S_O1}, 32768')]
            for o2 in range(2):
                for half in range(2):
                    r = V_EX + (o2*2+half)*2
                    seq.append(lambda r=r, o2=o2, half=half: ex.append(a.vmem(f'buffer_load_dwordx2 v[{r}:{r+1}], v{V_EX+16}, s[{R_X}:{R_X+3}], s{S_O1 if o2 == 0 else S_O2} offen offset:{half*32}')))
            for i, fn in enumerate(seq): put(6 + 3*i, fn)
            seq = [lambda: a.need(vtags=ex)]
            for q in range(8):
                seq.append(lambda q=q: a(f'v_lshlrev_b32 v{V_P0+2*q}, 16, v{V_EX+q}')); seq.append(lambda q=q: a(f'v_and_b32 v{V_P0+2*q+1}, 0xffff0000, v{V_EX+q}'))
            for i, fn in enumerate(seq): put(72*3 + 3*i, fn)
        def poff(o2, ro, half): return (8192 if o2 == 0 else 0) + (ro*2+half)*1024
        def pw(o2, ro, half):
            c = acc(o2, ro, half)
            a.lds(f'ds_write_b128 v{V_PW}, a[{c}:{c+3}] offset:{poff(o2, ro, half)}', tag=('PW', o2))
        def prd(o2, v, half, dst):
            b_ = V_T if v < 2 else V_T+1
            a.lds(f'ds_read_b128 v[{dst}:{dst+3}], v{b_} offset:{(v%2)*WAVE_LDS + poff(o2, 0, half)}', tag=('P', o2, v, half))
        def red_reads(o2):
            outs = []
            for half in range(2):
                for v in range(4):
                    dst = (H + (o2*2+half)*4) if v == 0 else (PL + (half*3 + v-1)*4)
                    outs.append(lambda v=v, half=half, dst=dst: prd(o2, v, half, dst))
            return outs
        SQ = V_T + 8
        def red_adds(o2, pk):
            outs = []
            for half in range(2):
                h = H + (o2*2+half)*4
                extra = (V_EX + 4*o2) if which == 1 else (V_P0 + (o2*2+half)*4)
                for v in range(1, 5):
                    for i in range(0, 4, 2 if pk else 1):
                        def f(half=half, v=v, i=i, h=h, extra=extra):
                            a.need(ltags=[('P', o2, 3, half)])
                            src = (PL + (half*3+v-1)*4 + i) if v < 4 else extra + i
                            if pk: a(f'v_pk_add_f32 v[{h+i}:{h+i+1}], v[{h+i}:{h+i+1}], v[{src}:{src+1}]')
                            else: a(f'v_add_f32 v{h+i}, v{h+i}, v{src}')
                        outs.append(f)
                if which == 1:
                    if pk:
                        for i in range(0, 4, 2):
                            outs.append(lambda h=h, i=i: a(f'v_pk_fma_f32 v[{SQ+2}:{SQ+3}], v[{h+i}:{h+i+1}], v[{h+i}:{h+i+1}], v[{SQ+2}:{SQ+3}]'))
                            outs.append(lambda h=h, i=i: a(f'v_pk_add_f32 v[{SQ}:{SQ+1}], v[{SQ}:{SQ+1}], v[{h+i}:{h+i+1}]'))
                    else:
                        for i in range(4):
                            outs.append(lambda h=h, i=i: a(f'v_fmac_f32 v{SQ+2+i%2}, v{h+i}, v{h+i}'))
                            outs.append(lambda h=h, i=i: a(f'v_add_f32 v{SQ+i%2}, v{SQ+i%2}, v{h+i}'))
                else:
                    o = V_EX + (o2*2+half)*2
                    outs.append(lambda h=h, o=o: a(f'v_cvt_pk_bf16_f32 v{o}, v{h}, v{h+1}\nv_cvt_pk_bf16_f32 v{o+1}, v{h+2}, v{h+3}'))
                    outs.append(lambda o=o, half=half: a.vmem(f'buffer_store_dwordx2 v[{o}:{o+1}], v{V_EX+16}, s[{R_A}:{R_A+3}], s{S_O1 if o2 == 0 else S_O2} offen offset:{half*32} {OUTF}'))
            return outs
        b6 = 72*6; b7 = 72*7
        put(b6, lambda: a(f's_lshl_b32 s{S_TMP}, s{S_WAVE}, 11\ns_add_u32 s{S_TMP}, s{S_TMP}, {A_BASE}'))
        put(b6 + 2, lambda: a(f'v_add_u32 v{V_T}, s{S_TMP}, v{V_L16}\nv_add_u32 v{V_T+1}, {2*WAVE_LDS}, v{V_T}'))
        if which == 1:
            put(b6 + 4, lambda: a(f'v_mov_b32 v{SQ}, 0\nv_mov_b32 v{SQ+1}, 0'))
            put(b6 + 6, lambda: a(f'v_mov_b32 v{SQ+2}, 0\nv_mov_b32 v{SQ+3}, 0'))
        for o2 in range(2):
            for ro in range(4):
                for half in range(2):
                    sl = 72*(6+o2) + 18*ro + 9*half + 8 + 9
                    if sl <= 575 and not (o2 == 1 and ro == 3):
                        put(sl, (lambda o2=o2, ro=ro, half=half: pw(o2, ro, half)))
        def fbar():
            a.need(ltags=[('PW', 0)]); a('s_barrier')
        put(b7 + 14, fbar)
        for i, fn in enumerate(red_reads(0)): put(b7 + 15 + i, fn)
        for i, fn in enumerate(red_adds(0, False)): put(b7 + 26 + (i*7)//8, fn)
        items.sort(key=lambda x: (x[0], x[1]))
        qi = 0
        gs = 0
        for k in range(8):
            if k in (0, 1): stamp()
            if E('PSTAMP') and ci == int(E('PSTAMP'))-1: stamp(232 - A_TS + k)
            s, ob = divmod(k, 2)
            kk = ci*8 + k
            assert kk in permdone
            for ro in range(4):
                for half in range(2):
                    for dy in range(3):
                        for dx in range(3):
                            if dx == 0:
                                for d2 in range(3):
                                    assert (ci, s, ro+dy, half, d2) in issued, (ci, s, ro, dy, half, gs)
                                a.need(ltags=[('F', s, ro+dy, half, d2) for d2 in range(3)])
                            c = acc(ob, ro, half); w_ = wf(kk, dy*3+dx); f_ = af(ro+dy, half, dx)
                            srcc = '0' if (s == 0 and dy == 0 and dx == 0) else f'a[{c}:{c+3}]'
                            if which == 1:
                                a(f'v_mfma_f32_16x16x32_bf16 a[{c}:{c+3}], v[{w_}:{w_+3}], a[{f_}:{f_+3}], {srcc}')
                            else:
                                a(f'v_mfma_f32_16x16x32_bf16 a[{c}:{c+3}], a[{f_}:{f_+3}], v[{w_}:{w_+3}], {srcc}')
                            n1 = len(a.L)
                            last = (gs == 575)
                            while qi < len(items) and items[qi][0] <= gs and (len(a.L) - n1 < CAP or last):
                                items[qi][2](); qi += 1
                            gs += 1
        assert qi == len(items), (qi, len(items))
        if E('PSTAMP') and ci == int(E('PSTAMP'))-1: stamp(240 - A_TS)
        pw(1, 3, 0)
        a('s_nop 7')
        pw(1, 3, 1)
        a.need(ltags=[('PW', 1)]); a('s_barrier')
        for fn in red_reads(1): fn()
        for fn in red_adds(1, True): fn()
        stamp()
        if which == 1:
            G = V_T + 4
            a(f'v_add_f32 v{SQ}, v{SQ}, v{SQ+1}\nv_add_f32 v{SQ+1}, v{SQ+2}, v{SQ+3}\ns_nop 0')
            red2(a, SQ, SQ+1, S_R1, S_R2)
            a(f'v_mov_b32 v{G+1}, s{S_E}\nv_mov_b32 v{G+3}, s{S_E}\nv_mov_b32 v{G}, s{S_R1}\nv_mov_b32 v{G+2}, s{S_R2}')
            a(f's_lshl_b32 s{S_TMP+6}, s{S_LIN}, 2\ns_add_u32 s{S_TMP+6}, s{S_TMP+6}, s{S_WAVE}')
            def mid3():
                a.vq.append(('pub',))
                if 9 in rawdone and 9 not in permdone:
                    for i in range(36): perm(9, i)
            exchange('L_p3', G,
                     lambda: a(f's_lshl_b32 s{S_TMP+2}, s{S_TMP+6}, 4\ns_add_u32 s{S_TMP+2}, s{S_TMP+2}, {ST2L_OFF}'),
                     lambda: a(f's_lshl_b32 s{S_TMP+3}, s{S_TMP+6}, 7\ns_add_u32 s{S_TMP+3}, s{S_TMP+3}, {ST2G_OFF}'),
                     False, 2, 63,
                     lambda: a(f's_lshl_b32 s{S_TMP}, s{S_XCD}, 11\ns_add_u32 s{S_TMP}, s{S_TMP}, {ST2L_OFF}'),
                     lambda: a(f's_lshl_b32 s{S_TMP}, s{S_XCD}, 14\ns_add_u32 s{S_TMP}, s{S_TMP}, {ST2G_OFF}'),
                     V_T+8, PL, mid3)
            a.vq = []
            stamp()
            M = V_T + 8
            mean_rstd(1.0/131072, M)
            for e in range(0, 8, 2):
                a(f'v_pk_mul_f32 v[{SCv+e}:{SCv+e+1}], v[{SCv+e}:{SCv+e+1}], v[{M+2}:{M+3}]')
                a(f'v_pk_fma_f32 v[{SHv+e}:{SHv+e+1}], v[{SCv+e}:{SCv+e+1}], v[{M}:{M+1}], v[{SHv+e}:{SHv+e+1}]')
            for o2 in range(2):
                Z = H + o2*8
                for half in range(2):
                    for i in range(0, 4, 2):
                        r = Z + half*4 + i
                        a(f'v_pk_fma_f32 v[{r}:{r+1}], v[{r}:{r+1}], v[{SCv+o2*4+i}:{SCv+o2*4+i+1}], v[{SHv+o2*4+i}:{SHv+o2*4+i+1}]')
                silu_pk(a, Z, PL, 8)
                r = PL + 8 + o2*4
                for q in range(4):
                    a(f'v_cvt_pk_bf16_f32 v{r+q}, v{Z+2*q}, v{Z+2*q+1}')
                a('s_nop 1')
                a(f'v_permlane16_swap_b32 v{r}, v{r+2}\nv_permlane16_swap_b32 v{r+1}, v{r+3}')
                a(f'buffer_store_dwordx4 v[{r}:{r+3}], v{V_EX+16}, {WSR}, s{S_O1 if o2 == 0 else S_O2} offen {SC}')
            if BND and 10 in wdone and 10 not in rawdone:
                w_rawperm(10, False)
            a('s_waitcnt vmcnt(0)\ns_barrier')
            a.vq = []
            flag_store(F1_OFF)
            a.vq = [('flag',)]
            stamp()
            for kk_ in (10, 11, 12):
                if kk_ not in wdone and (kk_-2) in rawdone and (BND or kk_ < 12):
                    w_dma_all(kk_)
            if DLY1: a(f's_sleep {DLY1}')
            flag_poll(F1_OFF, V_PF1, 'L_p4')
            stamp()
    conv(0)
    conv(1)
    if ts:
        a('s_waitcnt vmcnt(0)')
        stamp()
        a('s_memrealtime s[98:99]\ns_waitcnt lgkmcnt(0)')
        for i in range(16):
            a(f'v_accvgpr_read_b32 v{72+i}, a{A_TS+i}')
        for i in range(4):
            a(f'v_accvgpr_read_b32 v{92+i}, a{A_TS+16+i}')
        a('v_accvgpr_read_b32 v88, a229\nv_mov_b32 v89, s100\nv_mov_b32 v90, s98\nv_mov_b32 v91, 0')
        a(f's_lshl_b32 s{S_TMP}, s2, 9\ns_lshl_b32 s{S_TMP+1}, s{S_WAVE}, 7\ns_add_u32 s{S_TMP}, s{S_TMP}, s{S_TMP+1}\nv_mov_b32 v8, s{S_TMP}')
        srd(a, R_B, S_WS, S_WS+1, 0x40000, TS_OFF)
        a(f'v_cmp_eq_u32 vcc, 0, v2\ns_and_saveexec_b64 s[{S_SAVE}:{S_SAVE+1}], vcc')
        for i in range(6):
            a(f'buffer_store_dwordx4 v[{72+4*i}:{75+4*i}], v8, s[{R_B}:{R_B+3}], 0 offen offset:{16*i}')
        if E('DBGOUT'):
            wg = int(E('DBGOUT'))
            a(f's_cmp_lg_u32 s2, {wg}\ns_cbranch_scc1 L_end\ns_cmp_lg_u32 s{S_WAVE}, 1\ns_cbranch_scc1 L_end')
            srd(a, R_B, S_DBG, S_DBG+1, 256)
            for i in range(14):
                a(f'v_sub_u32 v{72+i}, v{72+i}, v88')
            a('v_sub_u32 v90, v90, v89\nv_mov_b32 v8, 0')
            a(f'buffer_store_dword v90, v8, s[{R_B}:{R_B+3}], 0 offen offset:4')
            for i in range(7):
                a(f'buffer_store_dwordx2 v[{72+2*i}:{73+2*i}], v8, s[{R_B}:{R_B+3}], 0 offen offset:{8+8*i}')
        if E('PSTAMP'):
            for i in range(12):
                a(f'v_accvgpr_read_b32 v{100+i}, a{232+i}')
            srd(a, R_B, S_WS, S_WS+1, 0x40000, TS_OFF + 0x100000)
            for i in range(3):
                a(f'buffer_store_dwordx4 v[{100+4*i}:{103+4*i}], v8, s[{R_B}:{R_B+3}], 0 offen offset:{16*i}')
    a.label('L_end')
    a('s_endpgm')
    a.label('L_embslow')
    a(f's_mov_b32 s{S_TMP+2}, 0')
    a.label('L_embslow2')
    a(f'buffer_load_dword v{V_EX+16}, v{V_PF2}, {WSR}, s{S_TMP+1} offen {SC}')
    a('s_waitcnt vmcnt(0)')
    a(f'v_cmp_eq_u32 vcc, s{S_E}, v{V_EX+16}')
    a(f's_add_u32 s{S_TMP+2}, s{S_TMP+2}, 1')
    a('s_cmp_eq_u64 vcc, exec\ns_cbranch_scc1 L_embok')
    a(f's_cmp_lt_u32 s{S_TMP+2}, 0x40000\ns_cbranch_scc1 L_embslow2')
    a('s_branch L_embok')
    name = 'standalone__adm_resblock__diffusion_kernel'
    return khead(name) + a.text(), kd(name, 256+(248 if ts else 208), 256)

def main():
    ts = '--ts' in sys.argv
    hdr = open('standalone__adm_resblock__diffusion.s.ref').read().split('\n')
    top = [l for l in hdr if l.startswith(';') and '@launch' not in l]
    top += ['; @launch grid=(256,1,1) block=(256,1,1) lds=163840']
    k = gen(ts)
    out = '\n'.join(top) + '\n.amdgcn_target "amdgcn-amd-amdhsa--gfx950"\n.text\n'
    out += k[0] + '\n.section .rodata,"a"\n' + k[1] + '\n'
    print(out)

main()
```

```python
import sys, struct, os
from genlib import *

E = os.environ.get
WARM = int(E('WARM', '3'))
TRK = E('TRK', '')
TOUCH = int(E('TOUCH', '1'))
PREF = int(E('PREF', '0'))
ORD = int(E('ORD', '0'))
CPF = int(E('CPF', '0'))
ORDB = int(E('ORDB', '0'))
OUTF = E('OUTF', '')
DUP = int(E('DUP', '1'))
NT1 = E('NT1', ''); NT2 = E('NT2', ''); NTX = E('NTX', '')
WDLY = int(E('WDLY', '0'))
NOVM = E('NOVM', '')
EPS = E('EPS', '10,6')
DLY0 = int(E('DLY0', '0')); DLY1 = int(E('DLY1', '0'))
CAP = int(E('CAP', '2'))
BND = int(E('BND', '1'))
NLOC = int(E('NLOC', '12')); KGLOB = int(E('KGLOB', '2'))
SC = 'sc1'

A1_OFF = 0x100000
A2_OFF = 0x400000
EMBP_OFF = 0x700000
ST1L_OFF = 0x720000
ST2L_OFF = 0x724000
ST1G_OFF = 0x730000
F0_OFF = 0x738000
F1_OFF = 0x740000
ST2G_OFF = 0x760000
WS_SIZE = 0x800000
TS_OFF = 0x8000000

WAVE_LDS = 40960
WSLOT = 10240
NA = 5
A_BASE = 2*WSLOT
MISC = A_BASE

V_AD = 16; V_AR = 28; V_L16 = 31; V_EX = 32
V_PF0 = 49; V_PF1 = 50; V_PW = 51
V_T = 52
V_PF2 = 54; V_PFX = 55
V_WD = 64
V_WR = 74
V_WRX = 78
V_RAW = 82
V_WF = 118
V_P0 = 190
V_H = 216
A_ACC = 0; A_AF = 64; A_TS = 208
def acc(ob, ro, half): return A_ACC + ((ob*4 + ro)*2 + half)*4
def af(r, half, dx): return A_AF + ((r*2 + half)*3 + dx)*4
def wf(kk, tap): return V_WF + (kk % 2)*36 + tap*4

S_X, S_T, S_G1, S_B1, S_W1, S_WE, S_G2, S_B2, S_W2, S_OUT, S_DBG, S_WS = 4, 6, 8, 10, 12, 14, 16, 18, 20, 22, 24, 26
R_WS = 28; R_X = 32; R_A = 36; R_B = 40
S_WAVE = 44; S_XCD = 45; S_WITHIN = 46; S_BB = 47; S_G = 48; S_OCT = 49; S_PXT = 50; S_OC0 = 51; S_Y0 = 52
S_LDS = 53; S_E = 54; S_FFFF = 55
S_WOFF = 56
S_AOFF = 64
S_TMP = 68
S_C = 80
S_LIN = 84; S_IDX = 85; S_R1 = 86; S_R2 = 87
S_O1 = 88; S_O2 = 89; S_SAVE = 90
S_TS = 92
R_WQ = 96

def red2(a, v1, v2, s1, s2):
    for mod in ('quad_perm:[1,0,3,2] row_mask:0xf', 'quad_perm:[2,3,0,1] row_mask:0xf', 'row_half_mirror row_mask:0xf',
                'row_mirror row_mask:0xf', 'row_bcast:15 row_mask:0xa', 'row_bcast:31 row_mask:0xc'):
        a('s_nop 0')
        a(f'v_add_f32_dpp v{v1}, v{v1}, v{v1} {mod} bank_mask:0xf')
        a(f'v_add_f32_dpp v{v2}, v{v2}, v{v2} {mod} bank_mask:0xf')
    a(f'v_readlane_b32 s{s1}, v{v1}, 63\ns_nop 0\nv_readlane_b32 s{s2}, v{v2}, 63')

def silu_pk(a, z, t, n):
    for i in range(0, n, 2):
        a(f'v_pk_mul_f32 v[{t+i}:{t+i+1}], v[{z+i}:{z+i+1}], s[{S_C}:{S_C+1}]')
    for i in range(n):
        a(f'v_exp_f32 v{t+i}, v{t+i}')
    if n <= 4: a('s_nop 0')
    for i in range(0, n, 2):
        a(f'v_pk_add_f32 v[{t+i}:{t+i+1}], v[{t+i}:{t+i+1}], s[{S_C+2}:{S_C+3}]')
    for i in range(n):
        a(f'v_rcp_f32 v{t+i}, v{t+i}')
    if n <= 4: a('s_nop 0')
    for i in range(0, n, 2):
        a(f'v_pk_mul_f32 v[{z+i}:{z+i+1}], v[{z+i}:{z+i+1}], v[{t+i}:{t+i+1}]')

def gen(ts=False):
    a = Asm()
    stamps = [0]
    def stamp(idx=None):
        if ts:
            a(f's_memtime s[{S_TS}:{S_TS+1}]'); a.wait_all(v=False)
            i = stamps[0] if idx is None else idx
            a(f'v_mov_b32 v15, s{S_TS}\nv_accvgpr_write_b32 a{A_TS+i}, v15')
            if idx is None: stamps[0] += 1
    WSR = f's[{R_WS}:{R_WS+3}]'
    a('s_cmp_ge_u32 s2, 256\ns_cbranch_scc1 L_end')
    a('s_load_dwordx16 s[4:19], s[0:1], 0')
    a('s_load_dwordx8 s[20:27], s[0:1], 64')
    a(f's_memrealtime s[{S_TS+2}:{S_TS+3}]')
    if ts:
        a('s_memtime s[90:91]\ns_memrealtime s[100:101]\ns_waitcnt lgkmcnt(0)\nv_mov_b32 v15, s90\nv_accvgpr_write_b32 a229, v15')
    a('v_lshrrev_b32 v1, 6, v0\nv_and_b32 v2, 63, v0')
    a(f'v_readfirstlane_b32 s{S_WAVE}, v1')
    a(f's_and_b32 s{S_XCD}, s2, 7\ns_lshr_b32 s{S_WITHIN}, s2, 3')
    a(f's_lshr_b32 s{S_BB}, s{S_XCD}, 2\ns_and_b32 s{S_G}, s{S_XCD}, 3')
    a(f's_and_b32 s{S_OCT}, s{S_WITHIN}, 3\ns_lshr_b32 s{S_PXT}, s{S_WITHIN}, 2')
    a(f's_lshl_b32 s{S_OC0}, s{S_G}, 7\ns_lshl_b32 s{S_TMP}, s{S_OCT}, 5\ns_add_u32 s{S_OC0}, s{S_OC0}, s{S_TMP}')
    a(f's_lshl_b32 s{S_Y0}, s{S_PXT}, 2')
    a(f's_mul_i32 s{S_LDS}, s{S_WAVE}, {WAVE_LDS}')
    a(f's_lshl_b32 s{S_LIN}, s{S_XCD}, 5\ns_add_u32 s{S_LIN}, s{S_LIN}, s{S_WITHIN}')
    a(f's_lshr_b32 s{S_IDX}, s{S_LIN}, 1')
    a('v_lshlrev_b32 v3, 1, v2\nv_lshl_add_u32 v3, v1, 9, v3')
    a(f'v_lshlrev_b32 v{V_L16}, 4, v2')
    a(f's_lshl_b32 s{S_TMP+4}, s{S_IDX}, 14')
    a(f's_lshl_b32 s{S_TMP+6}, s{S_WAVE}, 12\ns_add_u32 s{S_O1}, s{S_TMP+4}, s{S_TMP+6}\ns_add_u32 s{S_O1}, s{S_O1}, {A1_OFF}')
    a(f's_and_b32 s{S_TMP+5}, s{S_IDX}, 63\ns_lshl_b32 s{S_TMP+5}, s{S_TMP+5}, 4')
    a(f's_or_b32 s{S_TMP+7}, s2, s{S_WAVE}')
    a(f's_mov_b32 s{S_C}, 0x{NLOG2E:x}\ns_mov_b32 s{S_C+1}, 0x{NLOG2E:x}\ns_mov_b32 s{S_C+2}, 1.0\ns_mov_b32 s{S_C+3}, 1.0')
    a('s_waitcnt lgkmcnt(0)')
    srd(a, R_B, S_DBG, S_DBG+1, 256)
    a(f's_cmp_lg_u32 s{S_TMP+7}, 0\ns_cbranch_scc1 L_noep')
    a(f's_or_b32 s{S_TS+2}, s{S_TS+2}, 1\nv_mov_b32 v5, s{S_TS+2}\nv_mov_b32 v4, 0')
    a(f'buffer_store_dword v5, v4, s[{R_B}:{R_B+3}], 0 offen {SC}')
    a.label('L_noep')
    srd(a, R_X, S_X, S_X+1, 2097152)
    srd(a, R_WS, S_WS, S_WS+1, WS_SIZE)
    a(f's_bitcmp1_b32 s{S_WITHIN}, 0\ns_cbranch_scc1 L_warm')

    def get_epoch(nm, v0_):
        a(f'v_mov_b32 v13, 0\ns_mov_b32 s{S_TMP+1}, 0')
        a.label(nm)
        a(f'v_readfirstlane_b32 s{S_E}, v{v0_}')
        a(f's_add_u32 s{S_TMP+1}, s{S_TMP+1}, 1')
        a(f's_cmp_lg_u32 s{S_E}, 0\ns_cbranch_scc1 {nm}ok')
        a(f's_cmp_gt_u32 s{S_TMP+1}, 0x40000\ns_cbranch_scc1 {nm}ok')
        a(f'buffer_load_dword v{v0_}, v13, s[{R_B}:{R_B+3}], 0 offen {SC}')
        a(f's_waitcnt vmcnt(0)\ns_branch {nm}')
        a.label(nm + 'ok')

    def exchange(nm, vS, loc_own, glob_own, publisher_cond, nld, lanemask, loc_base, glob_base, vA, vL, mid=None):
        loc_own(); glob_own()
        def pub(sreg, flag):
            if publisher_cond: a(f's_cmp_lg_u32 s{S_WAVE}, 0\ns_cbranch_scc1 {nm}_np{len(a.L)}'); lab = a.L[-1].split()[-1]
            a(f'v_mov_b32 v{vA+1}, 0\nv_cmp_eq_u32 vcc, 0, v2\ns_and_saveexec_b64 s[{S_SAVE}:{S_SAVE+1}], vcc')
            a(f'buffer_store_dwordx4 v[{vS}:{vS+3}], v{vA+1}, {WSR}, s{sreg} offen {flag}')
            a(f's_mov_b64 exec, s[{S_SAVE}:{S_SAVE+1}]')
            if publisher_cond: a.label(lab)
        pub(S_TMP+2, '')
        a(f'v_and_b32 v{vA}, {lanemask}, v2\nv_lshlrev_b32 v{vA}, 4, v{vA}')
        loc_base()
        a(f's_mov_b32 s{S_TMP+1}, 0\ns_movk_i32 s{S_TMP+4}, 1024')
        if mid: mid()
        a.label(nm)
        for i in range(nld):
            if i == 0:
                a(f'buffer_load_dwordx4 v[{vL}:{vL+3}], v{vA}, {WSR}, s{S_TMP} offen {SC}')
            else:
                a(f's_add_u32 s{S_TMP+5}, s{S_TMP}, s{S_TMP+4}')
                a(f'buffer_load_dwordx4 v[{vL+4}:{vL+7}], v{vA}, {WSR}, s{S_TMP+5} offen {SC}')
        a('s_waitcnt vmcnt(0)')
        a(f'v_xor_b32 v{vA+1}, s{S_E}, v{vL+1}\nv_xor_b32 v{vA+2}, s{S_E}, v{vL+3}')
        if nld == 2:
            a(f'v_xor_b32 v{vA+3}, s{S_E}, v{vL+5}\nv_or3_b32 v{vA+1}, v{vA+1}, v{vA+2}, v{vA+3}\nv_xor_b32 v{vA+2}, s{S_E}, v{vL+7}')
        a(f'v_or_b32 v{vA+1}, v{vA+1}, v{vA+2}')
        a(f'v_cmp_eq_u32 vcc, 0, v{vA+1}')
        a(f's_add_u32 s{S_TMP+1}, s{S_TMP+1}, 1')
        a(f's_cmp_eq_u64 vcc, exec\ns_cbranch_scc1 {nm}_ok')
        a(f's_cmp_lg_u32 s{S_TMP+1}, {KGLOB}\ns_cbranch_scc1 {nm}_c1')
        pub(S_TMP+3, SC)
        a.label(f'{nm}_c1')
        a(f's_cmp_lg_u32 s{S_TMP+1}, {NLOC}\ns_cbranch_scc1 {nm}_c2')
        a(f'v_lshlrev_b32 v{vA}, 3, v{vA}\ns_movk_i32 s{S_TMP+4}, 8192')
        glob_base()
        a.label(f'{nm}_c2')
        a(f's_cmp_lt_u32 s{S_TMP+1}, 0x40000\ns_cbranch_scc1 {nm}')
        a.label(f'{nm}_ok')
        a(f's_cmp_gt_u32 s{S_TMP+1}, {KGLOB}\ns_cbranch_scc1 {nm}_c3')
        pub(S_TMP+3, SC)
        a.label(f'{nm}_c3')
        if nld == 2:
            a(f'v_add_f32 v{vL}, v{vL}, v{vL+4}\nv_add_f32 v{vL+2}, v{vL+2}, v{vL+6}\ns_nop 0')
        red2(a, vL, vL+2, S_R1, S_R2)

    def mean_rstd(inv, vm):
        ib = f2u(inv)
        a(f'v_mov_b32 v{vm}, 0x{ib:x}\ns_nop 0')
        a(f'v_mul_f32 v{vm+2}, s{S_R2}, v{vm}\nv_mul_f32 v{vm}, s{S_R1}, v{vm}')
        a(f'v_fma_f32 v{vm+2}, -v{vm}, v{vm}, v{vm+2}\nv_max_f32 v{vm+2}, 0, v{vm+2}\nv_add_f32 v{vm+2}, 0x3727c5ac, v{vm+2}')
        a(f'v_rsq_f32 v{vm+2}, v{vm+2}\nv_sub_f32 v{vm}, 0, v{vm}\nv_mov_b32 v{vm+1}, v{vm}\nv_mov_b32 v{vm+3}, v{vm+2}')

    m0cur = [None]
    def set_m0(v):
        if m0cur[0] != v:
            a(f's_add_u32 m0, s{S_LDS}, {v}'); m0cur[0] = v
    def fix_m0():
        if a.L[-1].startswith('s_add_u32 m0'): a('s_nop 0')
    def wsegs(kk):
        return list(range(10)) if ((kk % 8)//2) % 2 == 0 else list(range(1, 9))
    wdone = set(); rawdone = set(); permdone = set()
    def dma_w_pre(kk, n):
        if kk >= 2: assert (kk-2) in rawdone, kk
        if 'w' in NOVM: return
        if kk >= 2: a.need(ltags=[('R', kk-2, 8)])
        if kk == 8 and n == 0:
            srd(a, R_WQ, S_W2, S_W2+1, 4718592+4096, -4096)
        set_m0((kk % 2)*WSLOT + (n - n % 4)*1024)
    def dma_w(kk, n):
        if n == wsegs(kk)[-1]: wdone.add(kk)
        if 'w' in NOVM: return
        assert m0cur[0] == (kk % 2)*WSLOT + (n - n % 4)*1024
        fix_m0()
        a.vmem(f'buffer_load_dwordx4 v{V_WD+n}, s[{R_WQ}:{R_WQ+3}], s{S_WOFF + kk % 8} offen offset:{(n%4)*1024} lds', tag=('W', kk))
    atmp = [None]; adone = set()
    def dma_a_pre(conv, u, kq):
        if 'a' in NOVM: return
        s, j = divmod(u, 3)
        set_m0(A_BASE + (u % NA)*4096)
        key = (conv, s)
        if atmp[0] != key:
            a(f's_add_u32 s{S_TMP+9}, s{S_AOFF+s}, {A1_OFF if conv == 0 else A2_OFF}'); atmp[0] = key
    def dma_a(conv, u, kq):
        if kq == 3: adone.add((conv, u))
        if 'a' in NOVM: return
        s, j = divmod(u, 3)
        assert m0cur[0] == A_BASE + (u % NA)*4096
        fix_m0()
        a.vmem(f'buffer_load_dwordx4 v{V_AD+4*j+kq}, {WSR}, s{S_TMP+9} offen offset:{kq*1024} lds', tag=('A', conv, u))
    def rd_raw(kk, j):
        assert kk in wdone, kk
        if kk >= 1: assert (kk-1) in permdone, kk
        a.need(vtags=[('W', kk)])
        m = j % 4
        odd = ((kk % 8)//2) % 2 == 1
        reg = (V_WRX if (odd and j < 4) else V_WR) + m
        a.lds(f'ds_read_b128 v[{V_RAW+4*j}:{V_RAW+4*j+3}], v{reg} offset:{(kk % 2)*WSLOT + (j//4)*1024}', tag=('R', kk, j))
        if j == 8: rawdone.add(kk)
    def perm(kk, i):
        assert kk in rawdone, kk
        m, t = divmod(i, 9)
        lo = 9*m + t//2; hi = 9*m + (t+9)//2
        if t == 0:
            a.need(ltags=[('R', kk, (9*m+8)//4)])
        d = wf(kk, t) + m
        if t % 2 == 0:
            a(f'v_bfi_b32 v{d}, s{S_FFFF}, v{V_RAW+lo}, v{V_RAW+hi}')
        else:
            a(f'v_alignbit_b32 v{d}, v{V_RAW+hi}, v{V_RAW+lo}, 16')
        if i == 35: permdone.add(kk)
    issued = set()
    def rd_af(conv, s, r, half, dx):
        u = s*3 + r//2
        assert (conv, u) in adone, (conv, u)
        a.need(vtags=[('A', conv, u)])
        reg = V_AR
        if dx == 0 and half == 0: reg = V_AR+1
        if dx == 2 and half == 1: reg = V_AR+2
        off = (u % NA)*4096 + (r % 2)*512 + half*256 + (dx-1)*16
        if reg == V_AR+1: off += 16
        d = af(r, half, dx)
        a.lds(f'ds_read_b128 a[{d}:{d+3}], v{reg} offset:{off}', tag=('F', s, r, half, dx))
        issued.add((conv, s, r, half, dx))
    def w_dma_all(kk):
        for n in wsegs(kk):
            dma_w_pre(kk, n); dma_w(kk, n)
    def w_rawperm(kk, doperm=True):
        for j in range(9): rd_raw(kk, j)
        if doperm:
            for i in range(36): perm(kk, i)

    def setup():
        a('v_lshrrev_b32 v4, 2, v2\nv_and_b32 v5, 3, v2')
        a('v_bfe_u32 v6, v4, 3, 1\nv_lshlrev_b32 v6, 1, v6\nv_xor_b32 v5, v5, v6')
        a(f's_movk_i32 s{S_TMP}, 9216\nv_add_u32 v4, s{S_OC0}, v4\nv_mul_u32_u24 v4, s{S_TMP}, v4\nv_lshl_add_u32 v4, v5, 4, v4')
        for n in range(10):
            a(f'v_add_u32 v{V_WD+n}, {4096 + n*64 - (n%4)*1024}, v4')
        srd(a, R_WQ, S_W1, S_W1+1, 4718592+4096, -4096)
        a(f's_mul_i32 s{S_WOFF}, s{S_WAVE}, 2304')
        for k in range(1, 8):
            a(f's_add_u32 s{S_WOFF+k}, s{S_WOFF}, {(k//2)*576 + (k%2)*147456}')
        a(f's_lshl_b32 s{S_TMP}, s{S_BB}, 20')
        a('v_mov_b32 v5, 0x7ff00000')
        for j in range(3):
            a(f'v_lshrrev_b32 v3, 5, v2\nv_add_u32 v3, {2*j}, v3\nv_add_u32 v3, s{S_Y0}, v3\nv_subrev_u32 v3, 1, v3')
            a('v_and_b32 v4, 31, v2\nv_lshlrev_b32 v4, 4, v4\nv_lshl_add_u32 v4, v3, 9, v4')
            a(f'v_add_u32 v4, s{S_TMP}, v4')
            a('v_cmp_gt_u32 vcc, 32, v3\ns_nop 1')
            a(f'v_cndmask_b32 v{V_AD+4*j}, v5, v4, vcc')
            for kq in range(1, 4):
                a(f'v_add_u32 v{V_AD+4*j+kq}, {kq*15360}, v{V_AD+4*j}')
        a('v_and_b32 v3, 15, v2\nv_lshrrev_b32 v4, 4, v2')
        a(f's_add_u32 s{S_TMP}, s{S_LDS}, {A_BASE}')
        a(f'v_lshlrev_b32 v{V_AR}, 10, v4\nv_lshl_add_u32 v{V_AR}, v3, 4, v{V_AR}\nv_add_u32 v{V_AR}, s{S_TMP}, v{V_AR}')
        a(f'v_mov_b32 v5, 163840\nv_subrev_u32 v6, 16, v{V_AR}')
        a(f'v_cmp_eq_u32 vcc, 0, v3\ns_nop 1\nv_cndmask_b32 v{V_AR+1}, v6, v5, vcc')
        a(f'v_cmp_eq_u32 vcc, 15, v3\ns_nop 1\nv_cndmask_b32 v{V_AR+2}, v{V_AR}, v5, vcc')
        a(f'v_add_u32 v{V_PW}, s{S_TMP}, v{V_L16}')
        a('v_bfe_u32 v6, v3, 3, 1\nv_lshlrev_b32 v6, 1, v6\nv_mul_u32_u24 v5, 9, v4')
        a(f'v_lshlrev_b32 v7, 6, v3\nv_add_u32 v7, s{S_LDS}, v7')
        a('v_mov_b32 v10, 0\nv_mov_b32 v11, 9216\nv_cmp_eq_u32 vcc, 0, v4\ns_nop 1\nv_cndmask_b32 v10, v10, v11, vcc')
        for m in range(4):
            a(f'v_add_u32 v8, {m}, v5\nv_lshrrev_b32 v9, 2, v8\nv_and_b32 v8, 3, v8\nv_xor_b32 v8, v8, v6')
            a(f'v_lshl_add_u32 v{V_WR+m}, v9, 10, v7\nv_lshl_add_u32 v{V_WR+m}, v8, 4, v{V_WR+m}')
            a(f'v_add_u32 v{V_WRX+m}, v{V_WR+m}, v10')
        a(f's_mov_b32 s{S_FFFF}, 0xffff')
        a(f's_lshl_b32 s{S_AOFF}, s{S_WAVE}, 18')
        for s in range(1, 4):
            a(f's_add_u32 s{S_AOFF+s}, s{S_AOFF}, {s*65536}')
        a(f's_lshl_b32 s{S_TMP}, s{S_BB}, 2\ns_add_u32 s{S_TMP}, s{S_TMP}, s{S_WAVE}\ns_lshl_b32 s{S_TMP}, s{S_TMP}, 5')
        a(f'v_lshlrev_b32 v6, 1, v3\nv_add_u32 v{V_PF0}, s{S_TMP}, v6')
        a('v_and_b32 v5, 31, v2')
        a(f'v_lshrrev_b32 v6, 2, v5\nv_subrev_u32 v7, s{S_PXT}, v6\nv_add_u32 v7, 1, v7')
        a(f'v_mov_b32 v8, s{S_PXT}\nv_cmp_gt_u32 vcc, 3, v7\ns_nop 1\nv_cndmask_b32 v6, v8, v6, vcc')
        a(f'v_and_b32 v7, 3, v5\nv_lshl_add_u32 v6, v6, 2, v7\nv_add_u32 v6, s{S_TMP}, v6\nv_lshlrev_b32 v{V_PF1}, 7, v6')
        a(f's_lshl_b32 s{S_TMP+1}, s{S_XCD}, 5\ns_lshl_b32 s{S_TMP+2}, s{S_OCT}, 1\ns_add_u32 s{S_TMP+1}, s{S_TMP+1}, s{S_TMP+2}\ns_add_u32 s{S_TMP+1}, s{S_TMP+1}, 1')
        a(f'v_and_b32 v6, 3, v2\nv_lshlrev_b32 v6, 3, v6\nv_add_u32 v6, s{S_TMP+1}, v6\nv_lshlrev_b32 v{V_PF2}, 7, v6')
        a(f'v_lshlrev_b32 v6, 6, v2\nv_mov_b32 v7, 0x7ff00000\nv_cmp_gt_u32 vcc, 18, v2\ns_nop 1\nv_cndmask_b32 v{V_PFX}, v7, v6, vcc')
        a(f'v_lshlrev_b32 v{V_PF0}, 7, v{V_PF0}')
    X0 = V_H
    for c in range(8):
        if c % 2 == 0 and c:
            a(f's_add_u32 s{S_TMP+4}, s{S_TMP+4}, 4096')
        for q in range(4):
            a(f'buffer_load_ushort v{X0+8*q+c}, v3, s[{R_X}:{R_X+3}], s{S_TMP+4} offen offset:{(c%2)*2048+q*128} {NTX}')
    a(f's_add_u32 s{S_G1}, s{S_G1}, s{S_TMP+5}\ns_addc_u32 s{S_G1+1}, s{S_G1+1}, 0')
    a(f's_add_u32 s{S_B1}, s{S_B1}, s{S_TMP+5}\ns_addc_u32 s{S_B1+1}, s{S_B1+1}, 0')
    GB = 72
    a(f's_load_dwordx4 s[{GB}:{GB+3}], s[{S_G1}:{S_G1+1}], 0\ns_load_dwordx4 s[{GB+4}:{GB+7}], s[{S_B1}:{S_B1+1}], 0')
    EP = V_H + 32
    eps = [int(x) for x in EPS.split(',')]
    def touch():
        if TOUCH:
            a(f's_lshl_b32 s{S_TMP}, s{S_XCD}, 8\ns_add_u32 s{S_TMP}, s{S_TMP}, {ST1L_OFF}')
            a(f'buffer_load_dword v{EP+4}, v{V_L16}, {WSR}, s{S_TMP} offen {SC}')
            a(f's_lshl_b32 s{S_TMP}, s{S_XCD}, 11\ns_add_u32 s{S_TMP}, s{S_TMP}, {ST2L_OFF}')
            a(f'buffer_load_dword v{EP+4}, v{V_L16}, {WSR}, s{S_TMP} offen {SC}')
            a(f'buffer_load_dword v{EP+4}, v{V_L16}, {WSR}, s{S_TMP} offen offset:1024 {SC}')
        if TOUCH & 2:
            a(f'v_lshlrev_b32 v5, 6, v2')
            a(f'buffer_load_dword v{EP+4}, v5, {WSR}, s{S_O1} offen {SC}')
        if TOUCH & 4:
            a(f's_lshl_b32 s{S_TMP}, s{S_LIN}, 7\ns_add_u32 s{S_TMP}, s{S_TMP}, {F0_OFF}\nv_mov_b32 v5, 0')
            a(f'buffer_load_dword v{EP+4}, v5, {WSR}, s{S_TMP} offen {SC}')
    touch()
    setup()
    a(f's_cmp_eq_u32 s{S_WAVE}, 0\ns_cbranch_scc1 L_w0a')
    a('s_waitcnt vmcnt(0)\ns_branch L_stat')
    a.label('L_w0a')
    a('v_mov_b32 v13, 0')
    for i in range(3):
        a(f'v_mov_b32 v{EP+i}, 0')
    for i, sl in enumerate(eps):
        a(f's_sleep {sl}')
        a(f'buffer_load_dword v{EP+i}, v13, s[{R_B}:{R_B+3}], 0 offen {SC}')
    a(f's_waitcnt vmcnt({len(eps)})')
    a.label('L_stat')
    stamp(0)
    for c in range(32):
        a(f'v_lshlrev_b32 v{X0+c}, 16, v{X0+c}')
    a(f'v_pk_add_f32 v[8:9], v[{X0}:{X0+1}], v[{X0+2}:{X0+3}]\nv_pk_mul_f32 v[10:11], v[{X0}:{X0+1}], v[{X0}:{X0+1}]')
    a(f'v_pk_fma_f32 v[10:11], v[{X0+2}:{X0+3}], v[{X0+2}:{X0+3}], v[10:11]')
    for c in range(4, 32, 2):
        a(f'v_pk_add_f32 v[8:9], v[8:9], v[{X0+c}:{X0+c+1}]\nv_pk_fma_f32 v[10:11], v[{X0+c}:{X0+c+1}], v[{X0+c}:{X0+c+1}], v[10:11]')
    a('v_add_f32 v8, v8, v9\nv_add_f32 v9, v10, v11\ns_nop 0')
    red2(a, 8, 9, S_R1, S_R2)
    a(f's_lshl_b32 s{S_TMP}, s{S_WAVE}, 3\ns_add_u32 s{S_TMP}, s{S_TMP}, {MISC}\nv_mov_b32 v10, s{S_TMP}')
    a(f'v_mov_b32 v8, s{S_R1}\nv_mov_b32 v9, s{S_R2}')
    a('ds_write_b64 v10, v[8:9]')
    a(f's_cmp_lg_u32 s{S_WAVE}, 0\ns_cbranch_scc1 L_b1')
    a('s_waitcnt vmcnt(0)')
    a(f'v_or3_b32 v12, v{EP}, v{EP+1}, v{EP+2}')
    get_epoch('L_ep', 12)
    a(f'v_mov_b32 v10, {MISC+32}\nds_write_b32 v10, v12')
    stamp(16)
    if ts: a(f'v_mov_b32 v15, s{S_TMP+1}\nv_accvgpr_write_b32 a{A_TS+19}, v15')
    a.label('L_b1')
    SCLV = V_P0; SHF = V_P0 + 8
    a('s_waitcnt lgkmcnt(0)')
    for c in range(8):
        g = GB + c//2; be = GB + 4 + c//2
        if c % 2 == 0:
            a(f's_lshl_b32 s{S_R1}, s{g}, 16\ns_lshl_b32 s{S_R2}, s{be}, 16')
        else:
            a(f's_and_b32 s{S_R1}, s{g}, 0xffff0000\ns_and_b32 s{S_R2}, s{be}, 0xffff0000')
        a(f'v_mov_b32 v{SCLV+c}, s{S_R1}\nv_mov_b32 v{SHF+c}, s{S_R2}')
    a('s_barrier')
    a(f'v_mov_b32 v12, {MISC}')
    a('ds_read_b128 v[4:7], v12\nds_read_b128 v[8:11], v12 offset:16\nds_read_b32 v13, v12 offset:32')
    a('s_waitcnt lgkmcnt(0)')
    a(f'v_readfirstlane_b32 s{S_E}, v13')
    a('v_pk_add_f32 v[4:5], v[4:5], v[6:7]\nv_pk_add_f32 v[8:9], v[8:9], v[10:11]\nv_pk_add_f32 v[4:5], v[4:5], v[8:9]')
    a('v_mov_b32 v6, v5\nv_mov_b32 v5, v13\nv_mov_b32 v7, v13')
    exchange('L_p1', 4,
             lambda: a(f's_lshl_b32 s{S_TMP+2}, s{S_IDX}, 4\ns_add_u32 s{S_TMP+2}, s{S_TMP+2}, {ST1L_OFF}'),
             lambda: a(f's_lshl_b32 s{S_TMP+3}, s{S_IDX}, 7\ns_add_u32 s{S_TMP+3}, s{S_TMP+3}, {ST1G_OFF}'),
             True, 1, 15,
             lambda: a(f's_lshl_b32 s{S_TMP}, s{S_XCD}, 8\ns_add_u32 s{S_TMP}, s{S_TMP}, {ST1L_OFF}'),
             lambda: a(f's_lshl_b32 s{S_TMP}, s{S_XCD}, 11\ns_add_u32 s{S_TMP}, s{S_TMP}, {ST1G_OFF}'),
             12, 8)
    stamp(1)
    if ts: a(f'v_mov_b32 v15, s{S_TMP+1}\nv_accvgpr_write_b32 a{A_TS+18}, v15')
    a.vq = []; a.lq = []
    mean_rstd(1.0/(4*131072), 8)
    for c in range(0, 8, 2):
        a(f'v_pk_mul_f32 v[{SCLV+c}:{SCLV+c+1}], v[{SCLV+c}:{SCLV+c+1}], v[10:11]')
        a(f'v_pk_fma_f32 v[{SHF+c}:{SHF+c+1}], v[{SCLV+c}:{SCLV+c+1}], v[8:9], v[{SHF+c}:{SHF+c+1}]')
    ZT = V_P0 + 16
    for q in range(4):
        Z = X0 + 8*q
        for c in range(0, 8, 2):
            a(f'v_pk_fma_f32 v[{Z+c}:{Z+c+1}], v[{Z+c}:{Z+c+1}], v[{SCLV+c}:{SCLV+c+1}], v[{SHF+c}:{SHF+c+1}]')
        silu_pk(a, Z, ZT, 8)
        for i in range(4):
            a(f'v_cvt_pk_bf16_f32 v{Z+i}, v{Z+2*i}, v{Z+2*i+1}')
        a.vmem(f'buffer_store_dwordx4 v[{Z}:{Z+3}], v{V_L16}, {WSR}, s{S_O1} offen offset:{1024*q} {SC}', tag='st')
    a('s_branch L_join')

    a.label('L_warm')
    wdone.clear(); m0cur[0] = None; a.vq = []; a.lq = []
    EW = V_WF
    EA = V_WF + 16
    ET = V_WF + 24
    a(f's_lshr_b32 s{S_TMP+8}, s{S_WITHIN}, 1\ns_and_b32 s{S_TMP+9}, s{S_TMP+8}, 3\ns_lshr_b32 s{S_TMP+10}, s{S_TMP+8}, 2')
    if CPF:
        a(f's_getpc_b64 s[{R_A}:{R_A+1}]')
        a(f's_and_b32 s{R_A+1}, s{R_A+1}, 0xffff\ns_mov_b32 s{R_A+2}, {CPF}\ns_mov_b32 s{R_A+3}, 0x20000')
        a(f's_lshl_b32 s{S_TMP}, s{S_TMP+8}, 2\ns_add_u32 s{S_TMP}, s{S_TMP}, s{S_WAVE}\ns_lshl_b32 s{S_TMP}, s{S_TMP}, 10')
        a(f'buffer_load_dwordx4 v[{V_H}:{V_H+3}], v{V_L16}, s[{R_A}:{R_A+3}], s{S_TMP} offen')
    srd(a, R_A, S_WE, S_WE+1, 786432)
    a('v_lshrrev_b32 v6, 2, v0\nv_and_b32 v5, 3, v0')
    a('v_lshlrev_b32 v7, 10, v6\nv_lshl_add_u32 v7, v5, 4, v7')
    a(f's_mul_i32 s{S_TMP}, s{S_TMP+10}, {192*1024}\ns_lshl_b32 s{S_TMP+1}, s{S_G}, 8\ns_add_u32 s{S_TMP}, s{S_TMP}, s{S_TMP+1}')
    a(f's_lshl_b32 s{S_TMP+1}, s{S_TMP+9}, 6\ns_add_u32 s{S_TMP}, s{S_TMP}, s{S_TMP+1}')
    for i in range(3):
        if i: a(f's_add_u32 s{S_TMP}, s{S_TMP}, 65536')
        a(f'buffer_load_dwordx4 v[{EW+4*i}:{EW+4*i+3}], v7, s[{R_A}:{R_A+3}], s{S_TMP} offen')
    srd(a, R_A, S_T, S_T+1, 3072)
    a(f'v_lshlrev_b32 v7, 1, v6\ns_mul_i32 s{S_TMP}, s{S_BB}, 1536\ns_mul_i32 s{S_TMP+1}, s{S_TMP+10}, 384\ns_add_u32 s{S_TMP}, s{S_TMP}, s{S_TMP+1}')
    for i in range(3):
        a(f'buffer_load_ushort v{EW+12+i}, v7, s[{R_A}:{R_A+3}], s{S_TMP} offen offset:{128*i}')
    a(f'v_mov_b32 v{EW+15}, 0')
    if WDLY: a(f's_sleep {WDLY}')
    nbulk = 0
    DUM = V_H
    for bit, ptr in ((1, S_W1), (2, S_W2)):
        if WARM & bit:
            srd(a, R_A, ptr, ptr+1, 4718592)
            if DUP & bit:
                a(f's_lshl_b32 s{S_TMP}, s{S_G}, 6\ns_lshl_b32 s{S_TMP+1}, s{S_TMP+8}, 2\ns_add_u32 s{S_TMP}, s{S_TMP}, s{S_TMP+1}\ns_add_u32 s{S_TMP}, s{S_TMP}, s{S_WAVE}\ns_mul_i32 s{S_TMP}, s{S_TMP}, 18432')
                nl = 18
            else:
                a(f's_lshl_b32 s{S_TMP}, s{S_G}, 7\ns_lshl_b32 s{S_TMP+1}, s{S_TMP+8}, 2\ns_add_u32 s{S_TMP}, s{S_TMP}, s{S_TMP+1}\ns_add_u32 s{S_TMP}, s{S_TMP}, s{S_WAVE}')
                a(f's_lshl_b32 s{S_TMP+1}, s{S_BB}, 6\ns_add_u32 s{S_TMP}, s{S_TMP}, s{S_TMP+1}\ns_mul_i32 s{S_TMP}, s{S_TMP}, 9216')
                nl = 9
            for i in range(nl):
                if i % 4 == 0 and i: a(f's_add_u32 s{S_TMP}, s{S_TMP}, 4096')
                a(f'buffer_load_dwordx4 v[{DUM}:{DUM+3}], v{V_L16}, s[{R_A}:{R_A+3}], s{S_TMP} offen offset:{(i%4)*1024} {NT1 if bit == 1 else NT2}')
                nbulk += 1
    setup()
    a(f's_waitcnt vmcnt({nbulk})')
    stamp(0)
    for i in range(3):
        a(f'v_lshlrev_b32 v{EW+12+i}, 16, v{EW+12+i}')
    silu_pk(a, EW+12, ET, 4)
    for i in range(3):
        for d in range(4):
            op = 'v_mul_f32' if i == 0 else 'v_fmac_f32'
            a(f'v_lshlrev_b32 v4, 16, v{EW+4*i+d}\nv_and_b32 v5, 0xffff0000, v{EW+4*i+d}')
            a(f'{op} v{EA+2*d}, v4, v{EW+12+i}\n{op} v{EA+2*d+1}, v5, v{EW+12+i}')
    for mod in ('row_ror:4 row_mask:0xf', 'row_ror:8 row_mask:0xf'):
        a('s_nop 1')
        for e in range(8):
            a(f'v_add_f32_dpp v{EA+e}, v{EA+e}, v{EA+e} {mod} bank_mask:0xf')
    for sw in ('v_permlane16_swap_b32', 'v_permlane32_swap_b32'):
        for e in range(8):
            a(f'v_mov_b32 v{ET+e}, v{EA+e}')
        a('s_nop 1')
        for e in range(8):
            a(f'{sw} v{EA+e}, v{ET+e}')
        a('s_nop 1')
        for e in range(8):
            a(f'v_add_f32 v{EA+e}, v{EA+e}, v{ET+e}')
    a(f's_lshl_b32 s{S_TMP}, s{S_XCD}, 2\ns_add_u32 s{S_TMP}, s{S_TMP}, s{S_TMP+9}\ns_lshl_b32 s{S_TMP}, s{S_TMP}, 2\ns_add_u32 s{S_TMP}, s{S_TMP}, s{S_TMP+10}')
    a(f's_lshl_b32 s{S_TMP}, s{S_TMP}, 2\ns_add_u32 s{S_TMP}, s{S_TMP}, s{S_WAVE}\ns_lshl_b32 s{S_TMP}, s{S_TMP}, 7\ns_add_u32 s{S_TMP}, s{S_TMP}, {EMBP_OFF}')
    a('v_lshlrev_b32 v4, 5, v2')
    a(f'v_cmp_gt_u32 vcc, 4, v2\ns_and_saveexec_b64 s[{S_SAVE}:{S_SAVE+1}], vcc')
    a(f'buffer_store_dwordx4 v[{EA}:{EA+3}], v4, {WSR}, s{S_TMP} offen {SC}')
    a(f'buffer_store_dwordx4 v[{EA+4}:{EA+7}], v4, {WSR}, s{S_TMP} offen offset:16 {SC}')
    a(f's_mov_b64 exec, s[{S_SAVE}:{S_SAVE+1}]')
    a('v_mov_b32 v12, 0')
    get_epoch('L_ep2', 12)
    stamp(1)
    a.label('L_join')
    a.vq = ['st']; a.lq = []
    stamps[0] = 2
    m0cur[0] = None
    a('v_and_b32 v3, 15, v2\nv_lshrrev_b32 v4, 4, v2')
    if E('FINE'): stamp(19)
    if PREF >= 1: w_dma_all(0)
    if PREF >= 2: w_dma_all(1)
    if E('FINE'): stamp(17)
    a.need(vtags=['st'])
    if E('FINE'): stamp(18)
    a('s_barrier')
    def flag_store(off):
        a(f's_cmp_lg_u32 s{S_WAVE}, 0\ns_cbranch_scc1 L_nf{off:x}')
        a(f's_lshl_b32 s{S_TMP}, s{S_LIN}, 7\ns_add_u32 s{S_TMP}, s{S_TMP}, {off}')
        a(f'v_mov_b32 v5, s{S_E}\nv_mov_b32 v6, 0')
        a(f'v_cmp_eq_u32 vcc, 0, v2\ns_and_saveexec_b64 s[{S_SAVE}:{S_SAVE+1}], vcc')
        a(f'buffer_store_dword v5, v6, {WSR}, s{S_TMP} offen {SC}')
        a(f's_mov_b64 exec, s[{S_SAVE}:{S_SAVE+1}]')
        a.label(f'L_nf{off:x}')
    def flag_poll(off, vaddr, name, mid=None):
        a(f's_mov_b32 s{S_TMP+1}, 0\ns_mov_b32 s{S_TMP}, {off}')
        if mid:
            t = a.vmem(f'buffer_load_dword v5, v{vaddr}, {WSR}, s{S_TMP} offen {SC}')
            mid()
            a.need(vtags=[t])
            keep = list(a.vq)
            a(f'v_cmp_eq_u32 vcc, s{S_E}, v5\ns_nop 0\ns_cmp_eq_u64 vcc, exec\ns_cbranch_scc1 {name}ok')
        a.label(name)
        a(f'buffer_load_dword v5, v{vaddr}, {WSR}, s{S_TMP} offen {SC}')
        a('s_waitcnt vmcnt(0)')
        a(f'v_cmp_eq_u32 vcc, s{S_E}, v5')
        a(f's_add_u32 s{S_TMP+1}, s{S_TMP+1}, 1')
        a(f's_cmp_eq_u64 vcc, exec\ns_cbranch_scc1 {name}ok')
        a(f's_cmp_lt_u32 s{S_TMP+1}, 0x40000\ns_cbranch_scc1 {name}')
        a.label(name + 'ok')
        a.vq = keep if mid else []
    flag_store(F0_OFF)
    stamp()

    if ORD == 0:
        if PREF < 1: w_dma_all(0)
        if PREF < 2: w_dma_all(1)
        w_rawperm(0)
        w_dma_all(2)
    else:
        if PREF < 1: w_dma_all(0)
        if PREF < 2 and ORD == 2: w_dma_all(1)
        w_rawperm(0)
        if PREF < 2 and ORD == 1: w_dma_all(1)
    if DLY0: a(f's_sleep {DLY0}')
    flag_poll(F0_OFF, V_PF0, 'L_p2', (lambda: w_dma_all(2)) if ORD else None)
    stamp()

    H = V_H; PL = V_H + 16
    def conv(ci):
        which = ci + 1
        PACE = float(E('PACE%d' % which, '5.0'))
        ex = []
        for u in range(3):
            dma_a_pre(ci, u, 0)
            for kq in range(4): dma_a(ci, u, kq)
        if ci == 0: w_rawperm(1)
        for r in range(3):
            for half in range(2):
                for dx in range(3):
                    rd_af(ci, 0, r, half, dx)
        items = []
        def put(gs, fn): items.append((gs, len(items), fn))
        row_slot = {}
        for s_ in range(4):
            for r in range(6):
                if r < 3:
                    if s_ == 0: row_slot[(s_, r)] = None; continue
                    base = 72*(2*s_-1) + 18*(r+1)
                else:
                    base = 72*(2*s_) + 18*(r-3) + (4 if r > 3 else 0)
                row_slot[(s_, r)] = base
                i = 0
                for half in range(2):
                    for dx in range(3):
                        put(base + 1 + (3*i)//2, (lambda ss=s_, r=r, half=half, dx=dx: rd_af(ci, ss, r, half, dx))); i += 1
        RAWS = 52
        raw_slot = {}
        for k_ in range(8):
            kk_ = ci*8 + k_
            p_ = kk_ + 1
            if p_ < 16 and p_ not in permdone and k_ >= 1:
                for i in range(36):
                    put(72*k_ + 1 + (i*4)//3, (lambda x=p_, i=i: perm(x, i)))
            r_ = kk_ + 2
            if r_ < 16 and r_ not in rawdone:
                rs = 72*k_ + (RAWS if k_ >= 1 else 30)
                raw_slot[r_] = rs
                for j in range(9):
                    put(rs + 2*j, (lambda x=r_, j=j: rd_raw(x, j)))
        ops = []
        for kk_ in range(ci*8, 16):
            if kk_ in wdone: continue
            if (kk_-2) in rawdone: ea = 0
            elif (kk_-2) in raw_slot: ea = raw_slot[kk_-2] + 22
            else: continue
            if ea > 560: continue
            dl = raw_slot.get(kk_, 72*8 + 40*(kk_ - ci*8))
            for n in wsegs(kk_):
                ops.append((dl, ea, (lambda x=kk_, n=n: dma_w_pre(x, n)), (lambda x=kk_, n=n: dma_w(x, n)), kk_))
        for u in range(3, 12):
            s_, j = divmod(u, 3)
            dl = row_slot[(s_, 2*j)] or 0
            ea = 0
            if u >= NA:
                ps, pj = divmod(u - NA, 3)
                ea = (row_slot[(ps, 2*pj+1)] or 0) + 14
            for kq in range(4):
                def pre(u=u, kq=kq):
                    if u >= NA:
                        ps, pj = divmod(u - NA, 3)
                        assert (ci, ps, 2*pj+1, 1, 2) in issued
                        a.need(ltags=[('F', ps, 2*pj+1, 1, 2)])
                    dma_a_pre(ci, u, kq)
                ops.append((dl, ea, pre, (lambda u=u, kq=kq: dma_a(ci, u, kq)), None))
        ops.sort(key=lambda o: o[0])
        cur = 4.0
        rem = list(ops)
        placed = []
        while rem:
            cand = [o for o in rem if o[1] <= cur]
            if not cand:
                cur = float(min(o[1] for o in rem)); continue
            o = cand[0]; rem.remove(o)
            placed.append((int(cur), o)); cur += PACE
        bad = set(o[4] for sl, o in placed if sl > 572)
        assert None not in bad
        for sl, o in placed:
            if o[4] in bad: continue
            if o[0] < 576 and sl > o[0] - 30: sys.stderr.write(f'warn conv{which}: op at {sl} deadline {o[0]}\n')
            put(sl-1, o[2]); put(sl, o[3])
        base = 72
        SCv = V_P0 + 4; SHv = V_P0 + 12
        if which == 1:
            ef = []
            put(72 + 2, lambda: a(f's_mov_b32 s{S_TMP+1}, {F0_OFF}'))
            put(72 + 4, lambda: ef.append(a.vmem(f'buffer_load_dword v{V_EX+16}, v{V_PF2}, {WSR}, s{S_TMP+1} offen {SC}')))
            def chk():
                a.need(vtags=ef)
                a(f'v_cmp_eq_u32 vcc, s{S_E}, v{V_EX+16}\ns_nop 0\ns_cmp_eq_u64 vcc, exec\ns_cbranch_scc0 L_embslow')
                a.label('L_embok')
            put(144 + 20, chk)
            for i, sl in enumerate([int(x) for x in TRK.split(',')] if TRK else []):
                h_, p_ = divmod(i, 2)
                def t0(i=i):
                    if i == 0:
                        srd(a, R_B, S_W2, S_W2+1, 4718592)
                def t1(i=i):
                    if i == 0:
                        a(f's_lshl_b32 s{S_TMP+10}, s{S_BB}, 5\ns_add_u32 s{S_TMP+10}, s{S_TMP+10}, s{S_WITHIN}\ns_lshl_b32 s{S_TMP+10}, s{S_TMP+10}, 2\ns_add_u32 s{S_TMP+10}, s{S_TMP+10}, s{S_WAVE}')
                        a(f's_lshl_b32 s{S_TMP+11}, s{S_G}, 8\ns_add_u32 s{S_TMP+10}, s{S_TMP+10}, s{S_TMP+11}\ns_mul_i32 s{S_TMP+10}, s{S_TMP+10}, 4608')
                def t2(h_=h_, p_=p_):
                    a.vmem(f'buffer_load_dword v{V_P0}, v{V_PFX}, s[{R_B}:{R_B+3}], s{S_TMP+10} offen offset:{p_*2304 + h_*1152}')
                put(sl-4, t0); put(sl-2, t1); put(sl, t2)
            seq = [lambda: a(f's_lshl_b32 s{S_TMP}, s{S_XCD}, 2\ns_add_u32 s{S_TMP}, s{S_TMP}, s{S_OCT}'),
                   lambda: a(f's_lshl_b32 s{S_TMP}, s{S_TMP}, 11\ns_add_u32 s{S_TMP}, s{S_TMP}, {EMBP_OFF}'),
                   lambda: a('v_lshlrev_b32 v5, 7, v3\nv_lshl_add_u32 v5, v4, 4, v5')]
            for o2 in range(2):
                seq.append(lambda o2=o2: ex.append(a.vmem(f'buffer_load_dwordx4 v[{V_EX+4*o2}:{V_EX+4*o2+3}], v5, {WSR}, s{S_TMP} offen offset:{64*o2} {SC}')))
            seq += [lambda: a(f's_mov_b32 s{R_A}, s{S_G2}\ns_and_b32 s{R_A+1}, s{S_G2+1}, 0xffff'), lambda: a(f's_movk_i32 s{R_A+2}, 1024\ns_mov_b32 s{R_A+3}, 0x20000'),
                    lambda: a(f'v_lshlrev_b32 v5, 3, v4\ns_lshl_b32 s{S_TMP}, s{S_OC0}, 1')]
            for o2 in range(2):
                seq.append(lambda o2=o2: ex.append(a.vmem(f'buffer_load_dwordx2 v[{V_EX+8+2*o2}:{V_EX+9+2*o2}], v5, s[{R_A}:{R_A+3}], s{S_TMP} offen offset:{o2*32}')))
            seq += [lambda: a(f's_mov_b32 s{R_A}, s{S_B2}\ns_and_b32 s{R_A+1}, s{S_B2+1}, 0xffff')]
            for o2 in range(2):
                seq.append(lambda o2=o2: ex.append(a.vmem(f'buffer_load_dwordx2 v[{V_EX+12+2*o2}:{V_EX+13+2*o2}], v5, s[{R_A}:{R_A+3}], s{S_TMP} offen offset:{o2*32}')))
            seq += [lambda: a('v_lshrrev_b32 v5, 1, v4\nv_lshlrev_b32 v5, 14, v5'), lambda: a('v_lshl_add_u32 v5, v3, 4, v5\nv_and_b32 v6, 1, v4'),
                    lambda: a(f'v_lshl_add_u32 v{V_EX+16}, v6, 8, v5\ns_lshl_b32 s{S_TMP}, s{S_BB}, 20'),
                    lambda: a(f's_lshl_b32 s{S_TMP+1}, s{S_OC0}, 11\ns_add_u32 s{S_TMP}, s{S_TMP}, s{S_TMP+1}'),
                    lambda: a(f's_add_u32 s{S_TMP+1}, s{S_Y0}, s{S_WAVE}\ns_lshl_b32 s{S_TMP+1}, s{S_TMP+1}, 9'),
                    lambda: a(f's_add_u32 s{S_O1}, s{S_TMP}, s{S_TMP+1}\ns_add_u32 s{S_O1}, s{S_O1}, {A2_OFF}'),
                    lambda: a(f's_add_u32 s{S_O2}, s{S_O1}, 32768')]
            for i, fn in enumerate(seq): put(144 + 24 + 3*i, fn)
            seq = [lambda: a.need(vtags=ex)]
            for mod in ('quad_perm:[1,0,3,2]', 'quad_perm:[2,3,0,1]', 'row_half_mirror', 'row_mirror'):
                for i in range(8):
                    seq.append(lambda mod=mod, i=i: a(f'v_add_f32_dpp v{V_EX+i}, v{V_EX+i}, v{V_EX+i} {mod} row_mask:0xf bank_mask:0xf'))
            for o2 in range(2):
                for i in range(4):
                    g = V_EX+8+2*o2+i//2; be = V_EX+12+2*o2+i//2; e = o2*4+i
                    if i % 2 == 0:
                        seq.append(lambda g=g, e=e: a(f'v_lshlrev_b32 v{SCv+e}, 16, v{g}')); seq.append(lambda be=be, e=e: a(f'v_lshlrev_b32 v{SHv+e}, 16, v{be}'))
                    else:
                        seq.append(lambda g=g, e=e: a(f'v_and_b32 v{SCv+e}, 0xffff0000, v{g}')); seq.append(lambda be=be, e=e: a(f'v_and_b32 v{SHv+e}, 0xffff0000, v{be}'))
            for i, fn in enumerate(seq): put(72*4 + 10 + 2*i, fn)
        else:
            seq = [lambda: a(f's_mov_b32 s{R_A}, s{S_OUT}\ns_and_b32 s{R_A+1}, s{S_OUT+1}, 0xffff'), lambda: a(f's_mov_b32 s{R_A+2}, 2097152\ns_mov_b32 s{R_A+3}, 0x20000'),
                   lambda: a(f'v_lshlrev_b32 v{V_EX+16}, 11, v3\nv_lshl_add_u32 v{V_EX+16}, v4, 3, v{V_EX+16}'),
                   lambda: a(f's_lshl_b32 s{S_TMP}, s{S_BB}, 20\ns_lshl_b32 s{S_TMP+1}, s{S_OC0}, 11'),
                   lambda: a(f's_add_u32 s{S_TMP}, s{S_TMP}, s{S_TMP+1}\ns_add_u32 s{S_TMP+1}, s{S_Y0}, s{S_WAVE}'),
                   lambda: a(f's_lshl_b32 s{S_TMP+1}, s{S_TMP+1}, 6\ns_add_u32 s{S_O1}, s{S_TMP}, s{S_TMP+1}'),
                   lambda: a(f's_add_u32 s{S_O2}, s{S_O1}, 32768')]
            for o2 in range(2):
                for half in range(2):
                    r = V_EX + (o2*2+half)*2
                    seq.append(lambda r=r, o2=o2, half=half: ex.append(a.vmem(f'buffer_load_dwordx2 v[{r}:{r+1}], v{V_EX+16}, s[{R_X}:{R_X+3}], s{S_O1 if o2 == 0 else S_O2} offen offset:{half*32}')))
            for i, fn in enumerate(seq): put(6 + 3*i, fn)
            seq = [lambda: a.need(vtags=ex)]
            for q in range(8):
                seq.append(lambda q=q: a(f'v_lshlrev_b32 v{V_P0+2*q}, 16, v{V_EX+q}')); seq.append(lambda q=q: a(f'v_and_b32 v{V_P0+2*q+1}, 0xffff0000, v{V_EX+q}'))
            for i, fn in enumerate(seq): put(72*3 + 3*i, fn)
        def poff(o2, ro, half): return (8192 if o2 == 0 else 0) + (ro*2+half)*1024
        def pw(o2, ro, half):
            c = acc(o2, ro, half)
            a.lds(f'ds_write_b128 v{V_PW}, a[{c}:{c+3}] offset:{poff(o2, ro, half)}', tag=('PW', o2))
        def prd(o2, v, half, dst):
            b_ = V_T if v < 2 else V_T+1
            a.lds(f'ds_read_b128 v[{dst}:{dst+3}], v{b_} offset:{(v%2)*WAVE_LDS + poff(o2, 0, half)}', tag=('P', o2, v, half))
        def red_reads(o2):
            outs = []
            for half in range(2):
                for v in range(4):
                    dst = (H + (o2*2+half)*4) if v == 0 else (PL + (half*3 + v-1)*4)
                    outs.append(lambda v=v, half=half, dst=dst: prd(o2, v, half, dst))
            return outs
        SQ = V_T + 8
        def red_adds(o2, pk):
            outs = []
            for half in range(2):
                h = H + (o2*2+half)*4
                extra = (V_EX + 4*o2) if which == 1 else (V_P0 + (o2*2+half)*4)
                for v in range(1, 5):
                    for i in range(0, 4, 2 if pk else 1):
                        def f(half=half, v=v, i=i, h=h, extra=extra):
                            a.need(ltags=[('P', o2, 3, half)])
                            src = (PL + (half*3+v-1)*4 + i) if v < 4 else extra + i
                            if pk: a(f'v_pk_add_f32 v[{h+i}:{h+i+1}], v[{h+i}:{h+i+1}], v[{src}:{src+1}]')
                            else: a(f'v_add_f32 v{h+i}, v{h+i}, v{src}')
                        outs.append(f)
                if which == 1:
                    if pk:
                        for i in range(0, 4, 2):
                            outs.append(lambda h=h, i=i: a(f'v_pk_fma_f32 v[{SQ+2}:{SQ+3}], v[{h+i}:{h+i+1}], v[{h+i}:{h+i+1}], v[{SQ+2}:{SQ+3}]'))
                            outs.append(lambda h=h, i=i: a(f'v_pk_add_f32 v[{SQ}:{SQ+1}], v[{SQ}:{SQ+1}], v[{h+i}:{h+i+1}]'))
                    else:
                        for i in range(4):
                            outs.append(lambda h=h, i=i: a(f'v_fmac_f32 v{SQ+2+i%2}, v{h+i}, v{h+i}'))
                            outs.append(lambda h=h, i=i: a(f'v_add_f32 v{SQ+i%2}, v{SQ+i%2}, v{h+i}'))
                else:
                    o = V_EX + (o2*2+half)*2
                    outs.append(lambda h=h, o=o: a(f'v_cvt_pk_bf16_f32 v{o}, v{h}, v{h+1}\nv_cvt_pk_bf16_f32 v{o+1}, v{h+2}, v{h+3}'))
                    outs.append(lambda o=o, half=half: a.vmem(f'buffer_store_dwordx2 v[{o}:{o+1}], v{V_EX+16}, s[{R_A}:{R_A+3}], s{S_O1 if o2 == 0 else S_O2} offen offset:{half*32} {OUTF}'))
            return outs
        b6 = 72*6; b7 = 72*7
        put(b6, lambda: a(f's_lshl_b32 s{S_TMP}, s{S_WAVE}, 11\ns_add_u32 s{S_TMP}, s{S_TMP}, {A_BASE}'))
        put(b6 + 2, lambda: a(f'v_add_u32 v{V_T}, s{S_TMP}, v{V_L16}\nv_add_u32 v{V_T+1}, {2*WAVE_LDS}, v{V_T}'))
        if which == 1:
            put(b6 + 4, lambda: a(f'v_mov_b32 v{SQ}, 0\nv_mov_b32 v{SQ+1}, 0'))
            put(b6 + 6, lambda: a(f'v_mov_b32 v{SQ+2}, 0\nv_mov_b32 v{SQ+3}, 0'))
        for o2 in range(2):
            for ro in range(4):
                for half in range(2):
                    sl = 72*(6+o2) + 18*ro + 9*half + 8 + 9
                    if sl <= 575 and not (o2 == 1 and ro == 3):
                        put(sl, (lambda o2=o2, ro=ro, half=half: pw(o2, ro, half)))
        def fbar():
            a.need(ltags=[('PW', 0)]); a('s_barrier')
        put(b7 + 14, fbar)
        for i, fn in enumerate(red_reads(0)): put(b7 + 15 + i, fn)
        for i, fn in enumerate(red_adds(0, False)): put(b7 + 26 + (i*7)//8, fn)
        items.sort(key=lambda x: (x[0], x[1]))
        qi = 0
        gs = 0
        for k in range(8):
            if k in (0, 1): stamp()
            if E('PSTAMP') and ci == int(E('PSTAMP'))-1: stamp(232 - A_TS + k)
            s, ob = divmod(k, 2)
            kk = ci*8 + k
            assert kk in permdone
            for ro in range(4):
                for half in range(2):
                    for dy in range(3):
                        for dx in range(3):
                            if dx == 0:
                                for d2 in range(3):
                                    assert (ci, s, ro+dy, half, d2) in issued, (ci, s, ro, dy, half, gs)
                                a.need(ltags=[('F', s, ro+dy, half, d2) for d2 in range(3)])
                            c = acc(ob, ro, half); w_ = wf(kk, dy*3+dx); f_ = af(ro+dy, half, dx)
                            srcc = '0' if (s == 0 and dy == 0 and dx == 0) else f'a[{c}:{c+3}]'
                            if which == 1:
                                a(f'v_mfma_f32_16x16x32_bf16 a[{c}:{c+3}], v[{w_}:{w_+3}], a[{f_}:{f_+3}], {srcc}')
                            else:
                                a(f'v_mfma_f32_16x16x32_bf16 a[{c}:{c+3}], a[{f_}:{f_+3}], v[{w_}:{w_+3}], {srcc}')
                            n1 = len(a.L)
                            last = (gs == 575)
                            while qi < len(items) and items[qi][0] <= gs and (len(a.L) - n1 < CAP or last):
                                items[qi][2](); qi += 1
                            gs += 1
        assert qi == len(items), (qi, len(items))
        if E('PSTAMP') and ci == int(E('PSTAMP'))-1: stamp(240 - A_TS)
        pw(1, 3, 0)
        a('s_nop 7')
        pw(1, 3, 1)
        a.need(ltags=[('PW', 1)]); a('s_barrier')
        for fn in red_reads(1): fn()
        for fn in red_adds(1, True): fn()
        stamp()
        if which == 1:
            G = V_T + 4
            a(f'v_add_f32 v{SQ}, v{SQ}, v{SQ+1}\nv_add_f32 v{SQ+1}, v{SQ+2}, v{SQ+3}\ns_nop 0')
            red2(a, SQ, SQ+1, S_R1, S_R2)
            a(f'v_mov_b32 v{G+1}, s{S_E}\nv_mov_b32 v{G+3}, s{S_E}\nv_mov_b32 v{G}, s{S_R1}\nv_mov_b32 v{G+2}, s{S_R2}')
            a(f's_lshl_b32 s{S_TMP+6}, s{S_LIN}, 2\ns_add_u32 s{S_TMP+6}, s{S_TMP+6}, s{S_WAVE}')
            def mid3():
                a.vq.append(('pub',))
                if 9 in rawdone and 9 not in permdone:
                    for i in range(36): perm(9, i)
            exchange('L_p3', G,
                     lambda: a(f's_lshl_b32 s{S_TMP+2}, s{S_TMP+6}, 4\ns_add_u32 s{S_TMP+2}, s{S_TMP+2}, {ST2L_OFF}'),
                     lambda: a(f's_lshl_b32 s{S_TMP+3}, s{S_TMP+6}, 7\ns_add_u32 s{S_TMP+3}, s{S_TMP+3}, {ST2G_OFF}'),
                     False, 2, 63,
                     lambda: a(f's_lshl_b32 s{S_TMP}, s{S_XCD}, 11\ns_add_u32 s{S_TMP}, s{S_TMP}, {ST2L_OFF}'),
                     lambda: a(f's_lshl_b32 s{S_TMP}, s{S_XCD}, 14\ns_add_u32 s{S_TMP}, s{S_TMP}, {ST2G_OFF}'),
                     V_T+8, PL, mid3)
            a.vq = []
            stamp()
            M = V_T + 8
            mean_rstd(1.0/131072, M)
            for e in range(0, 8, 2):
                a(f'v_pk_mul_f32 v[{SCv+e}:{SCv+e+1}], v[{SCv+e}:{SCv+e+1}], v[{M+2}:{M+3}]')
                a(f'v_pk_fma_f32 v[{SHv+e}:{SHv+e+1}], v[{SCv+e}:{SCv+e+1}], v[{M}:{M+1}], v[{SHv+e}:{SHv+e+1}]')
            for o2 in range(2):
                Z = H + o2*8
                for half in range(2):
                    for i in range(0, 4, 2):
                        r = Z + half*4 + i
                        a(f'v_pk_fma_f32 v[{r}:{r+1}], v[{r}:{r+1}], v[{SCv+o2*4+i}:{SCv+o2*4+i+1}], v[{SHv+o2*4+i}:{SHv+o2*4+i+1}]')
                silu_pk(a, Z, PL, 8)
                r = PL + 8 + o2*4
                for q in range(4):
                    a(f'v_cvt_pk_bf16_f32 v{r+q}, v{Z+2*q}, v{Z+2*q+1}')
                a('s_nop 1')
                a(f'v_permlane16_swap_b32 v{r}, v{r+2}\nv_permlane16_swap_b32 v{r+1}, v{r+3}')
                a(f'buffer_store_dwordx4 v[{r}:{r+3}], v{V_EX+16}, {WSR}, s{S_O1 if o2 == 0 else S_O2} offen {SC}')
            if BND and 10 in wdone and 10 not in rawdone:
                w_rawperm(10, False)
            a('s_waitcnt vmcnt(0)\ns_barrier')
            a.vq = []
            flag_store(F1_OFF)
            a.vq = [('flag',)]
            stamp()
            todo = [kk_ for kk_ in (10, 11, 12) if kk_ not in wdone and (kk_-2) in rawdone and (BND or kk_ < 12)]
            for kk_ in (todo[:-1] if ORDB else todo): w_dma_all(kk_)
            if DLY1: a(f's_sleep {DLY1}')
            flag_poll(F1_OFF, V_PF1, 'L_p4', (lambda: w_dma_all(todo[-1])) if ORDB else None)
            stamp()
    conv(0)
    conv(1)
    if ts:
        a('s_waitcnt vmcnt(0)')
        stamp()
        a('s_memrealtime s[98:99]\ns_waitcnt lgkmcnt(0)')
        for i in range(16):
            a(f'v_accvgpr_read_b32 v{72+i}, a{A_TS+i}')
        for i in range(4):
            a(f'v_accvgpr_read_b32 v{92+i}, a{A_TS+16+i}')
        a('v_accvgpr_read_b32 v88, a229\nv_mov_b32 v89, s100\nv_mov_b32 v90, s98\nv_mov_b32 v91, 0')
        a(f's_lshl_b32 s{S_TMP}, s2, 9\ns_lshl_b32 s{S_TMP+1}, s{S_WAVE}, 7\ns_add_u32 s{S_TMP}, s{S_TMP}, s{S_TMP+1}\nv_mov_b32 v8, s{S_TMP}')
        srd(a, R_B, S_WS, S_WS+1, 0x40000, TS_OFF)
        a(f'v_cmp_eq_u32 vcc, 0, v2\ns_and_saveexec_b64 s[{S_SAVE}:{S_SAVE+1}], vcc')
        for i in range(6):
            a(f'buffer_store_dwordx4 v[{72+4*i}:{75+4*i}], v8, s[{R_B}:{R_B+3}], 0 offen offset:{16*i}')
        if E('DBGOUT'):
            wg = int(E('DBGOUT'))
            a(f's_cmp_lg_u32 s2, {wg}\ns_cbranch_scc1 L_end\ns_cmp_lg_u32 s{S_WAVE}, 1\ns_cbranch_scc1 L_end')
            srd(a, R_B, S_DBG, S_DBG+1, 256)
            for i in range(14):
                a(f'v_sub_u32 v{72+i}, v{72+i}, v88')
            a('v_sub_u32 v90, v90, v89\nv_mov_b32 v8, 0')
            a(f'buffer_store_dword v90, v8, s[{R_B}:{R_B+3}], 0 offen offset:4')
            for i in range(7):
                a(f'buffer_store_dwordx2 v[{72+2*i}:{73+2*i}], v8, s[{R_B}:{R_B+3}], 0 offen offset:{8+8*i}')
        if E('PSTAMP'):
            for i in range(12):
                a(f'v_accvgpr_read_b32 v{100+i}, a{232+i}')
            srd(a, R_B, S_WS, S_WS+1, 0x40000, TS_OFF + 0x100000)
            for i in range(3):
                a(f'buffer_store_dwordx4 v[{100+4*i}:{103+4*i}], v8, s[{R_B}:{R_B+3}], 0 offen offset:{16*i}')
    a.label('L_end')
    a('s_endpgm')
    a.label('L_embslow')
    a(f's_mov_b32 s{S_TMP+2}, 0')
    a.label('L_embslow2')
    a(f'buffer_load_dword v{V_EX+16}, v{V_PF2}, {WSR}, s{S_TMP+1} offen {SC}')
    a('s_waitcnt vmcnt(0)')
    a(f'v_cmp_eq_u32 vcc, s{S_E}, v{V_EX+16}')
    a(f's_add_u32 s{S_TMP+2}, s{S_TMP+2}, 1')
    a('s_cmp_eq_u64 vcc, exec\ns_cbranch_scc1 L_embok')
    a(f's_cmp_lt_u32 s{S_TMP+2}, 0x40000\ns_cbranch_scc1 L_embslow2')
    a('s_branch L_embok')
    name = 'standalone__adm_resblock__diffusion_kernel'
    return khead(name) + a.text(), kd(name, 256+(248 if ts else 208), 256)

def main():
    ts = '--ts' in sys.argv
    hdr = open('standalone__adm_resblock__diffusion.s.ref').read().split('\n')
    top = [l for l in hdr if l.startswith(';') and '@launch' not in l]
    top += ['; @launch grid=(256,1,1) block=(256,1,1) lds=163840']
    k = gen(ts)
    out = '\n'.join(top) + '\n.amdgcn_target "amdgcn-amd-amdhsa--gfx950"\n.text\n'
    out += k[0] + '\n.section .rodata,"a"\n' + k[1] + '\n'
    print(out)

main()
```

```python
import sys, struct, os
from genlib import *

E = os.environ.get
WARM = int(E('WARM', '3'))
TRK = E('TRK', '')
TOUCH = int(E('TOUCH', '1'))
PREF = int(E('PREF', '0'))
ORD = int(E('ORD', '0'))
CPF = int(E('CPF', '0'))
TLB = int(E('TLB', '0'))
ORDB = int(E('ORDB', '0'))
OUTF = E('OUTF', '')
DUP = int(E('DUP', '1'))
NT1 = E('NT1', ''); NT2 = E('NT2', ''); NTX = E('NTX', '')
WDLY = int(E('WDLY', '0'))
NOVM = E('NOVM', '')
EPS = E('EPS', '10,6')
DLY0 = int(E('DLY0', '0')); DLY1 = int(E('DLY1', '0'))
CAP = int(E('CAP', '2'))
BND = int(E('BND', '1'))
NLOC = int(E('NLOC', '12')); KGLOB = int(E('KGLOB', '2'))
SC = 'sc1'

A1_OFF = 0x010000
A2_OFF = 0x410000
EMBP_OFF = 0x700000
ST1L_OFF = 0x720000
ST2L_OFF = 0x724000
ST1G_OFF = 0x730000
F0_OFF = 0x738000
F1_OFF = 0x740000
ST2G_OFF = 0x760000
WS_SIZE = 0x800000
TS_OFF = 0x8000000

WAVE_LDS = 40960
WSLOT = 10240
NA = 5
A_BASE = 2*WSLOT
MISC = A_BASE

V_AD = 16; V_AR = 28; V_L16 = 31; V_EX = 32
V_PF0 = 49; V_PF1 = 50; V_PW = 51
V_T = 52
V_PF2 = 54; V_PFX = 55
V_WD = 64
V_WR = 74
V_WRX = 78
V_RAW = 82
V_WF = 118
V_P0 = 190
V_H = 216
A_ACC = 0; A_AF = 64; A_TS = 208
def acc(ob, ro, half): return A_ACC + ((ob*4 + ro)*2 + half)*4
def af(r, half, dx): return A_AF + ((r*2 + half)*3 + dx)*4
def wf(kk, tap): return V_WF + (kk % 2)*36 + tap*4

S_X, S_T, S_G1, S_B1, S_W1, S_WE, S_G2, S_B2, S_W2, S_OUT, S_DBG, S_WS = 4, 6, 8, 10, 12, 14, 16, 18, 20, 22, 24, 26
R_WS = 28; R_X = 32; R_A = 36; R_B = 40
S_WAVE = 44; S_XCD = 45; S_WITHIN = 46; S_BB = 47; S_G = 48; S_OCT = 49; S_PXT = 50; S_OC0 = 51; S_Y0 = 52
S_LDS = 53; S_E = 54; S_FFFF = 55
S_WOFF = 56
S_AOFF = 64
S_TMP = 68
S_C = 80
S_LIN = 84; S_IDX = 85; S_R1 = 86; S_R2 = 87
S_O1 = 88; S_O2 = 89; S_SAVE = 90
S_TS = 92
R_WQ = 96

def red2(a, v1, v2, s1, s2):
    for mod in ('quad_perm:[1,0,3,2] row_mask:0xf', 'quad_perm:[2,3,0,1] row_mask:0xf', 'row_half_mirror row_mask:0xf',
                'row_mirror row_mask:0xf', 'row_bcast:15 row_mask:0xa', 'row_bcast:31 row_mask:0xc'):
        a('s_nop 0')
        a(f'v_add_f32_dpp v{v1}, v{v1}, v{v1} {mod} bank_mask:0xf')
        a(f'v_add_f32_dpp v{v2}, v{v2}, v{v2} {mod} bank_mask:0xf')
    a(f'v_readlane_b32 s{s1}, v{v1}, 63\ns_nop 0\nv_readlane_b32 s{s2}, v{v2}, 63')

def silu_pk(a, z, t, n):
    for i in range(0, n, 2):
        a(f'v_pk_mul_f32 v[{t+i}:{t+i+1}], v[{z+i}:{z+i+1}], s[{S_C}:{S_C+1}]')
    for i in range(n):
        a(f'v_exp_f32 v{t+i}, v{t+i}')
    if n <= 4: a('s_nop 0')
    for i in range(0, n, 2):
        a(f'v_pk_add_f32 v[{t+i}:{t+i+1}], v[{t+i}:{t+i+1}], s[{S_C+2}:{S_C+3}]')
    for i in range(n):
        a(f'v_rcp_f32 v{t+i}, v{t+i}')
    if n <= 4: a('s_nop 0')
    for i in range(0, n, 2):
        a(f'v_pk_mul_f32 v[{z+i}:{z+i+1}], v[{z+i}:{z+i+1}], v[{t+i}:{t+i+1}]')

def gen(ts=False):
    a = Asm()
    stamps = [0]
    def stamp(idx=None):
        if ts:
            a(f's_memtime s[{S_TS}:{S_TS+1}]'); a.wait_all(v=False)
            i = stamps[0] if idx is None else idx
            a(f'v_mov_b32 v15, s{S_TS}\nv_accvgpr_write_b32 a{A_TS+i}, v15')
            if idx is None: stamps[0] += 1
    WSR = f's[{R_WS}:{R_WS+3}]'
    a('s_cmp_ge_u32 s2, 256\ns_cbranch_scc1 L_end')
    a('s_load_dwordx16 s[4:19], s[0:1], 0')
    a('s_load_dwordx8 s[20:27], s[0:1], 64')
    a(f's_memrealtime s[{S_TS+2}:{S_TS+3}]')
    if ts:
        a('s_memtime s[90:91]\ns_memrealtime s[100:101]\ns_waitcnt lgkmcnt(0)\nv_mov_b32 v15, s90\nv_accvgpr_write_b32 a229, v15')
    a('v_lshrrev_b32 v1, 6, v0\nv_and_b32 v2, 63, v0')
    a(f'v_readfirstlane_b32 s{S_WAVE}, v1')
    a(f's_and_b32 s{S_XCD}, s2, 7\ns_lshr_b32 s{S_WITHIN}, s2, 3')
    a(f's_lshr_b32 s{S_BB}, s{S_XCD}, 2\ns_and_b32 s{S_G}, s{S_XCD}, 3')
    a(f's_and_b32 s{S_OCT}, s{S_WITHIN}, 3\ns_lshr_b32 s{S_PXT}, s{S_WITHIN}, 2')
    a(f's_lshl_b32 s{S_OC0}, s{S_G}, 7\ns_lshl_b32 s{S_TMP}, s{S_OCT}, 5\ns_add_u32 s{S_OC0}, s{S_OC0}, s{S_TMP}')
    a(f's_lshl_b32 s{S_Y0}, s{S_PXT}, 2')
    a(f's_mul_i32 s{S_LDS}, s{S_WAVE}, {WAVE_LDS}')
    a(f's_lshl_b32 s{S_LIN}, s{S_XCD}, 5\ns_add_u32 s{S_LIN}, s{S_LIN}, s{S_WITHIN}')
    a(f's_lshr_b32 s{S_IDX}, s{S_LIN}, 1')
    a('v_lshlrev_b32 v3, 1, v2\nv_lshl_add_u32 v3, v1, 9, v3')
    a(f'v_lshlrev_b32 v{V_L16}, 4, v2')
    a(f's_lshl_b32 s{S_TMP+4}, s{S_IDX}, 14')
    a(f's_lshl_b32 s{S_TMP+6}, s{S_WAVE}, 12\ns_add_u32 s{S_O1}, s{S_TMP+4}, s{S_TMP+6}\ns_add_u32 s{S_O1}, s{S_O1}, {A1_OFF}')
    a(f's_and_b32 s{S_TMP+5}, s{S_IDX}, 63\ns_lshl_b32 s{S_TMP+5}, s{S_TMP+5}, 4')
    a(f's_or_b32 s{S_TMP+7}, s2, s{S_WAVE}')
    a(f's_mov_b32 s{S_C}, 0x{NLOG2E:x}\ns_mov_b32 s{S_C+1}, 0x{NLOG2E:x}\ns_mov_b32 s{S_C+2}, 1.0\ns_mov_b32 s{S_C+3}, 1.0')
    a('s_waitcnt lgkmcnt(0)')
    srd(a, R_B, S_DBG, S_DBG+1, 256)
    a(f's_cmp_lg_u32 s{S_TMP+7}, 0\ns_cbranch_scc1 L_noep')
    a(f's_or_b32 s{S_TS+2}, s{S_TS+2}, 1\nv_mov_b32 v5, s{S_TS+2}\nv_mov_b32 v4, 0')
    a(f'buffer_store_dword v5, v4, s[{R_B}:{R_B+3}], 0 offen {SC}')
    a.label('L_noep')
    srd(a, R_X, S_X, S_X+1, 2097152)
    srd(a, R_WS, S_WS, S_WS+1, WS_SIZE)
    a(f's_bitcmp1_b32 s{S_WITHIN}, 0\ns_cbranch_scc1 L_warm')

    def get_epoch(nm, v0_):
        a(f'v_mov_b32 v13, 0\ns_mov_b32 s{S_TMP+1}, 0')
        a.label(nm)
        a(f'v_readfirstlane_b32 s{S_E}, v{v0_}')
        a(f's_add_u32 s{S_TMP+1}, s{S_TMP+1}, 1')
        a(f's_cmp_lg_u32 s{S_E}, 0\ns_cbranch_scc1 {nm}ok')
        a(f's_cmp_gt_u32 s{S_TMP+1}, 0x40000\ns_cbranch_scc1 {nm}ok')
        a(f'buffer_load_dword v{v0_}, v13, s[{R_B}:{R_B+3}], 0 offen {SC}')
        a(f's_waitcnt vmcnt(0)\ns_branch {nm}')
        a.label(nm + 'ok')

    def exchange(nm, vS, loc_own, glob_own, publisher_cond, nld, lanemask, loc_base, glob_base, vA, vL, mid=None):
        loc_own(); glob_own()
        def pub(sreg, flag):
            if publisher_cond: a(f's_cmp_lg_u32 s{S_WAVE}, 0\ns_cbranch_scc1 {nm}_np{len(a.L)}'); lab = a.L[-1].split()[-1]
            a(f'v_mov_b32 v{vA+1}, 0\nv_cmp_eq_u32 vcc, 0, v2\ns_and_saveexec_b64 s[{S_SAVE}:{S_SAVE+1}], vcc')
            a(f'buffer_store_dwordx4 v[{vS}:{vS+3}], v{vA+1}, {WSR}, s{sreg} offen {flag}')
            a(f's_mov_b64 exec, s[{S_SAVE}:{S_SAVE+1}]')
            if publisher_cond: a.label(lab)
        pub(S_TMP+2, '')
        a(f'v_and_b32 v{vA}, {lanemask}, v2\nv_lshlrev_b32 v{vA}, 4, v{vA}')
        loc_base()
        a(f's_mov_b32 s{S_TMP+1}, 0\ns_movk_i32 s{S_TMP+4}, 1024')
        if mid: mid()
        a.label(nm)
        for i in range(nld):
            if i == 0:
                a(f'buffer_load_dwordx4 v[{vL}:{vL+3}], v{vA}, {WSR}, s{S_TMP} offen {SC}')
            else:
                a(f's_add_u32 s{S_TMP+5}, s{S_TMP}, s{S_TMP+4}')
                a(f'buffer_load_dwordx4 v[{vL+4}:{vL+7}], v{vA}, {WSR}, s{S_TMP+5} offen {SC}')
        a('s_waitcnt vmcnt(0)')
        a(f'v_xor_b32 v{vA+1}, s{S_E}, v{vL+1}\nv_xor_b32 v{vA+2}, s{S_E}, v{vL+3}')
        if nld == 2:
            a(f'v_xor_b32 v{vA+3}, s{S_E}, v{vL+5}\nv_or3_b32 v{vA+1}, v{vA+1}, v{vA+2}, v{vA+3}\nv_xor_b32 v{vA+2}, s{S_E}, v{vL+7}')
        a(f'v_or_b32 v{vA+1}, v{vA+1}, v{vA+2}')
        a(f'v_cmp_eq_u32 vcc, 0, v{vA+1}')
        a(f's_add_u32 s{S_TMP+1}, s{S_TMP+1}, 1')
        a(f's_cmp_eq_u64 vcc, exec\ns_cbranch_scc1 {nm}_ok')
        a(f's_cmp_lg_u32 s{S_TMP+1}, {KGLOB}\ns_cbranch_scc1 {nm}_c1')
        pub(S_TMP+3, SC)
        a.label(f'{nm}_c1')
        a(f's_cmp_lg_u32 s{S_TMP+1}, {NLOC}\ns_cbranch_scc1 {nm}_c2')
        a(f'v_lshlrev_b32 v{vA}, 3, v{vA}\ns_movk_i32 s{S_TMP+4}, 8192')
        glob_base()
        a.label(f'{nm}_c2')
        a(f's_cmp_lt_u32 s{S_TMP+1}, 0x40000\ns_cbranch_scc1 {nm}')
        a.label(f'{nm}_ok')
        a(f's_cmp_gt_u32 s{S_TMP+1}, {KGLOB}\ns_cbranch_scc1 {nm}_c3')
        pub(S_TMP+3, SC)
        a.label(f'{nm}_c3')
        if nld == 2:
            a(f'v_add_f32 v{vL}, v{vL}, v{vL+4}\nv_add_f32 v{vL+2}, v{vL+2}, v{vL+6}\ns_nop 0')
        red2(a, vL, vL+2, S_R1, S_R2)

    def mean_rstd(inv, vm):
        ib = f2u(inv)
        a(f'v_mov_b32 v{vm}, 0x{ib:x}\ns_nop 0')
        a(f'v_mul_f32 v{vm+2}, s{S_R2}, v{vm}\nv_mul_f32 v{vm}, s{S_R1}, v{vm}')
        a(f'v_fma_f32 v{vm+2}, -v{vm}, v{vm}, v{vm+2}\nv_max_f32 v{vm+2}, 0, v{vm+2}\nv_add_f32 v{vm+2}, 0x3727c5ac, v{vm+2}')
        a(f'v_rsq_f32 v{vm+2}, v{vm+2}\nv_sub_f32 v{vm}, 0, v{vm}\nv_mov_b32 v{vm+1}, v{vm}\nv_mov_b32 v{vm+3}, v{vm+2}')

    m0cur = [None]
    def set_m0(v):
        if m0cur[0] != v:
            a(f's_add_u32 m0, s{S_LDS}, {v}'); m0cur[0] = v
    def fix_m0():
        if a.L[-1].startswith('s_add_u32 m0'): a('s_nop 0')
    def wsegs(kk):
        return list(range(10)) if ((kk % 8)//2) % 2 == 0 else list(range(1, 9))
    wdone = set(); rawdone = set(); permdone = set()
    def dma_w_pre(kk, n):
        if kk >= 2: assert (kk-2) in rawdone, kk
        if 'w' in NOVM: return
        if kk >= 2: a.need(ltags=[('R', kk-2, 8)])
        if kk == 8 and n == 0:
            srd(a, R_WQ, S_W2, S_W2+1, 4718592+4096, -4096)
        set_m0((kk % 2)*WSLOT + (n - n % 4)*1024)
    def dma_w(kk, n):
        if n == wsegs(kk)[-1]: wdone.add(kk)
        if 'w' in NOVM: return
        assert m0cur[0] == (kk % 2)*WSLOT + (n - n % 4)*1024
        fix_m0()
        a.vmem(f'buffer_load_dwordx4 v{V_WD+n}, s[{R_WQ}:{R_WQ+3}], s{S_WOFF + kk % 8} offen offset:{(n%4)*1024} lds', tag=('W', kk))
    atmp = [None]; adone = set()
    def dma_a_pre(conv, u, kq):
        if 'a' in NOVM: return
        s, j = divmod(u, 3)
        set_m0(A_BASE + (u % NA)*4096)
        key = (conv, s)
        if atmp[0] != key:
            a(f's_add_u32 s{S_TMP+9}, s{S_AOFF+s}, {A1_OFF if conv == 0 else A2_OFF}'); atmp[0] = key
    def dma_a(conv, u, kq):
        if kq == 3: adone.add((conv, u))
        if 'a' in NOVM: return
        s, j = divmod(u, 3)
        assert m0cur[0] == A_BASE + (u % NA)*4096
        fix_m0()
        a.vmem(f'buffer_load_dwordx4 v{V_AD+4*j+kq}, {WSR}, s{S_TMP+9} offen offset:{kq*1024} lds', tag=('A', conv, u))
    def rd_raw(kk, j):
        assert kk in wdone, kk
        if kk >= 1: assert (kk-1) in permdone, kk
        a.need(vtags=[('W', kk)])
        m = j % 4
        odd = ((kk % 8)//2) % 2 == 1
        reg = (V_WRX if (odd and j < 4) else V_WR) + m
        a.lds(f'ds_read_b128 v[{V_RAW+4*j}:{V_RAW+4*j+3}], v{reg} offset:{(kk % 2)*WSLOT + (j//4)*1024}', tag=('R', kk, j))
        if j == 8: rawdone.add(kk)
    def perm(kk, i):
        assert kk in rawdone, kk
        m, t = divmod(i, 9)
        lo = 9*m + t//2; hi = 9*m + (t+9)//2
        if t == 0:
            a.need(ltags=[('R', kk, (9*m+8)//4)])
        d = wf(kk, t) + m
        if t % 2 == 0:
            a(f'v_bfi_b32 v{d}, s{S_FFFF}, v{V_RAW+lo}, v{V_RAW+hi}')
        else:
            a(f'v_alignbit_b32 v{d}, v{V_RAW+hi}, v{V_RAW+lo}, 16')
        if i == 35: permdone.add(kk)
    issued = set()
    def rd_af(conv, s, r, half, dx):
        u = s*3 + r//2
        assert (conv, u) in adone, (conv, u)
        a.need(vtags=[('A', conv, u)])
        reg = V_AR
        if dx == 0 and half == 0: reg = V_AR+1
        if dx == 2 and half == 1: reg = V_AR+2
        off = (u % NA)*4096 + (r % 2)*512 + half*256 + (dx-1)*16
        if reg == V_AR+1: off += 16
        d = af(r, half, dx)
        a.lds(f'ds_read_b128 a[{d}:{d+3}], v{reg} offset:{off}', tag=('F', s, r, half, dx))
        issued.add((conv, s, r, half, dx))
    def w_dma_all(kk):
        for n in wsegs(kk):
            dma_w_pre(kk, n); dma_w(kk, n)
    def w_rawperm(kk, doperm=True):
        for j in range(9): rd_raw(kk, j)
        if doperm:
            for i in range(36): perm(kk, i)

    def setup():
        a('v_lshrrev_b32 v4, 2, v2\nv_and_b32 v5, 3, v2')
        a('v_bfe_u32 v6, v4, 3, 1\nv_lshlrev_b32 v6, 1, v6\nv_xor_b32 v5, v5, v6')
        a(f's_movk_i32 s{S_TMP}, 9216\nv_add_u32 v4, s{S_OC0}, v4\nv_mul_u32_u24 v4, s{S_TMP}, v4\nv_lshl_add_u32 v4, v5, 4, v4')
        for n in range(10):
            a(f'v_add_u32 v{V_WD+n}, {4096 + n*64 - (n%4)*1024}, v4')
        srd(a, R_WQ, S_W1, S_W1+1, 4718592+4096, -4096)
        a(f's_mul_i32 s{S_WOFF}, s{S_WAVE}, 2304')
        for k in range(1, 8):
            a(f's_add_u32 s{S_WOFF+k}, s{S_WOFF}, {(k//2)*576 + (k%2)*147456}')
        a(f's_lshl_b32 s{S_TMP}, s{S_BB}, 20')
        a('v_mov_b32 v5, 0x7ff00000')
        for j in range(3):
            a(f'v_lshrrev_b32 v3, 5, v2\nv_add_u32 v3, {2*j}, v3\nv_add_u32 v3, s{S_Y0}, v3\nv_subrev_u32 v3, 1, v3')
            a('v_and_b32 v4, 31, v2\nv_lshlrev_b32 v4, 4, v4\nv_lshl_add_u32 v4, v3, 9, v4')
            a(f'v_add_u32 v4, s{S_TMP}, v4')
            a('v_cmp_gt_u32 vcc, 32, v3\ns_nop 1')
            a(f'v_cndmask_b32 v{V_AD+4*j}, v5, v4, vcc')
            for kq in range(1, 4):
                a(f'v_add_u32 v{V_AD+4*j+kq}, {kq*15360}, v{V_AD+4*j}')
        a('v_and_b32 v3, 15, v2\nv_lshrrev_b32 v4, 4, v2')
        a(f's_add_u32 s{S_TMP}, s{S_LDS}, {A_BASE}')
        a(f'v_lshlrev_b32 v{V_AR}, 10, v4\nv_lshl_add_u32 v{V_AR}, v3, 4, v{V_AR}\nv_add_u32 v{V_AR}, s{S_TMP}, v{V_AR}')
        a(f'v_mov_b32 v5, 163840\nv_subrev_u32 v6, 16, v{V_AR}')
        a(f'v_cmp_eq_u32 vcc, 0, v3\ns_nop 1\nv_cndmask_b32 v{V_AR+1}, v6, v5, vcc')
        a(f'v_cmp_eq_u32 vcc, 15, v3\ns_nop 1\nv_cndmask_b32 v{V_AR+2}, v{V_AR}, v5, vcc')
        a(f'v_add_u32 v{V_PW}, s{S_TMP}, v{V_L16}')
        a('v_bfe_u32 v6, v3, 3, 1\nv_lshlrev_b32 v6, 1, v6\nv_mul_u32_u24 v5, 9, v4')
        a(f'v_lshlrev_b32 v7, 6, v3\nv_add_u32 v7, s{S_LDS}, v7')
        a('v_mov_b32 v10, 0\nv_mov_b32 v11, 9216\nv_cmp_eq_u32 vcc, 0, v4\ns_nop 1\nv_cndmask_b32 v10, v10, v11, vcc')
        for m in range(4):
            a(f'v_add_u32 v8, {m}, v5\nv_lshrrev_b32 v9, 2, v8\nv_and_b32 v8, 3, v8\nv_xor_b32 v8, v8, v6')
            a(f'v_lshl_add_u32 v{V_WR+m}, v9, 10, v7\nv_lshl_add_u32 v{V_WR+m}, v8, 4, v{V_WR+m}')
            a(f'v_add_u32 v{V_WRX+m}, v{V_WR+m}, v10')
        a(f's_mov_b32 s{S_FFFF}, 0xffff')
        a(f's_lshl_b32 s{S_AOFF}, s{S_WAVE}, 18')
        for s in range(1, 4):
            a(f's_add_u32 s{S_AOFF+s}, s{S_AOFF}, {s*65536}')
        a(f's_lshl_b32 s{S_TMP}, s{S_BB}, 2\ns_add_u32 s{S_TMP}, s{S_TMP}, s{S_WAVE}\ns_lshl_b32 s{S_TMP}, s{S_TMP}, 5')
        a(f'v_lshlrev_b32 v6, 1, v3\nv_add_u32 v{V_PF0}, s{S_TMP}, v6')
        a('v_and_b32 v5, 31, v2')
        a(f'v_lshrrev_b32 v6, 2, v5\nv_subrev_u32 v7, s{S_PXT}, v6\nv_add_u32 v7, 1, v7')
        a(f'v_mov_b32 v8, s{S_PXT}\nv_cmp_gt_u32 vcc, 3, v7\ns_nop 1\nv_cndmask_b32 v6, v8, v6, vcc')
        a(f'v_and_b32 v7, 3, v5\nv_lshl_add_u32 v6, v6, 2, v7\nv_add_u32 v6, s{S_TMP}, v6\nv_lshlrev_b32 v{V_PF1}, 7, v6')
        a(f's_lshl_b32 s{S_TMP+1}, s{S_XCD}, 5\ns_lshl_b32 s{S_TMP+2}, s{S_OCT}, 1\ns_add_u32 s{S_TMP+1}, s{S_TMP+1}, s{S_TMP+2}\ns_add_u32 s{S_TMP+1}, s{S_TMP+1}, 1')
        a(f'v_and_b32 v6, 3, v2\nv_lshlrev_b32 v6, 3, v6\nv_add_u32 v6, s{S_TMP+1}, v6\nv_lshlrev_b32 v{V_PF2}, 7, v6')
        a(f'v_lshlrev_b32 v6, 6, v2\nv_mov_b32 v7, 0x7ff00000\nv_cmp_gt_u32 vcc, 18, v2\ns_nop 1\nv_cndmask_b32 v{V_PFX}, v7, v6, vcc')
        a(f'v_lshlrev_b32 v{V_PF0}, 7, v{V_PF0}')
    X0 = V_H
    for c in range(8):
        if c % 2 == 0 and c:
            a(f's_add_u32 s{S_TMP+4}, s{S_TMP+4}, 4096')
        for q in range(4):
            a(f'buffer_load_ushort v{X0+8*q+c}, v3, s[{R_X}:{R_X+3}], s{S_TMP+4} offen offset:{(c%2)*2048+q*128} {NTX}')
    a(f's_add_u32 s{S_G1}, s{S_G1}, s{S_TMP+5}\ns_addc_u32 s{S_G1+1}, s{S_G1+1}, 0')
    a(f's_add_u32 s{S_B1}, s{S_B1}, s{S_TMP+5}\ns_addc_u32 s{S_B1+1}, s{S_B1+1}, 0')
    GB = 72
    a(f's_load_dwordx4 s[{GB}:{GB+3}], s[{S_G1}:{S_G1+1}], 0\ns_load_dwordx4 s[{GB+4}:{GB+7}], s[{S_B1}:{S_B1+1}], 0')
    EP = V_H + 32
    eps = [int(x) for x in EPS.split(',')]
    def touch():
        if TOUCH:
            a(f's_lshl_b32 s{S_TMP}, s{S_XCD}, 8\ns_add_u32 s{S_TMP}, s{S_TMP}, {ST1L_OFF}')
            a(f'buffer_load_dword v{EP+4}, v{V_L16}, {WSR}, s{S_TMP} offen {SC}')
            a(f's_lshl_b32 s{S_TMP}, s{S_XCD}, 11\ns_add_u32 s{S_TMP}, s{S_TMP}, {ST2L_OFF}')
            a(f'buffer_load_dword v{EP+4}, v{V_L16}, {WSR}, s{S_TMP} offen {SC}')
            a(f'buffer_load_dword v{EP+4}, v{V_L16}, {WSR}, s{S_TMP} offen offset:1024 {SC}')
        if TOUCH & 2:
            a(f'v_lshlrev_b32 v5, 6, v2')
            a(f'buffer_load_dword v{EP+4}, v5, {WSR}, s{S_O1} offen {SC}')
        if TOUCH & 4:
            a(f's_lshl_b32 s{S_TMP}, s{S_LIN}, 7\ns_add_u32 s{S_TMP}, s{S_TMP}, {F0_OFF}\nv_mov_b32 v5, 0')
            a(f'buffer_load_dword v{EP+4}, v5, {WSR}, s{S_TMP} offen {SC}')
    touch()
    setup()
    a(f's_cmp_eq_u32 s{S_WAVE}, 0\ns_cbranch_scc1 L_w0a')
    a('s_waitcnt vmcnt(0)\ns_branch L_stat')
    a.label('L_w0a')
    a('v_mov_b32 v13, 0')
    for i in range(3):
        a(f'v_mov_b32 v{EP+i}, 0')
    for i, sl in enumerate(eps):
        a(f's_sleep {sl}')
        a(f'buffer_load_dword v{EP+i}, v13, s[{R_B}:{R_B+3}], 0 offen {SC}')
    a(f's_waitcnt vmcnt({len(eps)})')
    a.label('L_stat')
    stamp(0)
    for c in range(32):
        a(f'v_lshlrev_b32 v{X0+c}, 16, v{X0+c}')
    a(f'v_pk_add_f32 v[8:9], v[{X0}:{X0+1}], v[{X0+2}:{X0+3}]\nv_pk_mul_f32 v[10:11], v[{X0}:{X0+1}], v[{X0}:{X0+1}]')
    a(f'v_pk_fma_f32 v[10:11], v[{X0+2}:{X0+3}], v[{X0+2}:{X0+3}], v[10:11]')
    for c in range(4, 32, 2):
        a(f'v_pk_add_f32 v[8:9], v[8:9], v[{X0+c}:{X0+c+1}]\nv_pk_fma_f32 v[10:11], v[{X0+c}:{X0+c+1}], v[{X0+c}:{X0+c+1}], v[10:11]')
    a('v_add_f32 v8, v8, v9\nv_add_f32 v9, v10, v11\ns_nop 0')
    red2(a, 8, 9, S_R1, S_R2)
    a(f's_lshl_b32 s{S_TMP}, s{S_WAVE}, 3\ns_add_u32 s{S_TMP}, s{S_TMP}, {MISC}\nv_mov_b32 v10, s{S_TMP}')
    a(f'v_mov_b32 v8, s{S_R1}\nv_mov_b32 v9, s{S_R2}')
    a('ds_write_b64 v10, v[8:9]')
    a(f's_cmp_lg_u32 s{S_WAVE}, 0\ns_cbranch_scc1 L_b1')
    a('s_waitcnt vmcnt(0)')
    a(f'v_or3_b32 v12, v{EP}, v{EP+1}, v{EP+2}')
    get_epoch('L_ep', 12)
    a(f'v_mov_b32 v10, {MISC+32}\nds_write_b32 v10, v12')
    stamp(16)
    if ts: a(f'v_mov_b32 v15, s{S_TMP+1}\nv_accvgpr_write_b32 a{A_TS+19}, v15')
    a.label('L_b1')
    SCLV = V_P0; SHF = V_P0 + 8
    a('s_waitcnt lgkmcnt(0)')
    for c in range(8):
        g = GB + c//2; be = GB + 4 + c//2
        if c % 2 == 0:
            a(f's_lshl_b32 s{S_R1}, s{g}, 16\ns_lshl_b32 s{S_R2}, s{be}, 16')
        else:
            a(f's_and_b32 s{S_R1}, s{g}, 0xffff0000\ns_and_b32 s{S_R2}, s{be}, 0xffff0000')
        a(f'v_mov_b32 v{SCLV+c}, s{S_R1}\nv_mov_b32 v{SHF+c}, s{S_R2}')
    a('s_barrier')
    a(f'v_mov_b32 v12, {MISC}')
    a('ds_read_b128 v[4:7], v12\nds_read_b128 v[8:11], v12 offset:16\nds_read_b32 v13, v12 offset:32')
    a('s_waitcnt lgkmcnt(0)')
    a(f'v_readfirstlane_b32 s{S_E}, v13')
    a('v_pk_add_f32 v[4:5], v[4:5], v[6:7]\nv_pk_add_f32 v[8:9], v[8:9], v[10:11]\nv_pk_add_f32 v[4:5], v[4:5], v[8:9]')
    a('v_mov_b32 v6, v5\nv_mov_b32 v5, v13\nv_mov_b32 v7, v13')
    exchange('L_p1', 4,
             lambda: a(f's_lshl_b32 s{S_TMP+2}, s{S_IDX}, 4\ns_add_u32 s{S_TMP+2}, s{S_TMP+2}, {ST1L_OFF}'),
             lambda: a(f's_lshl_b32 s{S_TMP+3}, s{S_IDX}, 7\ns_add_u32 s{S_TMP+3}, s{S_TMP+3}, {ST1G_OFF}'),
             True, 1, 15,
             lambda: a(f's_lshl_b32 s{S_TMP}, s{S_XCD}, 8\ns_add_u32 s{S_TMP}, s{S_TMP}, {ST1L_OFF}'),
             lambda: a(f's_lshl_b32 s{S_TMP}, s{S_XCD}, 11\ns_add_u32 s{S_TMP}, s{S_TMP}, {ST1G_OFF}'),
             12, 8)
    stamp(1)
    if ts: a(f'v_mov_b32 v15, s{S_TMP+1}\nv_accvgpr_write_b32 a{A_TS+18}, v15')
    a.vq = []; a.lq = []
    mean_rstd(1.0/(4*131072), 8)
    for c in range(0, 8, 2):
        a(f'v_pk_mul_f32 v[{SCLV+c}:{SCLV+c+1}], v[{SCLV+c}:{SCLV+c+1}], v[10:11]')
        a(f'v_pk_fma_f32 v[{SHF+c}:{SHF+c+1}], v[{SCLV+c}:{SCLV+c+1}], v[8:9], v[{SHF+c}:{SHF+c+1}]')
    ZT = V_P0 + 16
    for q in range(4):
        Z = X0 + 8*q
        for c in range(0, 8, 2):
            a(f'v_pk_fma_f32 v[{Z+c}:{Z+c+1}], v[{Z+c}:{Z+c+1}], v[{SCLV+c}:{SCLV+c+1}], v[{SHF+c}:{SHF+c+1}]')
        silu_pk(a, Z, ZT, 8)
        for i in range(4):
            a(f'v_cvt_pk_bf16_f32 v{Z+i}, v{Z+2*i}, v{Z+2*i+1}')
        a.vmem(f'buffer_store_dwordx4 v[{Z}:{Z+3}], v{V_L16}, {WSR}, s{S_O1} offen offset:{1024*q} {SC}', tag='st')
    a('s_branch L_join')

    a.label('L_warm')
    wdone.clear(); m0cur[0] = None; a.vq = []; a.lq = []
    EW = V_WF
    EA = V_WF + 16
    ET = V_WF + 24
    a(f's_lshr_b32 s{S_TMP+8}, s{S_WITHIN}, 1\ns_and_b32 s{S_TMP+9}, s{S_TMP+8}, 3\ns_lshr_b32 s{S_TMP+10}, s{S_TMP+8}, 2')
    if TLB:
        a(f'v_and_b32 v5, 3, v2\nv_lshlrev_b32 v6, 21, v5\nv_and_b32 v5, 1, v5\nv_mul_u32_u24 v5, 0x1f0000, v5\nv_add_u32 v5, v5, v6')
        a(f'buffer_load_dword v{V_H+4}, v5, {WSR}, 0 offen {SC}')
        a('v_mov_b32 v5, 0')
        for ptr, sz in ((S_OUT, 2097152), (S_G2, 1024), (S_B2, 1024)):
            srd(a, R_A, ptr, ptr+1, sz)
            a(f'buffer_load_dword v{V_H+4}, v5, s[{R_A}:{R_A+3}], 0 offen {SC}')
    if CPF:
        a(f's_getpc_b64 s[{R_A}:{R_A+1}]')
        a(f's_and_b32 s{R_A+1}, s{R_A+1}, 0xffff\ns_mov_b32 s{R_A+2}, {CPF}\ns_mov_b32 s{R_A+3}, 0x20000')
        a(f's_lshl_b32 s{S_TMP}, s{S_TMP+8}, 2\ns_add_u32 s{S_TMP}, s{S_TMP}, s{S_WAVE}\ns_lshl_b32 s{S_TMP}, s{S_TMP}, 10')
        a(f'buffer_load_dwordx4 v[{V_H}:{V_H+3}], v{V_L16}, s[{R_A}:{R_A+3}], s{S_TMP} offen')
    srd(a, R_A, S_WE, S_WE+1, 786432)
    a('v_lshrrev_b32 v6, 2, v0\nv_and_b32 v5, 3, v0')
    a('v_lshlrev_b32 v7, 10, v6\nv_lshl_add_u32 v7, v5, 4, v7')
    a(f's_mul_i32 s{S_TMP}, s{S_TMP+10}, {192*1024}\ns_lshl_b32 s{S_TMP+1}, s{S_G}, 8\ns_add_u32 s{S_TMP}, s{S_TMP}, s{S_TMP+1}')
    a(f's_lshl_b32 s{S_TMP+1}, s{S_TMP+9}, 6\ns_add_u32 s{S_TMP}, s{S_TMP}, s{S_TMP+1}')
    for i in range(3):
        if i: a(f's_add_u32 s{S_TMP}, s{S_TMP}, 65536')
        a(f'buffer_load_dwordx4 v[{EW+4*i}:{EW+4*i+3}], v7, s[{R_A}:{R_A+3}], s{S_TMP} offen')
    srd(a, R_A, S_T, S_T+1, 3072)
    a(f'v_lshlrev_b32 v7, 1, v6\ns_mul_i32 s{S_TMP}, s{S_BB}, 1536\ns_mul_i32 s{S_TMP+1}, s{S_TMP+10}, 384\ns_add_u32 s{S_TMP}, s{S_TMP}, s{S_TMP+1}')
    for i in range(3):
        a(f'buffer_load_ushort v{EW+12+i}, v7, s[{R_A}:{R_A+3}], s{S_TMP} offen offset:{128*i}')
    a(f'v_mov_b32 v{EW+15}, 0')
    if WDLY: a(f's_sleep {WDLY}')
    nbulk = 0
    DUM = V_H
    for bit, ptr in ((1, S_W1), (2, S_W2)):
        if WARM & bit:
            srd(a, R_A, ptr, ptr+1, 4718592)
            if DUP & bit:
                a(f's_lshl_b32 s{S_TMP}, s{S_G}, 6\ns_lshl_b32 s{S_TMP+1}, s{S_TMP+8}, 2\ns_add_u32 s{S_TMP}, s{S_TMP}, s{S_TMP+1}\ns_add_u32 s{S_TMP}, s{S_TMP}, s{S_WAVE}\ns_mul_i32 s{S_TMP}, s{S_TMP}, 18432')
                nl = 18
            else:
                a(f's_lshl_b32 s{S_TMP}, s{S_G}, 7\ns_lshl_b32 s{S_TMP+1}, s{S_TMP+8}, 2\ns_add_u32 s{S_TMP}, s{S_TMP}, s{S_TMP+1}\ns_add_u32 s{S_TMP}, s{S_TMP}, s{S_WAVE}')
                a(f's_lshl_b32 s{S_TMP+1}, s{S_BB}, 6\ns_add_u32 s{S_TMP}, s{S_TMP}, s{S_TMP+1}\ns_mul_i32 s{S_TMP}, s{S_TMP}, 9216')
                nl = 9
            for i in range(nl):
                if i % 4 == 0 and i: a(f's_add_u32 s{S_TMP}, s{S_TMP}, 4096')
                a(f'buffer_load_dwordx4 v[{DUM}:{DUM+3}], v{V_L16}, s[{R_A}:{R_A+3}], s{S_TMP} offen offset:{(i%4)*1024} {NT1 if bit == 1 else NT2}')
                nbulk += 1
    setup()
    a(f's_waitcnt vmcnt({nbulk})')
    stamp(0)
    for i in range(3):
        a(f'v_lshlrev_b32 v{EW+12+i}, 16, v{EW+12+i}')
    silu_pk(a, EW+12, ET, 4)
    for i in range(3):
        for d in range(4):
            op = 'v_mul_f32' if i == 0 else 'v_fmac_f32'
            a(f'v_lshlrev_b32 v4, 16, v{EW+4*i+d}\nv_and_b32 v5, 0xffff0000, v{EW+4*i+d}')
            a(f'{op} v{EA+2*d}, v4, v{EW+12+i}\n{op} v{EA+2*d+1}, v5, v{EW+12+i}')
    for mod in ('row_ror:4 row_mask:0xf', 'row_ror:8 row_mask:0xf'):
        a('s_nop 1')
        for e in range(8):
            a(f'v_add_f32_dpp v{EA+e}, v{EA+e}, v{EA+e} {mod} bank_mask:0xf')
    for sw in ('v_permlane16_swap_b32', 'v_permlane32_swap_b32'):
        for e in range(8):
            a(f'v_mov_b32 v{ET+e}, v{EA+e}')
        a('s_nop 1')
        for e in range(8):
            a(f'{sw} v{EA+e}, v{ET+e}')
        a('s_nop 1')
        for e in range(8):
            a(f'v_add_f32 v{EA+e}, v{EA+e}, v{ET+e}')
    a(f's_lshl_b32 s{S_TMP}, s{S_XCD}, 2\ns_add_u32 s{S_TMP}, s{S_TMP}, s{S_TMP+9}\ns_lshl_b32 s{S_TMP}, s{S_TMP}, 2\ns_add_u32 s{S_TMP}, s{S_TMP}, s{S_TMP+10}')
    a(f's_lshl_b32 s{S_TMP}, s{S_TMP}, 2\ns_add_u32 s{S_TMP}, s{S_TMP}, s{S_WAVE}\ns_lshl_b32 s{S_TMP}, s{S_TMP}, 7\ns_add_u32 s{S_TMP}, s{S_TMP}, {EMBP_OFF}')
    a('v_lshlrev_b32 v4, 5, v2')
    a(f'v_cmp_gt_u32 vcc, 4, v2\ns_and_saveexec_b64 s[{S_SAVE}:{S_SAVE+1}], vcc')
    a(f'buffer_store_dwordx4 v[{EA}:{EA+3}], v4, {WSR}, s{S_TMP} offen {SC}')
    a(f'buffer_store_dwordx4 v[{EA+4}:{EA+7}], v4, {WSR}, s{S_TMP} offen offset:16 {SC}')
    a(f's_mov_b64 exec, s[{S_SAVE}:{S_SAVE+1}]')
    a('v_mov_b32 v12, 0')
    get_epoch('L_ep2', 12)
    stamp(1)
    a.label('L_join')
    a.vq = ['st']; a.lq = []
    stamps[0] = 2
    m0cur[0] = None
    a('v_and_b32 v3, 15, v2\nv_lshrrev_b32 v4, 4, v2')
    if E('FINE'): stamp(19)
    if PREF >= 1: w_dma_all(0)
    if PREF >= 2: w_dma_all(1)
    if E('FINE'): stamp(17)
    a.need(vtags=['st'])
    if E('FINE'): stamp(18)
    a('s_barrier')
    def flag_store(off):
        a(f's_cmp_lg_u32 s{S_WAVE}, 0\ns_cbranch_scc1 L_nf{off:x}')
        a(f's_lshl_b32 s{S_TMP}, s{S_LIN}, 7\ns_add_u32 s{S_TMP}, s{S_TMP}, {off}')
        a(f'v_mov_b32 v5, s{S_E}\nv_mov_b32 v6, 0')
        a(f'v_cmp_eq_u32 vcc, 0, v2\ns_and_saveexec_b64 s[{S_SAVE}:{S_SAVE+1}], vcc')
        a(f'buffer_store_dword v5, v6, {WSR}, s{S_TMP} offen {SC}')
        a(f's_mov_b64 exec, s[{S_SAVE}:{S_SAVE+1}]')
        a.label(f'L_nf{off:x}')
    def flag_poll(off, vaddr, name, mid=None):
        a(f's_mov_b32 s{S_TMP+1}, 0\ns_mov_b32 s{S_TMP}, {off}')
        if mid:
            t = a.vmem(f'buffer_load_dword v5, v{vaddr}, {WSR}, s{S_TMP} offen {SC}')
            mid()
            a.need(vtags=[t])
            keep = list(a.vq)
            a(f'v_cmp_eq_u32 vcc, s{S_E}, v5\ns_nop 0\ns_cmp_eq_u64 vcc, exec\ns_cbranch_scc1 {name}ok')
        a.label(name)
        a(f'buffer_load_dword v5, v{vaddr}, {WSR}, s{S_TMP} offen {SC}')
        a('s_waitcnt vmcnt(0)')
        a(f'v_cmp_eq_u32 vcc, s{S_E}, v5')
        a(f's_add_u32 s{S_TMP+1}, s{S_TMP+1}, 1')
        a(f's_cmp_eq_u64 vcc, exec\ns_cbranch_scc1 {name}ok')
        a(f's_cmp_lt_u32 s{S_TMP+1}, 0x40000\ns_cbranch_scc1 {name}')
        a.label(name + 'ok')
        a.vq = keep if mid else []
    flag_store(F0_OFF)
    stamp()

    if ORD == 0:
        if PREF < 1: w_dma_all(0)
        if PREF < 2: w_dma_all(1)
        w_rawperm(0)
        w_dma_all(2)
    else:
        if PREF < 1: w_dma_all(0)
        if PREF < 2 and ORD == 2: w_dma_all(1)
        w_rawperm(0)
        if PREF < 2 and ORD == 1: w_dma_all(1)
    if DLY0: a(f's_sleep {DLY0}')
    flag_poll(F0_OFF, V_PF0, 'L_p2', (lambda: w_dma_all(2)) if ORD else None)
    stamp()

    H = V_H; PL = V_H + 16
    def conv(ci):
        which = ci + 1
        PACE = float(E('PACE%d' % which, '5.0'))
        ex = []
        for u in range(3):
            dma_a_pre(ci, u, 0)
            for kq in range(4): dma_a(ci, u, kq)
        if ci == 0: w_rawperm(1)
        for r in range(3):
            for half in range(2):
                for dx in range(3):
                    rd_af(ci, 0, r, half, dx)
        items = []
        def put(gs, fn): items.append((gs, len(items), fn))
        row_slot = {}
        for s_ in range(4):
            for r in range(6):
                if r < 3:
                    if s_ == 0: row_slot[(s_, r)] = None; continue
                    base = 72*(2*s_-1) + 18*(r+1)
                else:
                    base = 72*(2*s_) + 18*(r-3) + (4 if r > 3 else 0)
                row_slot[(s_, r)] = base
                i = 0
                for half in range(2):
                    for dx in range(3):
                        put(base + 1 + (3*i)//2, (lambda ss=s_, r=r, half=half, dx=dx: rd_af(ci, ss, r, half, dx))); i += 1
        RAWS = 52
        raw_slot = {}
        for k_ in range(8):
            kk_ = ci*8 + k_
            p_ = kk_ + 1
            if p_ < 16 and p_ not in permdone and k_ >= 1:
                for i in range(36):
                    put(72*k_ + 1 + (i*4)//3, (lambda x=p_, i=i: perm(x, i)))
            r_ = kk_ + 2
            if r_ < 16 and r_ not in rawdone:
                rs = 72*k_ + (RAWS if k_ >= 1 else 30)
                raw_slot[r_] = rs
                for j in range(9):
                    put(rs + 2*j, (lambda x=r_, j=j: rd_raw(x, j)))
        ops = []
        for kk_ in range(ci*8, 16):
            if kk_ in wdone: continue
            if (kk_-2) in rawdone: ea = 0
            elif (kk_-2) in raw_slot: ea = raw_slot[kk_-2] + 22
            else: continue
            if ea > 560: continue
            dl = raw_slot.get(kk_, 72*8 + 40*(kk_ - ci*8))
            for n in wsegs(kk_):
                ops.append((dl, ea, (lambda x=kk_, n=n: dma_w_pre(x, n)), (lambda x=kk_, n=n: dma_w(x, n)), kk_))
        for u in range(3, 12):
            s_, j = divmod(u, 3)
            dl = row_slot[(s_, 2*j)] or 0
            ea = 0
            if u >= NA:
                ps, pj = divmod(u - NA, 3)
                ea = (row_slot[(ps, 2*pj+1)] or 0) + 14
            for kq in range(4):
                def pre(u=u, kq=kq):
                    if u >= NA:
                        ps, pj = divmod(u - NA, 3)
                        assert (ci, ps, 2*pj+1, 1, 2) in issued
                        a.need(ltags=[('F', ps, 2*pj+1, 1, 2)])
                    dma_a_pre(ci, u, kq)
                ops.append((dl, ea, pre, (lambda u=u, kq=kq: dma_a(ci, u, kq)), None))
        ops.sort(key=lambda o: o[0])
        cur = 4.0
        rem = list(ops)
        placed = []
        while rem:
            cand = [o for o in rem if o[1] <= cur]
            if not cand:
                cur = float(min(o[1] for o in rem)); continue
            o = cand[0]; rem.remove(o)
            placed.append((int(cur), o)); cur += PACE
        bad = set(o[4] for sl, o in placed if sl > 572)
        assert None not in bad
        for sl, o in placed:
            if o[4] in bad: continue
            if o[0] < 576 and sl > o[0] - 30: sys.stderr.write(f'warn conv{which}: op at {sl} deadline {o[0]}\n')
            put(sl-1, o[2]); put(sl, o[3])
        base = 72
        SCv = V_P0 + 4; SHv = V_P0 + 12
        if which == 1:
            ef = []
            put(72 + 2, lambda: a(f's_mov_b32 s{S_TMP+1}, {F0_OFF}'))
            put(72 + 4, lambda: ef.append(a.vmem(f'buffer_load_dword v{V_EX+16}, v{V_PF2}, {WSR}, s{S_TMP+1} offen {SC}')))
            def chk():
                a.need(vtags=ef)
                a(f'v_cmp_eq_u32 vcc, s{S_E}, v{V_EX+16}\ns_nop 0\ns_cmp_eq_u64 vcc, exec\ns_cbranch_scc0 L_embslow')
                a.label('L_embok')
            put(144 + 20, chk)
            for i, sl in enumerate([int(x) for x in TRK.split(',')] if TRK else []):
                h_, p_ = divmod(i, 2)
                def t0(i=i):
                    if i == 0:
                        srd(a, R_B, S_W2, S_W2+1, 4718592)
                def t1(i=i):
                    if i == 0:
                        a(f's_lshl_b32 s{S_TMP+10}, s{S_BB}, 5\ns_add_u32 s{S_TMP+10}, s{S_TMP+10}, s{S_WITHIN}\ns_lshl_b32 s{S_TMP+10}, s{S_TMP+10}, 2\ns_add_u32 s{S_TMP+10}, s{S_TMP+10}, s{S_WAVE}')
                        a(f's_lshl_b32 s{S_TMP+11}, s{S_G}, 8\ns_add_u32 s{S_TMP+10}, s{S_TMP+10}, s{S_TMP+11}\ns_mul_i32 s{S_TMP+10}, s{S_TMP+10}, 4608')
                def t2(h_=h_, p_=p_):
                    a.vmem(f'buffer_load_dword v{V_P0}, v{V_PFX}, s[{R_B}:{R_B+3}], s{S_TMP+10} offen offset:{p_*2304 + h_*1152}')
                put(sl-4, t0); put(sl-2, t1); put(sl, t2)
            seq = [lambda: a(f's_lshl_b32 s{S_TMP}, s{S_XCD}, 2\ns_add_u32 s{S_TMP}, s{S_TMP}, s{S_OCT}'),
                   lambda: a(f's_lshl_b32 s{S_TMP}, s{S_TMP}, 11\ns_add_u32 s{S_TMP}, s{S_TMP}, {EMBP_OFF}'),
                   lambda: a('v_lshlrev_b32 v5, 7, v3\nv_lshl_add_u32 v5, v4, 4, v5')]
            for o2 in range(2):
                seq.append(lambda o2=o2: ex.append(a.vmem(f'buffer_load_dwordx4 v[{V_EX+4*o2}:{V_EX+4*o2+3}], v5, {WSR}, s{S_TMP} offen offset:{64*o2} {SC}')))
            seq += [lambda: a(f's_mov_b32 s{R_A}, s{S_G2}\ns_and_b32 s{R_A+1}, s{S_G2+1}, 0xffff'), lambda: a(f's_movk_i32 s{R_A+2}, 1024\ns_mov_b32 s{R_A+3}, 0x20000'),
                    lambda: a(f'v_lshlrev_b32 v5, 3, v4\ns_lshl_b32 s{S_TMP}, s{S_OC0}, 1')]
            for o2 in range(2):
                seq.append(lambda o2=o2: ex.append(a.vmem(f'buffer_load_dwordx2 v[{V_EX+8+2*o2}:{V_EX+9+2*o2}], v5, s[{R_A}:{R_A+3}], s{S_TMP} offen offset:{o2*32}')))
            seq += [lambda: a(f's_mov_b32 s{R_A}, s{S_B2}\ns_and_b32 s{R_A+1}, s{S_B2+1}, 0xffff')]
            for o2 in range(2):
                seq.append(lambda o2=o2: ex.append(a.vmem(f'buffer_load_dwordx2 v[{V_EX+12+2*o2}:{V_EX+13+2*o2}], v5, s[{R_A}:{R_A+3}], s{S_TMP} offen offset:{o2*32}')))
            seq += [lambda: a('v_lshrrev_b32 v5, 1, v4\nv_lshlrev_b32 v5, 14, v5'), lambda: a('v_lshl_add_u32 v5, v3, 4, v5\nv_and_b32 v6, 1, v4'),
                    lambda: a(f'v_lshl_add_u32 v{V_EX+16}, v6, 8, v5\ns_lshl_b32 s{S_TMP}, s{S_BB}, 20'),
                    lambda: a(f's_lshl_b32 s{S_TMP+1}, s{S_OC0}, 11\ns_add_u32 s{S_TMP}, s{S_TMP}, s{S_TMP+1}'),
                    lambda: a(f's_add_u32 s{S_TMP+1}, s{S_Y0}, s{S_WAVE}\ns_lshl_b32 s{S_TMP+1}, s{S_TMP+1}, 9'),
                    lambda: a(f's_add_u32 s{S_O1}, s{S_TMP}, s{S_TMP+1}\ns_add_u32 s{S_O1}, s{S_O1}, {A2_OFF}'),
                    lambda: a(f's_add_u32 s{S_O2}, s{S_O1}, 32768')]
            for i, fn in enumerate(seq): put(144 + 24 + 3*i, fn)
            seq = [lambda: a.need(vtags=ex)]
            for mod in ('quad_perm:[1,0,3,2]', 'quad_perm:[2,3,0,1]', 'row_half_mirror', 'row_mirror'):
                for i in range(8):
                    seq.append(lambda mod=mod, i=i: a(f'v_add_f32_dpp v{V_EX+i}, v{V_EX+i}, v{V_EX+i} {mod} row_mask:0xf bank_mask:0xf'))
            for o2 in range(2):
                for i in range(4):
                    g = V_EX+8+2*o2+i//2; be = V_EX+12+2*o2+i//2; e = o2*4+i
                    if i % 2 == 0:
                        seq.append(lambda g=g, e=e: a(f'v_lshlrev_b32 v{SCv+e}, 16, v{g}')); seq.append(lambda be=be, e=e: a(f'v_lshlrev_b32 v{SHv+e}, 16, v{be}'))
                    else:
                        seq.append(lambda g=g, e=e: a(f'v_and_b32 v{SCv+e}, 0xffff0000, v{g}')); seq.append(lambda be=be, e=e: a(f'v_and_b32 v{SHv+e}, 0xffff0000, v{be}'))
            for i, fn in enumerate(seq): put(72*4 + 10 + 2*i, fn)
        else:
            seq = [lambda: a(f's_mov_b32 s{R_A}, s{S_OUT}\ns_and_b32 s{R_A+1}, s{S_OUT+1}, 0xffff'), lambda: a(f's_mov_b32 s{R_A+2}, 2097152\ns_mov_b32 s{R_A+3}, 0x20000'),
                   lambda: a(f'v_lshlrev_b32 v{V_EX+16}, 11, v3\nv_lshl_add_u32 v{V_EX+16}, v4, 3, v{V_EX+16}'),
                   lambda: a(f's_lshl_b32 s{S_TMP}, s{S_BB}, 20\ns_lshl_b32 s{S_TMP+1}, s{S_OC0}, 11'),
                   lambda: a(f's_add_u32 s{S_TMP}, s{S_TMP}, s{S_TMP+1}\ns_add_u32 s{S_TMP+1}, s{S_Y0}, s{S_WAVE}'),
                   lambda: a(f's_lshl_b32 s{S_TMP+1}, s{S_TMP+1}, 6\ns_add_u32 s{S_O1}, s{S_TMP}, s{S_TMP+1}'),
                   lambda: a(f's_add_u32 s{S_O2}, s{S_O1}, 32768')]
            for o2 in range(2):
                for half in range(2):
                    r = V_EX + (o2*2+half)*2
                    seq.append(lambda r=r, o2=o2, half=half: ex.append(a.vmem(f'buffer_load_dwordx2 v[{r}:{r+1}], v{V_EX+16}, s[{R_X}:{R_X+3}], s{S_O1 if o2 == 0 else S_O2} offen offset:{half*32}')))
            for i, fn in enumerate(seq): put(6 + 3*i, fn)
            seq = [lambda: a.need(vtags=ex)]
            for q in range(8):
                seq.append(lambda q=q: a(f'v_lshlrev_b32 v{V_P0+2*q}, 16, v{V_EX+q}')); seq.append(lambda q=q: a(f'v_and_b32 v{V_P0+2*q+1}, 0xffff0000, v{V_EX+q}'))
            for i, fn in enumerate(seq): put(72*3 + 3*i, fn)
        def poff(o2, ro, half): return (8192 if o2 == 0 else 0) + (ro*2+half)*1024
        def pw(o2, ro, half):
            c = acc(o2, ro, half)
            a.lds(f'ds_write_b128 v{V_PW}, a[{c}:{c+3}] offset:{poff(o2, ro, half)}', tag=('PW', o2))
        def prd(o2, v, half, dst):
            b_ = V_T if v < 2 else V_T+1
            a.lds(f'ds_read_b128 v[{dst}:{dst+3}], v{b_} offset:{(v%2)*WAVE_LDS + poff(o2, 0, half)}', tag=('P', o2, v, half))
        def red_reads(o2):
            outs = []
            for half in range(2):
                for v in range(4):
                    dst = (H + (o2*2+half)*4) if v == 0 else (PL + (half*3 + v-1)*4)
                    outs.append(lambda v=v, half=half, dst=dst: prd(o2, v, half, dst))
            return outs
        SQ = V_T + 8
        def red_adds(o2, pk):
            outs = []
            for half in range(2):
                h = H + (o2*2+half)*4
                extra = (V_EX + 4*o2) if which == 1 else (V_P0 + (o2*2+half)*4)
                for v in range(1, 5):
                    for i in range(0, 4, 2 if pk else 1):
                        def f(half=half, v=v, i=i, h=h, extra=extra):
                            a.need(ltags=[('P', o2, 3, half)])
                            src = (PL + (half*3+v-1)*4 + i) if v < 4 else extra + i
                            if pk: a(f'v_pk_add_f32 v[{h+i}:{h+i+1}], v[{h+i}:{h+i+1}], v[{src}:{src+1}]')
                            else: a(f'v_add_f32 v{h+i}, v{h+i}, v{src}')
                        outs.append(f)
                if which == 1:
                    if pk:
                        for i in range(0, 4, 2):
                            outs.append(lambda h=h, i=i: a(f'v_pk_fma_f32 v[{SQ+2}:{SQ+3}], v[{h+i}:{h+i+1}], v[{h+i}:{h+i+1}], v[{SQ+2}:{SQ+3}]'))
                            outs.append(lambda h=h, i=i: a(f'v_pk_add_f32 v[{SQ}:{SQ+1}], v[{SQ}:{SQ+1}], v[{h+i}:{h+i+1}]'))
                    else:
                        for i in range(4):
                            outs.append(lambda h=h, i=i: a(f'v_fmac_f32 v{SQ+2+i%2}, v{h+i}, v{h+i}'))
                            outs.append(lambda h=h, i=i: a(f'v_add_f32 v{SQ+i%2}, v{SQ+i%2}, v{h+i}'))
                else:
                    o = V_EX + (o2*2+half)*2
                    outs.append(lambda h=h, o=o: a(f'v_cvt_pk_bf16_f32 v{o}, v{h}, v{h+1}\nv_cvt_pk_bf16_f32 v{o+1}, v{h+2}, v{h+3}'))
                    outs.append(lambda o=o, half=half: a.vmem(f'buffer_store_dwordx2 v[{o}:{o+1}], v{V_EX+16}, s[{R_A}:{R_A+3}], s{S_O1 if o2 == 0 else S_O2} offen offset:{half*32} {OUTF}'))
            return outs
        b6 = 72*6; b7 = 72*7
        put(b6, lambda: a(f's_lshl_b32 s{S_TMP}, s{S_WAVE}, 11\ns_add_u32 s{S_TMP}, s{S_TMP}, {A_BASE}'))
        put(b6 + 2, lambda: a(f'v_add_u32 v{V_T}, s{S_TMP}, v{V_L16}\nv_add_u32 v{V_T+1}, {2*WAVE_LDS}, v{V_T}'))
        if which == 1:
            put(b6 + 4, lambda: a(f'v_mov_b32 v{SQ}, 0\nv_mov_b32 v{SQ+1}, 0'))
            put(b6 + 6, lambda: a(f'v_mov_b32 v{SQ+2}, 0\nv_mov_b32 v{SQ+3}, 0'))
        for o2 in range(2):
            for ro in range(4):
                for half in range(2):
                    sl = 72*(6+o2) + 18*ro + 9*half + 8 + 9
                    if sl <= 575 and not (o2 == 1 and ro == 3):
                        put(sl, (lambda o2=o2, ro=ro, half=half: pw(o2, ro, half)))
        def fbar():
            a.need(ltags=[('PW', 0)]); a('s_barrier')
        put(b7 + 14, fbar)
        for i, fn in enumerate(red_reads(0)): put(b7 + 15 + i, fn)
        for i, fn in enumerate(red_adds(0, False)): put(b7 + 26 + (i*7)//8, fn)
        items.sort(key=lambda x: (x[0], x[1]))
        qi = 0
        gs = 0
        for k in range(8):
            if k in (0, 1): stamp()
            if E('PSTAMP') and ci == int(E('PSTAMP'))-1: stamp(232 - A_TS + k)
            s, ob = divmod(k, 2)
            kk = ci*8 + k
            assert kk in permdone
            for ro in range(4):
                for half in range(2):
                    for dy in range(3):
                        for dx in range(3):
                            if dx == 0:
                                for d2 in range(3):
                                    assert (ci, s, ro+dy, half, d2) in issued, (ci, s, ro, dy, half, gs)
                                a.need(ltags=[('F', s, ro+dy, half, d2) for d2 in range(3)])
                            c = acc(ob, ro, half); w_ = wf(kk, dy*3+dx); f_ = af(ro+dy, half, dx)
                            srcc = '0' if (s == 0 and dy == 0 and dx == 0) else f'a[{c}:{c+3}]'
                            if which == 1:
                                a(f'v_mfma_f32_16x16x32_bf16 a[{c}:{c+3}], v[{w_}:{w_+3}], a[{f_}:{f_+3}], {srcc}')
                            else:
                                a(f'v_mfma_f32_16x16x32_bf16 a[{c}:{c+3}], a[{f_}:{f_+3}], v[{w_}:{w_+3}], {srcc}')
                            n1 = len(a.L)
                            last = (gs == 575)
                            while qi < len(items) and items[qi][0] <= gs and (len(a.L) - n1 < CAP or last):
                                items[qi][2](); qi += 1
                            gs += 1
        assert qi == len(items), (qi, len(items))
        if E('PSTAMP') and ci == int(E('PSTAMP'))-1: stamp(240 - A_TS)
        pw(1, 3, 0)
        a('s_nop 7')
        pw(1, 3, 1)
        a.need(ltags=[('PW', 1)]); a('s_barrier')
        for fn in red_reads(1): fn()
        for fn in red_adds(1, True): fn()
        stamp()
        if which == 1:
            G = V_T + 4
            a(f'v_add_f32 v{SQ}, v{SQ}, v{SQ+1}\nv_add_f32 v{SQ+1}, v{SQ+2}, v{SQ+3}\ns_nop 0')
            red2(a, SQ, SQ+1, S_R1, S_R2)
            a(f'v_mov_b32 v{G+1}, s{S_E}\nv_mov_b32 v{G+3}, s{S_E}\nv_mov_b32 v{G}, s{S_R1}\nv_mov_b32 v{G+2}, s{S_R2}')
            a(f's_lshl_b32 s{S_TMP+6}, s{S_LIN}, 2\ns_add_u32 s{S_TMP+6}, s{S_TMP+6}, s{S_WAVE}')
            def mid3():
                a.vq.append(('pub',))
                if 9 in rawdone and 9 not in permdone:
                    for i in range(36): perm(9, i)
            exchange('L_p3', G,
                     lambda: a(f's_lshl_b32 s{S_TMP+2}, s{S_TMP+6}, 4\ns_add_u32 s{S_TMP+2}, s{S_TMP+2}, {ST2L_OFF}'),
                     lambda: a(f's_lshl_b32 s{S_TMP+3}, s{S_TMP+6}, 7\ns_add_u32 s{S_TMP+3}, s{S_TMP+3}, {ST2G_OFF}'),
                     False, 2, 63,
                     lambda: a(f's_lshl_b32 s{S_TMP}, s{S_XCD}, 11\ns_add_u32 s{S_TMP}, s{S_TMP}, {ST2L_OFF}'),
                     lambda: a(f's_lshl_b32 s{S_TMP}, s{S_XCD}, 14\ns_add_u32 s{S_TMP}, s{S_TMP}, {ST2G_OFF}'),
                     V_T+8, PL, mid3)
            a.vq = []
            stamp()
            M = V_T + 8
            mean_rstd(1.0/131072, M)
            for e in range(0, 8, 2):
                a(f'v_pk_mul_f32 v[{SCv+e}:{SCv+e+1}], v[{SCv+e}:{SCv+e+1}], v[{M+2}:{M+3}]')
                a(f'v_pk_fma_f32 v[{SHv+e}:{SHv+e+1}], v[{SCv+e}:{SCv+e+1}], v[{M}:{M+1}], v[{SHv+e}:{SHv+e+1}]')
            for o2 in range(2):
                Z = H + o2*8
                for half in range(2):
                    for i in range(0, 4, 2):
                        r = Z + half*4 + i
                        a(f'v_pk_fma_f32 v[{r}:{r+1}], v[{r}:{r+1}], v[{SCv+o2*4+i}:{SCv+o2*4+i+1}], v[{SHv+o2*4+i}:{SHv+o2*4+i+1}]')
                silu_pk(a, Z, PL, 8)
                r = PL + 8 + o2*4
                for q in range(4):
                    a(f'v_cvt_pk_bf16_f32 v{r+q}, v{Z+2*q}, v{Z+2*q+1}')
                a('s_nop 1')
                a(f'v_permlane16_swap_b32 v{r}, v{r+2}\nv_permlane16_swap_b32 v{r+1}, v{r+3}')
                a(f'buffer_store_dwordx4 v[{r}:{r+3}], v{V_EX+16}, {WSR}, s{S_O1 if o2 == 0 else S_O2} offen {SC}')
            if BND and 10 in wdone and 10 not in rawdone:
                w_rawperm(10, False)
            a('s_waitcnt vmcnt(0)\ns_barrier')
            a.vq = []
            flag_store(F1_OFF)
            a.vq = [('flag',)]
            stamp()
            todo = [kk_ for kk_ in (10, 11, 12) if kk_ not in wdone and (kk_-2) in rawdone and (BND or kk_ < 12)]
            for kk_ in (todo[:-1] if ORDB else todo): w_dma_all(kk_)
            if DLY1: a(f's_sleep {DLY1}')
            flag_poll(F1_OFF, V_PF1, 'L_p4', (lambda: w_dma_all(todo[-1])) if ORDB else None)
            stamp()
    conv(0)
    conv(1)
    if ts:
        a('s_waitcnt vmcnt(0)')
        stamp()
        a('s_memrealtime s[98:99]\ns_waitcnt lgkmcnt(0)')
        for i in range(16):
            a(f'v_accvgpr_read_b32 v{72+i}, a{A_TS+i}')
        for i in range(4):
            a(f'v_accvgpr_read_b32 v{92+i}, a{A_TS+16+i}')
        a('v_accvgpr_read_b32 v88, a229\nv_mov_b32 v89, s100\nv_mov_b32 v90, s98\nv_mov_b32 v91, 0')
        a(f's_lshl_b32 s{S_TMP}, s2, 9\ns_lshl_b32 s{S_TMP+1}, s{S_WAVE}, 7\ns_add_u32 s{S_TMP}, s{S_TMP}, s{S_TMP+1}\nv_mov_b32 v8, s{S_TMP}')
        srd(a, R_B, S_WS, S_WS+1, 0x40000, TS_OFF)
        a(f'v_cmp_eq_u32 vcc, 0, v2\ns_and_saveexec_b64 s[{S_SAVE}:{S_SAVE+1}], vcc')
        for i in range(6):
            a(f'buffer_store_dwordx4 v[{72+4*i}:{75+4*i}], v8, s[{R_B}:{R_B+3}], 0 offen offset:{16*i}')
        if E('DBGOUT'):
            wg = int(E('DBGOUT'))
            a(f's_cmp_lg_u32 s2, {wg}\ns_cbranch_scc1 L_end\ns_cmp_lg_u32 s{S_WAVE}, 1\ns_cbranch_scc1 L_end')
            srd(a, R_B, S_DBG, S_DBG+1, 256)
            for i in range(14):
                a(f'v_sub_u32 v{72+i}, v{72+i}, v88')
            a('v_sub_u32 v90, v90, v89\nv_mov_b32 v8, 0')
            a(f'buffer_store_dword v90, v8, s[{R_B}:{R_B+3}], 0 offen offset:4')
            for i in range(7):
                a(f'buffer_store_dwordx2 v[{72+2*i}:{73+2*i}], v8, s[{R_B}:{R_B+3}], 0 offen offset:{8+8*i}')
        if E('PSTAMP'):
            for i in range(12):
                a(f'v_accvgpr_read_b32 v{100+i}, a{232+i}')
            srd(a, R_B, S_WS, S_WS+1, 0x40000, TS_OFF + 0x100000)
            for i in range(3):
                a(f'buffer_store_dwordx4 v[{100+4*i}:{103+4*i}], v8, s[{R_B}:{R_B+3}], 0 offen offset:{16*i}')
    a.label('L_end')
    a('s_endpgm')
    a.label('L_embslow')
    a(f's_mov_b32 s{S_TMP+2}, 0')
    a.label('L_embslow2')
    a(f'buffer_load_dword v{V_EX+16}, v{V_PF2}, {WSR}, s{S_TMP+1} offen {SC}')
    a('s_waitcnt vmcnt(0)')
    a(f'v_cmp_eq_u32 vcc, s{S_E}, v{V_EX+16}')
    a(f's_add_u32 s{S_TMP+2}, s{S_TMP+2}, 1')
    a('s_cmp_eq_u64 vcc, exec\ns_cbranch_scc1 L_embok')
    a(f's_cmp_lt_u32 s{S_TMP+2}, 0x40000\ns_cbranch_scc1 L_embslow2')
    a('s_branch L_embok')
    name = 'standalone__adm_resblock__diffusion_kernel'
    return khead(name) + a.text(), kd(name, 256+(248 if ts else 208), 256)

def main():
    ts = '--ts' in sys.argv
    hdr = open('standalone__adm_resblock__diffusion.s.ref').read().split('\n')
    top = [l for l in hdr if l.startswith(';') and '@launch' not in l]
    top += ['; @launch grid=(256,1,1) block=(256,1,1) lds=163840']
    k = gen(ts)
    out = '\n'.join(top) + '\n.amdgcn_target "amdgcn-amd-amdhsa--gfx950"\n.text\n'
    out += k[0] + '\n.section .rodata,"a"\n' + k[1] + '\n'
    print(out)

main()
```

```python
import sys, struct, os
from genlib import *

E = os.environ.get
WARM = int(E('WARM', '3'))
TRK = E('TRK', '')
TOUCH = int(E('TOUCH', '1'))
PREF = int(E('PREF', '0'))
ORD = int(E('ORD', '0'))
CPF = int(E('CPF', '0'))
TLB = int(E('TLB', '1'))
ECHO = E('ECHO', '')
ORDB = int(E('ORDB', '0'))
OUTF = E('OUTF', '')
DUP = int(E('DUP', '1'))
NT1 = E('NT1', ''); NT2 = E('NT2', ''); NTX = E('NTX', '')
WDLY = int(E('WDLY', '0'))
NOVM = E('NOVM', '')
EPS = E('EPS', '10,6')
DLY0 = int(E('DLY0', '0')); DLY1 = int(E('DLY1', '0'))
CAP = int(E('CAP', '2'))
BND = int(E('BND', '1'))
NLOC = int(E('NLOC', '12')); KGLOB = int(E('KGLOB', '2'))
SC = 'sc1'

A1_OFF = 0x010000
A2_OFF = 0x410000
EMBP_OFF = 0x700000
ST1L_OFF = 0x720000
ST2L_OFF = 0x724000
ST1G_OFF = 0x730000
F0_OFF = 0x738000
F1_OFF = 0x740000
ST2G_OFF = 0x760000
WS_SIZE = 0x800000
TS_OFF = 0x8000000

WAVE_LDS = 40960
WSLOT = 10240
NA = 5
A_BASE = 2*WSLOT
MISC = A_BASE

V_AD = 16; V_AR = 28; V_L16 = 31; V_EX = 32
V_PF0 = 49; V_PF1 = 50; V_PW = 51
V_T = 52
V_PF2 = 54; V_PFX = 55
V_WD = 64
V_WR = 74
V_WRX = 78
V_RAW = 82
V_WF = 118
V_P0 = 190
V_H = 216
A_ACC = 0; A_AF = 64; A_TS = 208
def acc(ob, ro, half): return A_ACC + ((ob*4 + ro)*2 + half)*4
def af(r, half, dx): return A_AF + ((r*2 + half)*3 + dx)*4
def wf(kk, tap): return V_WF + (kk % 2)*36 + tap*4

S_X, S_T, S_G1, S_B1, S_W1, S_WE, S_G2, S_B2, S_W2, S_OUT, S_DBG, S_WS = 4, 6, 8, 10, 12, 14, 16, 18, 20, 22, 24, 26
R_WS = 28; R_X = 32; R_A = 36; R_B = 40
S_WAVE = 44; S_XCD = 45; S_WITHIN = 46; S_BB = 47; S_G = 48; S_OCT = 49; S_PXT = 50; S_OC0 = 51; S_Y0 = 52
S_LDS = 53; S_E = 54; S_FFFF = 55
S_WOFF = 56
S_AOFF = 64
S_TMP = 68
S_C = 80
S_LIN = 84; S_IDX = 85; S_R1 = 86; S_R2 = 87
S_O1 = 88; S_O2 = 89; S_SAVE = 90
S_TS = 92
R_WQ = 96

def red2(a, v1, v2, s1, s2):
    for mod in ('quad_perm:[1,0,3,2] row_mask:0xf', 'quad_perm:[2,3,0,1] row_mask:0xf', 'row_half_mirror row_mask:0xf',
                'row_mirror row_mask:0xf', 'row_bcast:15 row_mask:0xa', 'row_bcast:31 row_mask:0xc'):
        a('s_nop 0')
        a(f'v_add_f32_dpp v{v1}, v{v1}, v{v1} {mod} bank_mask:0xf')
        a(f'v_add_f32_dpp v{v2}, v{v2}, v{v2} {mod} bank_mask:0xf')
    a(f'v_readlane_b32 s{s1}, v{v1}, 63\ns_nop 0\nv_readlane_b32 s{s2}, v{v2}, 63')

def silu_pk(a, z, t, n):
    for i in range(0, n, 2):
        a(f'v_pk_mul_f32 v[{t+i}:{t+i+1}], v[{z+i}:{z+i+1}], s[{S_C}:{S_C+1}]')
    for i in range(n):
        a(f'v_exp_f32 v{t+i}, v{t+i}')
    if n <= 4: a('s_nop 0')
    for i in range(0, n, 2):
        a(f'v_pk_add_f32 v[{t+i}:{t+i+1}], v[{t+i}:{t+i+1}], s[{S_C+2}:{S_C+3}]')
    for i in range(n):
        a(f'v_rcp_f32 v{t+i}, v{t+i}')
    if n <= 4: a('s_nop 0')
    for i in range(0, n, 2):
        a(f'v_pk_mul_f32 v[{z+i}:{z+i+1}], v[{z+i}:{z+i+1}], v[{t+i}:{t+i+1}]')

def gen(ts=False):
    a = Asm()
    stamps = [0]
    def stamp(idx=None):
        if ECHO:
            i = stamps[0] if idx is None else idx
            e0, e1 = [int(x) for x in ECHO.split(',')]
            if i == e0: a('s_memrealtime s[100:101]'); a.wait_all(v=False)
            if i == e1: a('s_memrealtime s[94:95]'); a.wait_all(v=False)
            if idx is None and not ts: stamps[0] += 1
        if ts:
            a(f's_memtime s[{S_TS}:{S_TS+1}]'); a.wait_all(v=False)
            i = stamps[0] if idx is None else idx
            a(f'v_mov_b32 v15, s{S_TS}\nv_accvgpr_write_b32 a{A_TS+i}, v15')
            if idx is None: stamps[0] += 1
    WSR = f's[{R_WS}:{R_WS+3}]'
    a('s_cmp_ge_u32 s2, 256\ns_cbranch_scc1 L_end')
    a('s_load_dwordx16 s[4:19], s[0:1], 0')
    a('s_load_dwordx8 s[20:27], s[0:1], 64')
    a(f's_memrealtime s[{S_TS+2}:{S_TS+3}]')
    if ECHO: a('s_memrealtime s[100:101]')
    if ts:
        a('s_memtime s[90:91]\ns_memrealtime s[100:101]\ns_waitcnt lgkmcnt(0)\nv_mov_b32 v15, s90\nv_accvgpr_write_b32 a229, v15')
    a('v_lshrrev_b32 v1, 6, v0\nv_and_b32 v2, 63, v0')
    a(f'v_readfirstlane_b32 s{S_WAVE}, v1')
    a(f's_and_b32 s{S_XCD}, s2, 7\ns_lshr_b32 s{S_WITHIN}, s2, 3')
    a(f's_lshr_b32 s{S_BB}, s{S_XCD}, 2\ns_and_b32 s{S_G}, s{S_XCD}, 3')
    a(f's_and_b32 s{S_OCT}, s{S_WITHIN}, 3\ns_lshr_b32 s{S_PXT}, s{S_WITHIN}, 2')
    a(f's_lshl_b32 s{S_OC0}, s{S_G}, 7\ns_lshl_b32 s{S_TMP}, s{S_OCT}, 5\ns_add_u32 s{S_OC0}, s{S_OC0}, s{S_TMP}')
    a(f's_lshl_b32 s{S_Y0}, s{S_PXT}, 2')
    a(f's_mul_i32 s{S_LDS}, s{S_WAVE}, {WAVE_LDS}')
    a(f's_lshl_b32 s{S_LIN}, s{S_XCD}, 5\ns_add_u32 s{S_LIN}, s{S_LIN}, s{S_WITHIN}')
    a(f's_lshr_b32 s{S_IDX}, s{S_LIN}, 1')
    a('v_lshlrev_b32 v3, 1, v2\nv_lshl_add_u32 v3, v1, 9, v3')
    a(f'v_lshlrev_b32 v{V_L16}, 4, v2')
    a(f's_lshl_b32 s{S_TMP+4}, s{S_IDX}, 14')
    a(f's_lshl_b32 s{S_TMP+6}, s{S_WAVE}, 12\ns_add_u32 s{S_O1}, s{S_TMP+4}, s{S_TMP+6}\ns_add_u32 s{S_O1}, s{S_O1}, {A1_OFF}')
    a(f's_and_b32 s{S_TMP+5}, s{S_IDX}, 63\ns_lshl_b32 s{S_TMP+5}, s{S_TMP+5}, 4')
    a(f's_or_b32 s{S_TMP+7}, s2, s{S_WAVE}')
    a(f's_mov_b32 s{S_C}, 0x{NLOG2E:x}\ns_mov_b32 s{S_C+1}, 0x{NLOG2E:x}\ns_mov_b32 s{S_C+2}, 1.0\ns_mov_b32 s{S_C+3}, 1.0')
    a('s_waitcnt lgkmcnt(0)')
    srd(a, R_B, S_DBG, S_DBG+1, 256)
    a(f's_cmp_lg_u32 s{S_TMP+7}, 0\ns_cbranch_scc1 L_noep')
    a(f's_or_b32 s{S_TS+2}, s{S_TS+2}, 1\nv_mov_b32 v5, s{S_TS+2}\nv_mov_b32 v4, 0')
    a(f'buffer_store_dword v5, v4, s[{R_B}:{R_B+3}], 0 offen {SC}')
    a.label('L_noep')
    srd(a, R_X, S_X, S_X+1, 2097152)
    srd(a, R_WS, S_WS, S_WS+1, WS_SIZE)
    a(f's_bitcmp1_b32 s{S_WITHIN}, 0\ns_cbranch_scc1 L_warm')

    def get_epoch(nm, v0_):
        a(f'v_mov_b32 v13, 0\ns_mov_b32 s{S_TMP+1}, 0')
        a.label(nm)
        a(f'v_readfirstlane_b32 s{S_E}, v{v0_}')
        a(f's_add_u32 s{S_TMP+1}, s{S_TMP+1}, 1')
        a(f's_cmp_lg_u32 s{S_E}, 0\ns_cbranch_scc1 {nm}ok')
        a(f's_cmp_gt_u32 s{S_TMP+1}, 0x40000\ns_cbranch_scc1 {nm}ok')
        a(f'buffer_load_dword v{v0_}, v13, s[{R_B}:{R_B+3}], 0 offen {SC}')
        a(f's_waitcnt vmcnt(0)\ns_branch {nm}')
        a.label(nm + 'ok')

    def exchange(nm, vS, loc_own, glob_own, publisher_cond, nld, lanemask, loc_base, glob_base, vA, vL, mid=None):
        loc_own(); glob_own()
        def pub(sreg, flag):
            if publisher_cond: a(f's_cmp_lg_u32 s{S_WAVE}, 0\ns_cbranch_scc1 {nm}_np{len(a.L)}'); lab = a.L[-1].split()[-1]
            a(f'v_mov_b32 v{vA+1}, 0\nv_cmp_eq_u32 vcc, 0, v2\ns_and_saveexec_b64 s[{S_SAVE}:{S_SAVE+1}], vcc')
            a(f'buffer_store_dwordx4 v[{vS}:{vS+3}], v{vA+1}, {WSR}, s{sreg} offen {flag}')
            a(f's_mov_b64 exec, s[{S_SAVE}:{S_SAVE+1}]')
            if publisher_cond: a.label(lab)
        pub(S_TMP+2, '')
        a(f'v_and_b32 v{vA}, {lanemask}, v2\nv_lshlrev_b32 v{vA}, 4, v{vA}')
        loc_base()
        a(f's_mov_b32 s{S_TMP+1}, 0\ns_movk_i32 s{S_TMP+4}, 1024')
        if mid: mid()
        a.label(nm)
        for i in range(nld):
            if i == 0:
                a(f'buffer_load_dwordx4 v[{vL}:{vL+3}], v{vA}, {WSR}, s{S_TMP} offen {SC}')
            else:
                a(f's_add_u32 s{S_TMP+5}, s{S_TMP}, s{S_TMP+4}')
                a(f'buffer_load_dwordx4 v[{vL+4}:{vL+7}], v{vA}, {WSR}, s{S_TMP+5} offen {SC}')
        a('s_waitcnt vmcnt(0)')
        a(f'v_xor_b32 v{vA+1}, s{S_E}, v{vL+1}\nv_xor_b32 v{vA+2}, s{S_E}, v{vL+3}')
        if nld == 2:
            a(f'v_xor_b32 v{vA+3}, s{S_E}, v{vL+5}\nv_or3_b32 v{vA+1}, v{vA+1}, v{vA+2}, v{vA+3}\nv_xor_b32 v{vA+2}, s{S_E}, v{vL+7}')
        a(f'v_or_b32 v{vA+1}, v{vA+1}, v{vA+2}')
        a(f'v_cmp_eq_u32 vcc, 0, v{vA+1}')
        a(f's_add_u32 s{S_TMP+1}, s{S_TMP+1}, 1')
        a(f's_cmp_eq_u64 vcc, exec\ns_cbranch_scc1 {nm}_ok')
        a(f's_cmp_lg_u32 s{S_TMP+1}, {KGLOB}\ns_cbranch_scc1 {nm}_c1')
        pub(S_TMP+3, SC)
        a.label(f'{nm}_c1')
        a(f's_cmp_lg_u32 s{S_TMP+1}, {NLOC}\ns_cbranch_scc1 {nm}_c2')
        a(f'v_lshlrev_b32 v{vA}, 3, v{vA}\ns_movk_i32 s{S_TMP+4}, 8192')
        glob_base()
        a.label(f'{nm}_c2')
        a(f's_cmp_lt_u32 s{S_TMP+1}, 0x40000\ns_cbranch_scc1 {nm}')
        a.label(f'{nm}_ok')
        a(f's_cmp_gt_u32 s{S_TMP+1}, {KGLOB}\ns_cbranch_scc1 {nm}_c3')
        pub(S_TMP+3, SC)
        a.label(f'{nm}_c3')
        if nld == 2:
            a(f'v_add_f32 v{vL}, v{vL}, v{vL+4}\nv_add_f32 v{vL+2}, v{vL+2}, v{vL+6}\ns_nop 0')
        red2(a, vL, vL+2, S_R1, S_R2)

    def mean_rstd(inv, vm):
        ib = f2u(inv)
        a(f'v_mov_b32 v{vm}, 0x{ib:x}\ns_nop 0')
        a(f'v_mul_f32 v{vm+2}, s{S_R2}, v{vm}\nv_mul_f32 v{vm}, s{S_R1}, v{vm}')
        a(f'v_fma_f32 v{vm+2}, -v{vm}, v{vm}, v{vm+2}\nv_max_f32 v{vm+2}, 0, v{vm+2}\nv_add_f32 v{vm+2}, 0x3727c5ac, v{vm+2}')
        a(f'v_rsq_f32 v{vm+2}, v{vm+2}\nv_sub_f32 v{vm}, 0, v{vm}\nv_mov_b32 v{vm+1}, v{vm}\nv_mov_b32 v{vm+3}, v{vm+2}')

    m0cur = [None]
    def set_m0(v):
        if m0cur[0] != v:
            a(f's_add_u32 m0, s{S_LDS}, {v}'); m0cur[0] = v
    def fix_m0():
        if a.L[-1].startswith('s_add_u32 m0'): a('s_nop 0')
    def wsegs(kk):
        return list(range(10)) if ((kk % 8)//2) % 2 == 0 else list(range(1, 9))
    wdone = set(); rawdone = set(); permdone = set()
    def dma_w_pre(kk, n):
        if kk >= 2: assert (kk-2) in rawdone, kk
        if 'w' in NOVM: return
        if kk >= 2: a.need(ltags=[('R', kk-2, 8)])
        if kk == 8 and n == 0:
            srd(a, R_WQ, S_W2, S_W2+1, 4718592+4096, -4096)
        set_m0((kk % 2)*WSLOT + (n - n % 4)*1024)
    def dma_w(kk, n):
        if n == wsegs(kk)[-1]: wdone.add(kk)
        if 'w' in NOVM: return
        assert m0cur[0] == (kk % 2)*WSLOT + (n - n % 4)*1024
        fix_m0()
        a.vmem(f'buffer_load_dwordx4 v{V_WD+n}, s[{R_WQ}:{R_WQ+3}], s{S_WOFF + kk % 8} offen offset:{(n%4)*1024} lds', tag=('W', kk))
    atmp = [None]; adone = set()
    def dma_a_pre(conv, u, kq):
        if 'a' in NOVM: return
        s, j = divmod(u, 3)
        set_m0(A_BASE + (u % NA)*4096)
        key = (conv, s)
        if atmp[0] != key:
            a(f's_add_u32 s{S_TMP+9}, s{S_AOFF+s}, {A1_OFF if conv == 0 else A2_OFF}'); atmp[0] = key
    def dma_a(conv, u, kq):
        if kq == 3: adone.add((conv, u))
        if 'a' in NOVM: return
        s, j = divmod(u, 3)
        assert m0cur[0] == A_BASE + (u % NA)*4096
        fix_m0()
        a.vmem(f'buffer_load_dwordx4 v{V_AD+4*j+kq}, {WSR}, s{S_TMP+9} offen offset:{kq*1024} lds', tag=('A', conv, u))
    def rd_raw(kk, j):
        assert kk in wdone, kk
        if kk >= 1: assert (kk-1) in permdone, kk
        a.need(vtags=[('W', kk)])
        m = j % 4
        odd = ((kk % 8)//2) % 2 == 1
        reg = (V_WRX if (odd and j < 4) else V_WR) + m
        a.lds(f'ds_read_b128 v[{V_RAW+4*j}:{V_RAW+4*j+3}], v{reg} offset:{(kk % 2)*WSLOT + (j//4)*1024}', tag=('R', kk, j))
        if j == 8: rawdone.add(kk)
    def perm(kk, i):
        assert kk in rawdone, kk
        m, t = divmod(i, 9)
        lo = 9*m + t//2; hi = 9*m + (t+9)//2
        if t == 0:
            a.need(ltags=[('R', kk, (9*m+8)//4)])
        d = wf(kk, t) + m
        if t % 2 == 0:
            a(f'v_bfi_b32 v{d}, s{S_FFFF}, v{V_RAW+lo}, v{V_RAW+hi}')
        else:
            a(f'v_alignbit_b32 v{d}, v{V_RAW+hi}, v{V_RAW+lo}, 16')
        if i == 35: permdone.add(kk)
    issued = set()
    def rd_af(conv, s, r, half, dx):
        u = s*3 + r//2
        assert (conv, u) in adone, (conv, u)
        a.need(vtags=[('A', conv, u)])
        reg = V_AR
        if dx == 0 and half == 0: reg = V_AR+1
        if dx == 2 and half == 1: reg = V_AR+2
        off = (u % NA)*4096 + (r % 2)*512 + half*256 + (dx-1)*16
        if reg == V_AR+1: off += 16
        d = af(r, half, dx)
        a.lds(f'ds_read_b128 a[{d}:{d+3}], v{reg} offset:{off}', tag=('F', s, r, half, dx))
        issued.add((conv, s, r, half, dx))
    def w_dma_all(kk):
        for n in wsegs(kk):
            dma_w_pre(kk, n); dma_w(kk, n)
    def w_rawperm(kk, doperm=True):
        for j in range(9): rd_raw(kk, j)
        if doperm:
            for i in range(36): perm(kk, i)

    def setup():
        a('v_lshrrev_b32 v4, 2, v2\nv_and_b32 v5, 3, v2')
        a('v_bfe_u32 v6, v4, 3, 1\nv_lshlrev_b32 v6, 1, v6\nv_xor_b32 v5, v5, v6')
        a(f's_movk_i32 s{S_TMP}, 9216\nv_add_u32 v4, s{S_OC0}, v4\nv_mul_u32_u24 v4, s{S_TMP}, v4\nv_lshl_add_u32 v4, v5, 4, v4')
        for n in range(10):
            a(f'v_add_u32 v{V_WD+n}, {4096 + n*64 - (n%4)*1024}, v4')
        srd(a, R_WQ, S_W1, S_W1+1, 4718592+4096, -4096)
        a(f's_mul_i32 s{S_WOFF}, s{S_WAVE}, 2304')
        for k in range(1, 8):
            a(f's_add_u32 s{S_WOFF+k}, s{S_WOFF}, {(k//2)*576 + (k%2)*147456}')
        a(f's_lshl_b32 s{S_TMP}, s{S_BB}, 20')
        a('v_mov_b32 v5, 0x7ff00000')
        for j in range(3):
            a(f'v_lshrrev_b32 v3, 5, v2\nv_add_u32 v3, {2*j}, v3\nv_add_u32 v3, s{S_Y0}, v3\nv_subrev_u32 v3, 1, v3')
            a('v_and_b32 v4, 31, v2\nv_lshlrev_b32 v4, 4, v4\nv_lshl_add_u32 v4, v3, 9, v4')
            a(f'v_add_u32 v4, s{S_TMP}, v4')
            a('v_cmp_gt_u32 vcc, 32, v3\ns_nop 1')
            a(f'v_cndmask_b32 v{V_AD+4*j}, v5, v4, vcc')
            for kq in range(1, 4):
                a(f'v_add_u32 v{V_AD+4*j+kq}, {kq*15360}, v{V_AD+4*j}')
        a('v_and_b32 v3, 15, v2\nv_lshrrev_b32 v4, 4, v2')
        a(f's_add_u32 s{S_TMP}, s{S_LDS}, {A_BASE}')
        a(f'v_lshlrev_b32 v{V_AR}, 10, v4\nv_lshl_add_u32 v{V_AR}, v3, 4, v{V_AR}\nv_add_u32 v{V_AR}, s{S_TMP}, v{V_AR}')
        a(f'v_mov_b32 v5, 163840\nv_subrev_u32 v6, 16, v{V_AR}')
        a(f'v_cmp_eq_u32 vcc, 0, v3\ns_nop 1\nv_cndmask_b32 v{V_AR+1}, v6, v5, vcc')
        a(f'v_cmp_eq_u32 vcc, 15, v3\ns_nop 1\nv_cndmask_b32 v{V_AR+2}, v{V_AR}, v5, vcc')
        a(f'v_add_u32 v{V_PW}, s{S_TMP}, v{V_L16}')
        a('v_bfe_u32 v6, v3, 3, 1\nv_lshlrev_b32 v6, 1, v6\nv_mul_u32_u24 v5, 9, v4')
        a(f'v_lshlrev_b32 v7, 6, v3\nv_add_u32 v7, s{S_LDS}, v7')
        a('v_mov_b32 v10, 0\nv_mov_b32 v11, 9216\nv_cmp_eq_u32 vcc, 0, v4\ns_nop 1\nv_cndmask_b32 v10, v10, v11, vcc')
        for m in range(4):
            a(f'v_add_u32 v8, {m}, v5\nv_lshrrev_b32 v9, 2, v8\nv_and_b32 v8, 3, v8\nv_xor_b32 v8, v8, v6')
            a(f'v_lshl_add_u32 v{V_WR+m}, v9, 10, v7\nv_lshl_add_u32 v{V_WR+m}, v8, 4, v{V_WR+m}')
            a(f'v_add_u32 v{V_WRX+m}, v{V_WR+m}, v10')
        a(f's_mov_b32 s{S_FFFF}, 0xffff')
        a(f's_lshl_b32 s{S_AOFF}, s{S_WAVE}, 18')
        for s in range(1, 4):
            a(f's_add_u32 s{S_AOFF+s}, s{S_AOFF}, {s*65536}')
        a(f's_lshl_b32 s{S_TMP}, s{S_BB}, 2\ns_add_u32 s{S_TMP}, s{S_TMP}, s{S_WAVE}\ns_lshl_b32 s{S_TMP}, s{S_TMP}, 5')
        a(f'v_lshlrev_b32 v6, 1, v3\nv_add_u32 v{V_PF0}, s{S_TMP}, v6')
        a('v_and_b32 v5, 31, v2')
        a(f'v_lshrrev_b32 v6, 2, v5\nv_subrev_u32 v7, s{S_PXT}, v6\nv_add_u32 v7, 1, v7')
        a(f'v_mov_b32 v8, s{S_PXT}\nv_cmp_gt_u32 vcc, 3, v7\ns_nop 1\nv_cndmask_b32 v6, v8, v6, vcc')
        a(f'v_and_b32 v7, 3, v5\nv_lshl_add_u32 v6, v6, 2, v7\nv_add_u32 v6, s{S_TMP}, v6\nv_lshlrev_b32 v{V_PF1}, 7, v6')
        a(f's_lshl_b32 s{S_TMP+1}, s{S_XCD}, 5\ns_lshl_b32 s{S_TMP+2}, s{S_OCT}, 1\ns_add_u32 s{S_TMP+1}, s{S_TMP+1}, s{S_TMP+2}\ns_add_u32 s{S_TMP+1}, s{S_TMP+1}, 1')
        a(f'v_and_b32 v6, 3, v2\nv_lshlrev_b32 v6, 3, v6\nv_add_u32 v6, s{S_TMP+1}, v6\nv_lshlrev_b32 v{V_PF2}, 7, v6')
        a(f'v_lshlrev_b32 v6, 6, v2\nv_mov_b32 v7, 0x7ff00000\nv_cmp_gt_u32 vcc, 18, v2\ns_nop 1\nv_cndmask_b32 v{V_PFX}, v7, v6, vcc')
        a(f'v_lshlrev_b32 v{V_PF0}, 7, v{V_PF0}')
    X0 = V_H
    for c in range(8):
        if c % 2 == 0 and c:
            a(f's_add_u32 s{S_TMP+4}, s{S_TMP+4}, 4096')
        for q in range(4):
            a(f'buffer_load_ushort v{X0+8*q+c}, v3, s[{R_X}:{R_X+3}], s{S_TMP+4} offen offset:{(c%2)*2048+q*128} {NTX}')
    a(f's_add_u32 s{S_G1}, s{S_G1}, s{S_TMP+5}\ns_addc_u32 s{S_G1+1}, s{S_G1+1}, 0')
    a(f's_add_u32 s{S_B1}, s{S_B1}, s{S_TMP+5}\ns_addc_u32 s{S_B1+1}, s{S_B1+1}, 0')
    GB = 72
    a(f's_load_dwordx4 s[{GB}:{GB+3}], s[{S_G1}:{S_G1+1}], 0\ns_load_dwordx4 s[{GB+4}:{GB+7}], s[{S_B1}:{S_B1+1}], 0')
    EP = V_H + 32
    eps = [int(x) for x in EPS.split(',')]
    def touch():
        if TOUCH:
            a(f's_lshl_b32 s{S_TMP}, s{S_XCD}, 8\ns_add_u32 s{S_TMP}, s{S_TMP}, {ST1L_OFF}')
            a(f'buffer_load_dword v{EP+4}, v{V_L16}, {WSR}, s{S_TMP} offen {SC}')
            a(f's_lshl_b32 s{S_TMP}, s{S_XCD}, 11\ns_add_u32 s{S_TMP}, s{S_TMP}, {ST2L_OFF}')
            a(f'buffer_load_dword v{EP+4}, v{V_L16}, {WSR}, s{S_TMP} offen {SC}')
            a(f'buffer_load_dword v{EP+4}, v{V_L16}, {WSR}, s{S_TMP} offen offset:1024 {SC}')
        if TOUCH & 2:
            a(f'v_lshlrev_b32 v5, 6, v2')
            a(f'buffer_load_dword v{EP+4}, v5, {WSR}, s{S_O1} offen {SC}')
        if TOUCH & 4:
            a(f's_lshl_b32 s{S_TMP}, s{S_LIN}, 7\ns_add_u32 s{S_TMP}, s{S_TMP}, {F0_OFF}\nv_mov_b32 v5, 0')
            a(f'buffer_load_dword v{EP+4}, v5, {WSR}, s{S_TMP} offen {SC}')
    touch()
    setup()
    a(f's_cmp_eq_u32 s{S_WAVE}, 0\ns_cbranch_scc1 L_w0a')
    a('s_waitcnt vmcnt(0)\ns_branch L_stat')
    a.label('L_w0a')
    a('v_mov_b32 v13, 0')
    for i in range(3):
        a(f'v_mov_b32 v{EP+i}, 0')
    for i, sl in enumerate(eps):
        a(f's_sleep {sl}')
        a(f'buffer_load_dword v{EP+i}, v13, s[{R_B}:{R_B+3}], 0 offen {SC}')
    a(f's_waitcnt vmcnt({len(eps)})')
    a.label('L_stat')
    stamp(0)
    for c in range(32):
        a(f'v_lshlrev_b32 v{X0+c}, 16, v{X0+c}')
    a(f'v_pk_add_f32 v[8:9], v[{X0}:{X0+1}], v[{X0+2}:{X0+3}]\nv_pk_mul_f32 v[10:11], v[{X0}:{X0+1}], v[{X0}:{X0+1}]')
    a(f'v_pk_fma_f32 v[10:11], v[{X0+2}:{X0+3}], v[{X0+2}:{X0+3}], v[10:11]')
    for c in range(4, 32, 2):
        a(f'v_pk_add_f32 v[8:9], v[8:9], v[{X0+c}:{X0+c+1}]\nv_pk_fma_f32 v[10:11], v[{X0+c}:{X0+c+1}], v[{X0+c}:{X0+c+1}], v[10:11]')
    a('v_add_f32 v8, v8, v9\nv_add_f32 v9, v10, v11\ns_nop 0')
    red2(a, 8, 9, S_R1, S_R2)
    a(f's_lshl_b32 s{S_TMP}, s{S_WAVE}, 3\ns_add_u32 s{S_TMP}, s{S_TMP}, {MISC}\nv_mov_b32 v10, s{S_TMP}')
    a(f'v_mov_b32 v8, s{S_R1}\nv_mov_b32 v9, s{S_R2}')
    a('ds_write_b64 v10, v[8:9]')
    a(f's_cmp_lg_u32 s{S_WAVE}, 0\ns_cbranch_scc1 L_b1')
    a('s_waitcnt vmcnt(0)')
    a(f'v_or3_b32 v12, v{EP}, v{EP+1}, v{EP+2}')
    get_epoch('L_ep', 12)
    a(f'v_mov_b32 v10, {MISC+32}\nds_write_b32 v10, v12')
    stamp(16)
    if ts: a(f'v_mov_b32 v15, s{S_TMP+1}\nv_accvgpr_write_b32 a{A_TS+19}, v15')
    a.label('L_b1')
    SCLV = V_P0; SHF = V_P0 + 8
    a('s_waitcnt lgkmcnt(0)')
    for c in range(8):
        g = GB + c//2; be = GB + 4 + c//2
        if c % 2 == 0:
            a(f's_lshl_b32 s{S_R1}, s{g}, 16\ns_lshl_b32 s{S_R2}, s{be}, 16')
        else:
            a(f's_and_b32 s{S_R1}, s{g}, 0xffff0000\ns_and_b32 s{S_R2}, s{be}, 0xffff0000')
        a(f'v_mov_b32 v{SCLV+c}, s{S_R1}\nv_mov_b32 v{SHF+c}, s{S_R2}')
    a('s_barrier')
    a(f'v_mov_b32 v12, {MISC}')
    a('ds_read_b128 v[4:7], v12\nds_read_b128 v[8:11], v12 offset:16\nds_read_b32 v13, v12 offset:32')
    a('s_waitcnt lgkmcnt(0)')
    a(f'v_readfirstlane_b32 s{S_E}, v13')
    a('v_pk_add_f32 v[4:5], v[4:5], v[6:7]\nv_pk_add_f32 v[8:9], v[8:9], v[10:11]\nv_pk_add_f32 v[4:5], v[4:5], v[8:9]')
    a('v_mov_b32 v6, v5\nv_mov_b32 v5, v13\nv_mov_b32 v7, v13')
    exchange('L_p1', 4,
             lambda: a(f's_lshl_b32 s{S_TMP+2}, s{S_IDX}, 4\ns_add_u32 s{S_TMP+2}, s{S_TMP+2}, {ST1L_OFF}'),
             lambda: a(f's_lshl_b32 s{S_TMP+3}, s{S_IDX}, 7\ns_add_u32 s{S_TMP+3}, s{S_TMP+3}, {ST1G_OFF}'),
             True, 1, 15,
             lambda: a(f's_lshl_b32 s{S_TMP}, s{S_XCD}, 8\ns_add_u32 s{S_TMP}, s{S_TMP}, {ST1L_OFF}'),
             lambda: a(f's_lshl_b32 s{S_TMP}, s{S_XCD}, 11\ns_add_u32 s{S_TMP}, s{S_TMP}, {ST1G_OFF}'),
             12, 8)
    stamp(1)
    if ts: a(f'v_mov_b32 v15, s{S_TMP+1}\nv_accvgpr_write_b32 a{A_TS+18}, v15')
    a.vq = []; a.lq = []
    mean_rstd(1.0/(4*131072), 8)
    for c in range(0, 8, 2):
        a(f'v_pk_mul_f32 v[{SCLV+c}:{SCLV+c+1}], v[{SCLV+c}:{SCLV+c+1}], v[10:11]')
        a(f'v_pk_fma_f32 v[{SHF+c}:{SHF+c+1}], v[{SCLV+c}:{SCLV+c+1}], v[8:9], v[{SHF+c}:{SHF+c+1}]')
    ZT = V_P0 + 16
    for q in range(4):
        Z = X0 + 8*q
        for c in range(0, 8, 2):
            a(f'v_pk_fma_f32 v[{Z+c}:{Z+c+1}], v[{Z+c}:{Z+c+1}], v[{SCLV+c}:{SCLV+c+1}], v[{SHF+c}:{SHF+c+1}]')
        silu_pk(a, Z, ZT, 8)
        for i in range(4):
            a(f'v_cvt_pk_bf16_f32 v{Z+i}, v{Z+2*i}, v{Z+2*i+1}')
        a.vmem(f'buffer_store_dwordx4 v[{Z}:{Z+3}], v{V_L16}, {WSR}, s{S_O1} offen offset:{1024*q} {SC}', tag='st')
    a('s_branch L_join')

    a.label('L_warm')
    wdone.clear(); m0cur[0] = None; a.vq = []; a.lq = []
    EW = V_WF
    EA = V_WF + 16
    ET = V_WF + 24
    a(f's_lshr_b32 s{S_TMP+8}, s{S_WITHIN}, 1\ns_and_b32 s{S_TMP+9}, s{S_TMP+8}, 3\ns_lshr_b32 s{S_TMP+10}, s{S_TMP+8}, 2')
    if TLB:
        a(f'v_and_b32 v5, 3, v2\nv_lshlrev_b32 v6, 21, v5\nv_and_b32 v5, 1, v5\nv_mul_u32_u24 v5, 0x1f0000, v5\nv_add_u32 v5, v5, v6')
        a(f'buffer_load_dword v{V_H+4}, v5, {WSR}, 0 offen {SC}')
        a('v_mov_b32 v5, 0')
        for ptr, sz in ((S_OUT, 2097152), (S_G2, 1024), (S_B2, 1024)):
            srd(a, R_A, ptr, ptr+1, sz)
            a(f'buffer_load_dword v{V_H+4}, v5, s[{R_A}:{R_A+3}], 0 offen {SC}')
    if CPF:
        a(f's_getpc_b64 s[{R_A}:{R_A+1}]')
        a(f's_and_b32 s{R_A+1}, s{R_A+1}, 0xffff\ns_mov_b32 s{R_A+2}, {CPF}\ns_mov_b32 s{R_A+3}, 0x20000')
        a(f's_lshl_b32 s{S_TMP}, s{S_TMP+8}, 2\ns_add_u32 s{S_TMP}, s{S_TMP}, s{S_WAVE}\ns_lshl_b32 s{S_TMP}, s{S_TMP}, 10')
        a(f'buffer_load_dwordx4 v[{V_H}:{V_H+3}], v{V_L16}, s[{R_A}:{R_A+3}], s{S_TMP} offen')
    srd(a, R_A, S_WE, S_WE+1, 786432)
    a('v_lshrrev_b32 v6, 2, v0\nv_and_b32 v5, 3, v0')
    a('v_lshlrev_b32 v7, 10, v6\nv_lshl_add_u32 v7, v5, 4, v7')
    a(f's_mul_i32 s{S_TMP}, s{S_TMP+10}, {192*1024}\ns_lshl_b32 s{S_TMP+1}, s{S_G}, 8\ns_add_u32 s{S_TMP}, s{S_TMP}, s{S_TMP+1}')
    a(f's_lshl_b32 s{S_TMP+1}, s{S_TMP+9}, 6\ns_add_u32 s{S_TMP}, s{S_TMP}, s{S_TMP+1}')
    for i in range(3):
        if i: a(f's_add_u32 s{S_TMP}, s{S_TMP}, 65536')
        a(f'buffer_load_dwordx4 v[{EW+4*i}:{EW+4*i+3}], v7, s[{R_A}:{R_A+3}], s{S_TMP} offen')
    srd(a, R_A, S_T, S_T+1, 3072)
    a(f'v_lshlrev_b32 v7, 1, v6\ns_mul_i32 s{S_TMP}, s{S_BB}, 1536\ns_mul_i32 s{S_TMP+1}, s{S_TMP+10}, 384\ns_add_u32 s{S_TMP}, s{S_TMP}, s{S_TMP+1}')
    for i in range(3):
        a(f'buffer_load_ushort v{EW+12+i}, v7, s[{R_A}:{R_A+3}], s{S_TMP} offen offset:{128*i}')
    a(f'v_mov_b32 v{EW+15}, 0')
    if WDLY: a(f's_sleep {WDLY}')
    nbulk = 0
    DUM = V_H
    for bit, ptr in ((1, S_W1), (2, S_W2)):
        if WARM & bit:
            srd(a, R_A, ptr, ptr+1, 4718592)
            if DUP & bit:
                a(f's_lshl_b32 s{S_TMP}, s{S_G}, 6\ns_lshl_b32 s{S_TMP+1}, s{S_TMP+8}, 2\ns_add_u32 s{S_TMP}, s{S_TMP}, s{S_TMP+1}\ns_add_u32 s{S_TMP}, s{S_TMP}, s{S_WAVE}\ns_mul_i32 s{S_TMP}, s{S_TMP}, 18432')
                nl = 18
            else:
                a(f's_lshl_b32 s{S_TMP}, s{S_G}, 7\ns_lshl_b32 s{S_TMP+1}, s{S_TMP+8}, 2\ns_add_u32 s{S_TMP}, s{S_TMP}, s{S_TMP+1}\ns_add_u32 s{S_TMP}, s{S_TMP}, s{S_WAVE}')
                a(f's_lshl_b32 s{S_TMP+1}, s{S_BB}, 6\ns_add_u32 s{S_TMP}, s{S_TMP}, s{S_TMP+1}\ns_mul_i32 s{S_TMP}, s{S_TMP}, 9216')
                nl = 9
            for i in range(nl):
                if i % 4 == 0 and i: a(f's_add_u32 s{S_TMP}, s{S_TMP}, 4096')
                a(f'buffer_load_dwordx4 v[{DUM}:{DUM+3}], v{V_L16}, s[{R_A}:{R_A+3}], s{S_TMP} offen offset:{(i%4)*1024} {NT1 if bit == 1 else NT2}')
                nbulk += 1
    setup()
    a(f's_waitcnt vmcnt({nbulk})')
    stamp(0)
    for i in range(3):
        a(f'v_lshlrev_b32 v{EW+12+i}, 16, v{EW+12+i}')
    silu_pk(a, EW+12, ET, 4)
    for i in range(3):
        for d in range(4):
            op = 'v_mul_f32' if i == 0 else 'v_fmac_f32'
            a(f'v_lshlrev_b32 v4, 16, v{EW+4*i+d}\nv_and_b32 v5, 0xffff0000, v{EW+4*i+d}')
            a(f'{op} v{EA+2*d}, v4, v{EW+12+i}\n{op} v{EA+2*d+1}, v5, v{EW+12+i}')
    for mod in ('row_ror:4 row_mask:0xf', 'row_ror:8 row_mask:0xf'):
        a('s_nop 1')
        for e in range(8):
            a(f'v_add_f32_dpp v{EA+e}, v{EA+e}, v{EA+e} {mod} bank_mask:0xf')
    for sw in ('v_permlane16_swap_b32', 'v_permlane32_swap_b32'):
        for e in range(8):
            a(f'v_mov_b32 v{ET+e}, v{EA+e}')
        a('s_nop 1')
        for e in range(8):
            a(f'{sw} v{EA+e}, v{ET+e}')
        a('s_nop 1')
        for e in range(8):
            a(f'v_add_f32 v{EA+e}, v{EA+e}, v{ET+e}')
    a(f's_lshl_b32 s{S_TMP}, s{S_XCD}, 2\ns_add_u32 s{S_TMP}, s{S_TMP}, s{S_TMP+9}\ns_lshl_b32 s{S_TMP}, s{S_TMP}, 2\ns_add_u32 s{S_TMP}, s{S_TMP}, s{S_TMP+10}')
    a(f's_lshl_b32 s{S_TMP}, s{S_TMP}, 2\ns_add_u32 s{S_TMP}, s{S_TMP}, s{S_WAVE}\ns_lshl_b32 s{S_TMP}, s{S_TMP}, 7\ns_add_u32 s{S_TMP}, s{S_TMP}, {EMBP_OFF}')
    a('v_lshlrev_b32 v4, 5, v2')
    a(f'v_cmp_gt_u32 vcc, 4, v2\ns_and_saveexec_b64 s[{S_SAVE}:{S_SAVE+1}], vcc')
    a(f'buffer_store_dwordx4 v[{EA}:{EA+3}], v4, {WSR}, s{S_TMP} offen {SC}')
    a(f'buffer_store_dwordx4 v[{EA+4}:{EA+7}], v4, {WSR}, s{S_TMP} offen offset:16 {SC}')
    a(f's_mov_b64 exec, s[{S_SAVE}:{S_SAVE+1}]')
    a('v_mov_b32 v12, 0')
    get_epoch('L_ep2', 12)
    stamp(1)
    a.label('L_join')
    a.vq = ['st']; a.lq = []
    stamps[0] = 2
    m0cur[0] = None
    a('v_and_b32 v3, 15, v2\nv_lshrrev_b32 v4, 4, v2')
    if E('FINE'): stamp(19)
    if PREF >= 1: w_dma_all(0)
    if PREF >= 2: w_dma_all(1)
    if E('FINE'): stamp(17)
    a.need(vtags=['st'])
    if E('FINE'): stamp(18)
    a('s_barrier')
    def flag_store(off):
        a(f's_cmp_lg_u32 s{S_WAVE}, 0\ns_cbranch_scc1 L_nf{off:x}')
        a(f's_lshl_b32 s{S_TMP}, s{S_LIN}, 7\ns_add_u32 s{S_TMP}, s{S_TMP}, {off}')
        a(f'v_mov_b32 v5, s{S_E}\nv_mov_b32 v6, 0')
        a(f'v_cmp_eq_u32 vcc, 0, v2\ns_and_saveexec_b64 s[{S_SAVE}:{S_SAVE+1}], vcc')
        a(f'buffer_store_dword v5, v6, {WSR}, s{S_TMP} offen {SC}')
        a(f's_mov_b64 exec, s[{S_SAVE}:{S_SAVE+1}]')
        a.label(f'L_nf{off:x}')
    def flag_poll(off, vaddr, name, mid=None):
        a(f's_mov_b32 s{S_TMP+1}, 0\ns_mov_b32 s{S_TMP}, {off}')
        if mid:
            t = a.vmem(f'buffer_load_dword v5, v{vaddr}, {WSR}, s{S_TMP} offen {SC}')
            mid()
            a.need(vtags=[t])
            keep = list(a.vq)
            a(f'v_cmp_eq_u32 vcc, s{S_E}, v5\ns_nop 0\ns_cmp_eq_u64 vcc, exec\ns_cbranch_scc1 {name}ok')
        a.label(name)
        a(f'buffer_load_dword v5, v{vaddr}, {WSR}, s{S_TMP} offen {SC}')
        a('s_waitcnt vmcnt(0)')
        a(f'v_cmp_eq_u32 vcc, s{S_E}, v5')
        a(f's_add_u32 s{S_TMP+1}, s{S_TMP+1}, 1')
        a(f's_cmp_eq_u64 vcc, exec\ns_cbranch_scc1 {name}ok')
        a(f's_cmp_lt_u32 s{S_TMP+1}, 0x40000\ns_cbranch_scc1 {name}')
        a.label(name + 'ok')
        a.vq = keep if mid else []
    flag_store(F0_OFF)
    stamp()

    if ORD == 0:
        if PREF < 1: w_dma_all(0)
        if PREF < 2: w_dma_all(1)
        w_rawperm(0)
        w_dma_all(2)
    else:
        if PREF < 1: w_dma_all(0)
        if PREF < 2 and ORD == 2: w_dma_all(1)
        w_rawperm(0)
        if PREF < 2 and ORD == 1: w_dma_all(1)
    if DLY0: a(f's_sleep {DLY0}')
    flag_poll(F0_OFF, V_PF0, 'L_p2', (lambda: w_dma_all(2)) if ORD else None)
    stamp()

    H = V_H; PL = V_H + 16
    def conv(ci):
        which = ci + 1
        PACE = float(E('PACE%d' % which, '5.0'))
        ex = []
        for u in range(3):
            dma_a_pre(ci, u, 0)
            for kq in range(4): dma_a(ci, u, kq)
        if ci == 0: w_rawperm(1)
        for r in range(3):
            for half in range(2):
                for dx in range(3):
                    rd_af(ci, 0, r, half, dx)
        items = []
        def put(gs, fn): items.append((gs, len(items), fn))
        row_slot = {}
        for s_ in range(4):
            for r in range(6):
                if r < 3:
                    if s_ == 0: row_slot[(s_, r)] = None; continue
                    base = 72*(2*s_-1) + 18*(r+1)
                else:
                    base = 72*(2*s_) + 18*(r-3) + (4 if r > 3 else 0)
                row_slot[(s_, r)] = base
                i = 0
                for half in range(2):
                    for dx in range(3):
                        put(base + 1 + (3*i)//2, (lambda ss=s_, r=r, half=half, dx=dx: rd_af(ci, ss, r, half, dx))); i += 1
        RAWS = 52
        raw_slot = {}
        for k_ in range(8):
            kk_ = ci*8 + k_
            p_ = kk_ + 1
            if p_ < 16 and p_ not in permdone and k_ >= 1:
                for i in range(36):
                    put(72*k_ + 1 + (i*4)//3, (lambda x=p_, i=i: perm(x, i)))
            r_ = kk_ + 2
            if r_ < 16 and r_ not in rawdone:
                rs = 72*k_ + (RAWS if k_ >= 1 else 30)
                raw_slot[r_] = rs
                for j in range(9):
                    put(rs + 2*j, (lambda x=r_, j=j: rd_raw(x, j)))
        ops = []
        for kk_ in range(ci*8, 16):
            if kk_ in wdone: continue
            if (kk_-2) in rawdone: ea = 0
            elif (kk_-2) in raw_slot: ea = raw_slot[kk_-2] + 22
            else: continue
            if ea > 560: continue
            dl = raw_slot.get(kk_, 72*8 + 40*(kk_ - ci*8))
            for n in wsegs(kk_):
                ops.append((dl, ea, (lambda x=kk_, n=n: dma_w_pre(x, n)), (lambda x=kk_, n=n: dma_w(x, n)), kk_))
        for u in range(3, 12):
            s_, j = divmod(u, 3)
            dl = row_slot[(s_, 2*j)] or 0
            ea = 0
            if u >= NA:
                ps, pj = divmod(u - NA, 3)
                ea = (row_slot[(ps, 2*pj+1)] or 0) + 14
            for kq in range(4):
                def pre(u=u, kq=kq):
                    if u >= NA:
                        ps, pj = divmod(u - NA, 3)
                        assert (ci, ps, 2*pj+1, 1, 2) in issued
                        a.need(ltags=[('F', ps, 2*pj+1, 1, 2)])
                    dma_a_pre(ci, u, kq)
                ops.append((dl, ea, pre, (lambda u=u, kq=kq: dma_a(ci, u, kq)), None))
        ops.sort(key=lambda o: o[0])
        cur = 4.0
        rem = list(ops)
        placed = []
        while rem:
            cand = [o for o in rem if o[1] <= cur]
            if not cand:
                cur = float(min(o[1] for o in rem)); continue
            o = cand[0]; rem.remove(o)
            placed.append((int(cur), o)); cur += PACE
        bad = set(o[4] for sl, o in placed if sl > 572)
        assert None not in bad
        for sl, o in placed:
            if o[4] in bad: continue
            if o[0] < 576 and sl > o[0] - 30: sys.stderr.write(f'warn conv{which}: op at {sl} deadline {o[0]}\n')
            put(sl-1, o[2]); put(sl, o[3])
        base = 72
        SCv = V_P0 + 4; SHv = V_P0 + 12
        if which == 1:
            ef = []
            put(72 + 2, lambda: a(f's_mov_b32 s{S_TMP+1}, {F0_OFF}'))
            put(72 + 4, lambda: ef.append(a.vmem(f'buffer_load_dword v{V_EX+16}, v{V_PF2}, {WSR}, s{S_TMP+1} offen {SC}')))
            def chk():
                a.need(vtags=ef)
                a(f'v_cmp_eq_u32 vcc, s{S_E}, v{V_EX+16}\ns_nop 0\ns_cmp_eq_u64 vcc, exec\ns_cbranch_scc0 L_embslow')
                a.label('L_embok')
            put(144 + 20, chk)
            for i, sl in enumerate([int(x) for x in TRK.split(',')] if TRK else []):
                h_, p_ = divmod(i, 2)
                def t0(i=i):
                    if i == 0:
                        srd(a, R_B, S_W2, S_W2+1, 4718592)
                def t1(i=i):
                    if i == 0:
                        a(f's_lshl_b32 s{S_TMP+10}, s{S_BB}, 5\ns_add_u32 s{S_TMP+10}, s{S_TMP+10}, s{S_WITHIN}\ns_lshl_b32 s{S_TMP+10}, s{S_TMP+10}, 2\ns_add_u32 s{S_TMP+10}, s{S_TMP+10}, s{S_WAVE}')
                        a(f's_lshl_b32 s{S_TMP+11}, s{S_G}, 8\ns_add_u32 s{S_TMP+10}, s{S_TMP+10}, s{S_TMP+11}\ns_mul_i32 s{S_TMP+10}, s{S_TMP+10}, 4608')
                def t2(h_=h_, p_=p_):
                    a.vmem(f'buffer_load_dword v{V_P0}, v{V_PFX}, s[{R_B}:{R_B+3}], s{S_TMP+10} offen offset:{p_*2304 + h_*1152}')
                put(sl-4, t0); put(sl-2, t1); put(sl, t2)
            seq = [lambda: a(f's_lshl_b32 s{S_TMP}, s{S_XCD}, 2\ns_add_u32 s{S_TMP}, s{S_TMP}, s{S_OCT}'),
                   lambda: a(f's_lshl_b32 s{S_TMP}, s{S_TMP}, 11\ns_add_u32 s{S_TMP}, s{S_TMP}, {EMBP_OFF}'),
                   lambda: a('v_lshlrev_b32 v5, 7, v3\nv_lshl_add_u32 v5, v4, 4, v5')]
            for o2 in range(2):
                seq.append(lambda o2=o2: ex.append(a.vmem(f'buffer_load_dwordx4 v[{V_EX+4*o2}:{V_EX+4*o2+3}], v5, {WSR}, s{S_TMP} offen offset:{64*o2} {SC}')))
            seq += [lambda: a(f's_mov_b32 s{R_A}, s{S_G2}\ns_and_b32 s{R_A+1}, s{S_G2+1}, 0xffff'), lambda: a(f's_movk_i32 s{R_A+2}, 1024\ns_mov_b32 s{R_A+3}, 0x20000'),
                    lambda: a(f'v_lshlrev_b32 v5, 3, v4\ns_lshl_b32 s{S_TMP}, s{S_OC0}, 1')]
            for o2 in range(2):
                seq.append(lambda o2=o2: ex.append(a.vmem(f'buffer_load_dwordx2 v[{V_EX+8+2*o2}:{V_EX+9+2*o2}], v5, s[{R_A}:{R_A+3}], s{S_TMP} offen offset:{o2*32}')))
            seq += [lambda: a(f's_mov_b32 s{R_A}, s{S_B2}\ns_and_b32 s{R_A+1}, s{S_B2+1}, 0xffff')]
            for o2 in range(2):
                seq.append(lambda o2=o2: ex.append(a.vmem(f'buffer_load_dwordx2 v[{V_EX+12+2*o2}:{V_EX+13+2*o2}], v5, s[{R_A}:{R_A+3}], s{S_TMP} offen offset:{o2*32}')))
            seq += [lambda: a('v_lshrrev_b32 v5, 1, v4\nv_lshlrev_b32 v5, 14, v5'), lambda: a('v_lshl_add_u32 v5, v3, 4, v5\nv_and_b32 v6, 1, v4'),
                    lambda: a(f'v_lshl_add_u32 v{V_EX+16}, v6, 8, v5\ns_lshl_b32 s{S_TMP}, s{S_BB}, 20'),
                    lambda: a(f's_lshl_b32 s{S_TMP+1}, s{S_OC0}, 11\ns_add_u32 s{S_TMP}, s{S_TMP}, s{S_TMP+1}'),
                    lambda: a(f's_add_u32 s{S_TMP+1}, s{S_Y0}, s{S_WAVE}\ns_lshl_b32 s{S_TMP+1}, s{S_TMP+1}, 9'),
                    lambda: a(f's_add_u32 s{S_O1}, s{S_TMP}, s{S_TMP+1}\ns_add_u32 s{S_O1}, s{S_O1}, {A2_OFF}'),
                    lambda: a(f's_add_u32 s{S_O2}, s{S_O1}, 32768')]
            for i, fn in enumerate(seq): put(144 + 24 + 3*i, fn)
            seq = [lambda: a.need(vtags=ex)]
            for mod in ('quad_perm:[1,0,3,2]', 'quad_perm:[2,3,0,1]', 'row_half_mirror', 'row_mirror'):
                for i in range(8):
                    seq.append(lambda mod=mod, i=i: a(f'v_add_f32_dpp v{V_EX+i}, v{V_EX+i}, v{V_EX+i} {mod} row_mask:0xf bank_mask:0xf'))
            for o2 in range(2):
                for i in range(4):
                    g = V_EX+8+2*o2+i//2; be = V_EX+12+2*o2+i//2; e = o2*4+i
                    if i % 2 == 0:
                        seq.append(lambda g=g, e=e: a(f'v_lshlrev_b32 v{SCv+e}, 16, v{g}')); seq.append(lambda be=be, e=e: a(f'v_lshlrev_b32 v{SHv+e}, 16, v{be}'))
                    else:
                        seq.append(lambda g=g, e=e: a(f'v_and_b32 v{SCv+e}, 0xffff0000, v{g}')); seq.append(lambda be=be, e=e: a(f'v_and_b32 v{SHv+e}, 0xffff0000, v{be}'))
            for i, fn in enumerate(seq): put(72*4 + 10 + 2*i, fn)
        else:
            seq = [lambda: a(f's_mov_b32 s{R_A}, s{S_OUT}\ns_and_b32 s{R_A+1}, s{S_OUT+1}, 0xffff'), lambda: a(f's_mov_b32 s{R_A+2}, 2097152\ns_mov_b32 s{R_A+3}, 0x20000'),
                   lambda: a(f'v_lshlrev_b32 v{V_EX+16}, 11, v3\nv_lshl_add_u32 v{V_EX+16}, v4, 3, v{V_EX+16}'),
                   lambda: a(f's_lshl_b32 s{S_TMP}, s{S_BB}, 20\ns_lshl_b32 s{S_TMP+1}, s{S_OC0}, 11'),
                   lambda: a(f's_add_u32 s{S_TMP}, s{S_TMP}, s{S_TMP+1}\ns_add_u32 s{S_TMP+1}, s{S_Y0}, s{S_WAVE}'),
                   lambda: a(f's_lshl_b32 s{S_TMP+1}, s{S_TMP+1}, 6\ns_add_u32 s{S_O1}, s{S_TMP}, s{S_TMP+1}'),
                   lambda: a(f's_add_u32 s{S_O2}, s{S_O1}, 32768')]
            for o2 in range(2):
                for half in range(2):
                    r = V_EX + (o2*2+half)*2
                    seq.append(lambda r=r, o2=o2, half=half: ex.append(a.vmem(f'buffer_load_dwordx2 v[{r}:{r+1}], v{V_EX+16}, s[{R_X}:{R_X+3}], s{S_O1 if o2 == 0 else S_O2} offen offset:{half*32}')))
            for i, fn in enumerate(seq): put(6 + 3*i, fn)
            seq = [lambda: a.need(vtags=ex)]
            for q in range(8):
                seq.append(lambda q=q: a(f'v_lshlrev_b32 v{V_P0+2*q}, 16, v{V_EX+q}')); seq.append(lambda q=q: a(f'v_and_b32 v{V_P0+2*q+1}, 0xffff0000, v{V_EX+q}'))
            for i, fn in enumerate(seq): put(72*3 + 3*i, fn)
        def poff(o2, ro, half): return (8192 if o2 == 0 else 0) + (ro*2+half)*1024
        def pw(o2, ro, half):
            c = acc(o2, ro, half)
            a.lds(f'ds_write_b128 v{V_PW}, a[{c}:{c+3}] offset:{poff(o2, ro, half)}', tag=('PW', o2))
        def prd(o2, v, half, dst):
            b_ = V_T if v < 2 else V_T+1
            a.lds(f'ds_read_b128 v[{dst}:{dst+3}], v{b_} offset:{(v%2)*WAVE_LDS + poff(o2, 0, half)}', tag=('P', o2, v, half))
        def red_reads(o2):
            outs = []
            for half in range(2):
                for v in range(4):
                    dst = (H + (o2*2+half)*4) if v == 0 else (PL + (half*3 + v-1)*4)
                    outs.append(lambda v=v, half=half, dst=dst: prd(o2, v, half, dst))
            return outs
        SQ = V_T + 8
        def red_adds(o2, pk):
            outs = []
            for half in range(2):
                h = H + (o2*2+half)*4
                extra = (V_EX + 4*o2) if which == 1 else (V_P0 + (o2*2+half)*4)
                for v in range(1, 5):
                    for i in range(0, 4, 2 if pk else 1):
                        def f(half=half, v=v, i=i, h=h, extra=extra):
                            a.need(ltags=[('P', o2, 3, half)])
                            src = (PL + (half*3+v-1)*4 + i) if v < 4 else extra + i
                            if pk: a(f'v_pk_add_f32 v[{h+i}:{h+i+1}], v[{h+i}:{h+i+1}], v[{src}:{src+1}]')
                            else: a(f'v_add_f32 v{h+i}, v{h+i}, v{src}')
                        outs.append(f)
                if which == 1:
                    if pk:
                        for i in range(0, 4, 2):
                            outs.append(lambda h=h, i=i: a(f'v_pk_fma_f32 v[{SQ+2}:{SQ+3}], v[{h+i}:{h+i+1}], v[{h+i}:{h+i+1}], v[{SQ+2}:{SQ+3}]'))
                            outs.append(lambda h=h, i=i: a(f'v_pk_add_f32 v[{SQ}:{SQ+1}], v[{SQ}:{SQ+1}], v[{h+i}:{h+i+1}]'))
                    else:
                        for i in range(4):
                            outs.append(lambda h=h, i=i: a(f'v_fmac_f32 v{SQ+2+i%2}, v{h+i}, v{h+i}'))
                            outs.append(lambda h=h, i=i: a(f'v_add_f32 v{SQ+i%2}, v{SQ+i%2}, v{h+i}'))
                else:
                    o = V_EX + (o2*2+half)*2
                    outs.append(lambda h=h, o=o: a(f'v_cvt_pk_bf16_f32 v{o}, v{h}, v{h+1}\nv_cvt_pk_bf16_f32 v{o+1}, v{h+2}, v{h+3}'))
                    outs.append(lambda o=o, half=half: a.vmem(f'buffer_store_dwordx2 v[{o}:{o+1}], v{V_EX+16}, s[{R_A}:{R_A+3}], s{S_O1 if o2 == 0 else S_O2} offen offset:{half*32} {OUTF}'))
            return outs
        b6 = 72*6; b7 = 72*7
        put(b6, lambda: a(f's_lshl_b32 s{S_TMP}, s{S_WAVE}, 11\ns_add_u32 s{S_TMP}, s{S_TMP}, {A_BASE}'))
        put(b6 + 2, lambda: a(f'v_add_u32 v{V_T}, s{S_TMP}, v{V_L16}\nv_add_u32 v{V_T+1}, {2*WAVE_LDS}, v{V_T}'))
        if which == 1:
            put(b6 + 4, lambda: a(f'v_mov_b32 v{SQ}, 0\nv_mov_b32 v{SQ+1}, 0'))
            put(b6 + 6, lambda: a(f'v_mov_b32 v{SQ+2}, 0\nv_mov_b32 v{SQ+3}, 0'))
        for o2 in range(2):
            for ro in range(4):
                for half in range(2):
                    sl = 72*(6+o2) + 18*ro + 9*half + 8 + 9
                    if sl <= 575 and not (o2 == 1 and ro == 3):
                        put(sl, (lambda o2=o2, ro=ro, half=half: pw(o2, ro, half)))
        def fbar():
            a.need(ltags=[('PW', 0)]); a('s_barrier')
        put(b7 + 14, fbar)
        for i, fn in enumerate(red_reads(0)): put(b7 + 15 + i, fn)
        for i, fn in enumerate(red_adds(0, False)): put(b7 + 26 + (i*7)//8, fn)
        items.sort(key=lambda x: (x[0], x[1]))
        qi = 0
        gs = 0
        for k in range(8):
            if k in (0, 1): stamp()
            if E('PSTAMP') and ci == int(E('PSTAMP'))-1: stamp(232 - A_TS + k)
            s, ob = divmod(k, 2)
            kk = ci*8 + k
            assert kk in permdone
            for ro in range(4):
                for half in range(2):
                    for dy in range(3):
                        for dx in range(3):
                            if dx == 0:
                                for d2 in range(3):
                                    assert (ci, s, ro+dy, half, d2) in issued, (ci, s, ro, dy, half, gs)
                                a.need(ltags=[('F', s, ro+dy, half, d2) for d2 in range(3)])
                            c = acc(ob, ro, half); w_ = wf(kk, dy*3+dx); f_ = af(ro+dy, half, dx)
                            srcc = '0' if (s == 0 and dy == 0 and dx == 0) else f'a[{c}:{c+3}]'
                            if which == 1:
                                a(f'v_mfma_f32_16x16x32_bf16 a[{c}:{c+3}], v[{w_}:{w_+3}], a[{f_}:{f_+3}], {srcc}')
                            else:
                                a(f'v_mfma_f32_16x16x32_bf16 a[{c}:{c+3}], a[{f_}:{f_+3}], v[{w_}:{w_+3}], {srcc}')
                            n1 = len(a.L)
                            last = (gs == 575)
                            while qi < len(items) and items[qi][0] <= gs and (len(a.L) - n1 < CAP or last):
                                items[qi][2](); qi += 1
                            gs += 1
        assert qi == len(items), (qi, len(items))
        if E('PSTAMP') and ci == int(E('PSTAMP'))-1: stamp(240 - A_TS)
        pw(1, 3, 0)
        a('s_nop 7')
        pw(1, 3, 1)
        a.need(ltags=[('PW', 1)]); a('s_barrier')
        for fn in red_reads(1): fn()
        for fn in red_adds(1, True): fn()
        stamp()
        if which == 1:
            G = V_T + 4
            a(f'v_add_f32 v{SQ}, v{SQ}, v{SQ+1}\nv_add_f32 v{SQ+1}, v{SQ+2}, v{SQ+3}\ns_nop 0')
            red2(a, SQ, SQ+1, S_R1, S_R2)
            a(f'v_mov_b32 v{G+1}, s{S_E}\nv_mov_b32 v{G+3}, s{S_E}\nv_mov_b32 v{G}, s{S_R1}\nv_mov_b32 v{G+2}, s{S_R2}')
            a(f's_lshl_b32 s{S_TMP+6}, s{S_LIN}, 2\ns_add_u32 s{S_TMP+6}, s{S_TMP+6}, s{S_WAVE}')
            def mid3():
                a.vq.append(('pub',))
                if 9 in rawdone and 9 not in permdone:
                    for i in range(36): perm(9, i)
            exchange('L_p3', G,
                     lambda: a(f's_lshl_b32 s{S_TMP+2}, s{S_TMP+6}, 4\ns_add_u32 s{S_TMP+2}, s{S_TMP+2}, {ST2L_OFF}'),
                     lambda: a(f's_lshl_b32 s{S_TMP+3}, s{S_TMP+6}, 7\ns_add_u32 s{S_TMP+3}, s{S_TMP+3}, {ST2G_OFF}'),
                     False, 2, 63,
                     lambda: a(f's_lshl_b32 s{S_TMP}, s{S_XCD}, 11\ns_add_u32 s{S_TMP}, s{S_TMP}, {ST2L_OFF}'),
                     lambda: a(f's_lshl_b32 s{S_TMP}, s{S_XCD}, 14\ns_add_u32 s{S_TMP}, s{S_TMP}, {ST2G_OFF}'),
                     V_T+8, PL, mid3)
            a.vq = []
            stamp()
            M = V_T + 8
            mean_rstd(1.0/131072, M)
            for e in range(0, 8, 2):
                a(f'v_pk_mul_f32 v[{SCv+e}:{SCv+e+1}], v[{SCv+e}:{SCv+e+1}], v[{M+2}:{M+3}]')
                a(f'v_pk_fma_f32 v[{SHv+e}:{SHv+e+1}], v[{SCv+e}:{SCv+e+1}], v[{M}:{M+1}], v[{SHv+e}:{SHv+e+1}]')
            for o2 in range(2):
                Z = H + o2*8
                for half in range(2):
                    for i in range(0, 4, 2):
                        r = Z + half*4 + i
                        a(f'v_pk_fma_f32 v[{r}:{r+1}], v[{r}:{r+1}], v[{SCv+o2*4+i}:{SCv+o2*4+i+1}], v[{SHv+o2*4+i}:{SHv+o2*4+i+1}]')
                silu_pk(a, Z, PL, 8)
                r = PL + 8 + o2*4
                for q in range(4):
                    a(f'v_cvt_pk_bf16_f32 v{r+q}, v{Z+2*q}, v{Z+2*q+1}')
                a('s_nop 1')
                a(f'v_permlane16_swap_b32 v{r}, v{r+2}\nv_permlane16_swap_b32 v{r+1}, v{r+3}')
                a(f'buffer_store_dwordx4 v[{r}:{r+3}], v{V_EX+16}, {WSR}, s{S_O1 if o2 == 0 else S_O2} offen {SC}')
            if BND and 10 in wdone and 10 not in rawdone:
                w_rawperm(10, False)
            a('s_waitcnt vmcnt(0)\ns_barrier')
            a.vq = []
            flag_store(F1_OFF)
            a.vq = [('flag',)]
            stamp()
            todo = [kk_ for kk_ in (10, 11, 12) if kk_ not in wdone and (kk_-2) in rawdone and (BND or kk_ < 12)]
            for kk_ in (todo[:-1] if ORDB else todo): w_dma_all(kk_)
            if DLY1: a(f's_sleep {DLY1}')
            flag_poll(F1_OFF, V_PF1, 'L_p4', (lambda: w_dma_all(todo[-1])) if ORDB else None)
            stamp()
    conv(0)
    conv(1)
    if ECHO:
        a('s_waitcnt vmcnt(0)')
        stamp()
        a('s_sub_u32 s94, s94, s100')
        a('s_memrealtime s[100:101]\ns_waitcnt lgkmcnt(0)\ns_add_u32 s94, s94, s100')
        a.label('L_echo')
        a('s_memrealtime s[100:101]\ns_waitcnt lgkmcnt(0)\ns_sub_u32 s95, s94, s100\ns_cmp_gt_i32 s95, 0\ns_cbranch_scc1 L_echo')
    if ts:
        a('s_waitcnt vmcnt(0)')
        stamp()
        a('s_memrealtime s[98:99]\ns_waitcnt lgkmcnt(0)')
        for i in range(16):
            a(f'v_accvgpr_read_b32 v{72+i}, a{A_TS+i}')
        for i in range(4):
            a(f'v_accvgpr_read_b32 v{92+i}, a{A_TS+16+i}')
        a('v_accvgpr_read_b32 v88, a229\nv_mov_b32 v89, s100\nv_mov_b32 v90, s98\nv_mov_b32 v91, 0')
        a(f's_lshl_b32 s{S_TMP}, s2, 9\ns_lshl_b32 s{S_TMP+1}, s{S_WAVE}, 7\ns_add_u32 s{S_TMP}, s{S_TMP}, s{S_TMP+1}\nv_mov_b32 v8, s{S_TMP}')
        srd(a, R_B, S_WS, S_WS+1, 0x40000, TS_OFF)
        a(f'v_cmp_eq_u32 vcc, 0, v2\ns_and_saveexec_b64 s[{S_SAVE}:{S_SAVE+1}], vcc')
        for i in range(6):
            a(f'buffer_store_dwordx4 v[{72+4*i}:{75+4*i}], v8, s[{R_B}:{R_B+3}], 0 offen offset:{16*i}')
        if E('DBGOUT'):
            wg = int(E('DBGOUT'))
            a(f's_cmp_lg_u32 s2, {wg}\ns_cbranch_scc1 L_end\ns_cmp_lg_u32 s{S_WAVE}, 1\ns_cbranch_scc1 L_end')
            srd(a, R_B, S_DBG, S_DBG+1, 256)
            for i in range(14):
                a(f'v_sub_u32 v{72+i}, v{72+i}, v88')
            a('v_sub_u32 v90, v90, v89\nv_mov_b32 v8, 0')
            a(f'buffer_store_dword v90, v8, s[{R_B}:{R_B+3}], 0 offen offset:4')
            for i in range(7):
                a(f'buffer_store_dwordx2 v[{72+2*i}:{73+2*i}], v8, s[{R_B}:{R_B+3}], 0 offen offset:{8+8*i}')
        if E('PSTAMP'):
            for i in range(12):
                a(f'v_accvgpr_read_b32 v{100+i}, a{232+i}')
            srd(a, R_B, S_WS, S_WS+1, 0x40000, TS_OFF + 0x100000)
            for i in range(3):
                a(f'buffer_store_dwordx4 v[{100+4*i}:{103+4*i}], v8, s[{R_B}:{R_B+3}], 0 offen offset:{16*i}')
    a.label('L_end')
    a('s_endpgm')
    a.label('L_embslow')
    a(f's_mov_b32 s{S_TMP+2}, 0')
    a.label('L_embslow2')
    a(f'buffer_load_dword v{V_EX+16}, v{V_PF2}, {WSR}, s{S_TMP+1} offen {SC}')
    a('s_waitcnt vmcnt(0)')
    a(f'v_cmp_eq_u32 vcc, s{S_E}, v{V_EX+16}')
    a(f's_add_u32 s{S_TMP+2}, s{S_TMP+2}, 1')
    a('s_cmp_eq_u64 vcc, exec\ns_cbranch_scc1 L_embok')
    a(f's_cmp_lt_u32 s{S_TMP+2}, 0x40000\ns_cbranch_scc1 L_embslow2')
    a('s_branch L_embok')
    name = 'standalone__adm_resblock__diffusion_kernel'
    return khead(name) + a.text(), kd(name, 256+(248 if ts else 208), 256)

def main():
    ts = '--ts' in sys.argv
    hdr = open('standalone__adm_resblock__diffusion.s.ref').read().split('\n')
    top = [l for l in hdr if l.startswith(';') and '@launch' not in l]
    top += ['; @launch grid=(256,1,1) block=(256,1,1) lds=163840']
    k = gen(ts)
    out = '\n'.join(top) + '\n.amdgcn_target "amdgcn-amd-amdhsa--gfx950"\n.text\n'
    out += k[0] + '\n.section .rodata,"a"\n' + k[1] + '\n'
    print(out)

main()
```

```python
import sys, struct, os
from genlib import *

E = os.environ.get
WARM = int(E('WARM', '3'))
TRK = E('TRK', '')
TOUCH = int(E('TOUCH', '1'))
PREF = int(E('PREF', '0'))
ORD = int(E('ORD', '0'))
CPF = int(E('CPF', '0'))
TLB = int(E('TLB', '1'))
WPRI = int(E('WPRI', '0'))
LATEW = int(E('LATEW', '1'))
T128 = int(E('T128', '1'))
W2T = int(E('W2T', '0'))
ECHO = E('ECHO', '')
ORDB = int(E('ORDB', '0'))
OUTF = E('OUTF', '')
DUP = int(E('DUP', '1'))
NT1 = E('NT1', ''); NT2 = E('NT2', ''); NTX = E('NTX', '')
WDLY = int(E('WDLY', '0'))
NOVM = E('NOVM', '')
EPS = E('EPS', '10,6')
DLY0 = int(E('DLY0', '0')); DLY1 = int(E('DLY1', '0'))
CAP = int(E('CAP', '2'))
BND = int(E('BND', '1'))
NLOC = int(E('NLOC', '12')); KGLOB = int(E('KGLOB', '2'))
SC = 'sc1'

A1_OFF = 0x010000
A2_OFF = 0x410000
EMBP_OFF = 0x700000
ST1L_OFF = 0x720000
ST2L_OFF = 0x724000
ST1G_OFF = 0x730000
F0_OFF = 0x738000
F1_OFF = 0x740000
ST2G_OFF = 0x760000
WS_SIZE = 0x800000
TS_OFF = 0x8000000

WAVE_LDS = 40960
WSLOT = 10240
NA = 5
A_BASE = 2*WSLOT
MISC = A_BASE

V_AD = 16; V_AR = 28; V_L16 = 31; V_EX = 32
V_PF0 = 49; V_PF1 = 50; V_PW = 51
V_T = 52
V_PF2 = 54; V_PFX = 55
V_WD = 64
V_WR = 74
V_WRX = 78
V_RAW = 82
V_WF = 118
V_P0 = 190
V_H = 216
A_ACC = 0; A_AF = 64; A_TS = 208
def acc(ob, ro, half): return A_ACC + ((ob*4 + ro)*2 + half)*4
def af(r, half, dx): return A_AF + ((r*2 + half)*3 + dx)*4
def wf(kk, tap): return V_WF + (kk % 2)*36 + tap*4

S_X, S_T, S_G1, S_B1, S_W1, S_WE, S_G2, S_B2, S_W2, S_OUT, S_DBG, S_WS = 4, 6, 8, 10, 12, 14, 16, 18, 20, 22, 24, 26
R_WS = 28; R_X = 32; R_A = 36; R_B = 40
S_WAVE = 44; S_XCD = 45; S_WITHIN = 46; S_BB = 47; S_G = 48; S_OCT = 49; S_PXT = 50; S_OC0 = 51; S_Y0 = 52
S_LDS = 53; S_E = 54; S_FFFF = 55
S_WOFF = 56
S_AOFF = 64
S_TMP = 68
S_C = 80
S_LIN = 84; S_IDX = 85; S_R1 = 86; S_R2 = 87
S_O1 = 88; S_O2 = 89; S_SAVE = 90
S_TS = 92
R_WQ = 96

def red2(a, v1, v2, s1, s2):
    for mod in ('quad_perm:[1,0,3,2] row_mask:0xf', 'quad_perm:[2,3,0,1] row_mask:0xf', 'row_half_mirror row_mask:0xf',
                'row_mirror row_mask:0xf', 'row_bcast:15 row_mask:0xa', 'row_bcast:31 row_mask:0xc'):
        a('s_nop 0')
        a(f'v_add_f32_dpp v{v1}, v{v1}, v{v1} {mod} bank_mask:0xf')
        a(f'v_add_f32_dpp v{v2}, v{v2}, v{v2} {mod} bank_mask:0xf')
    a(f'v_readlane_b32 s{s1}, v{v1}, 63\ns_nop 0\nv_readlane_b32 s{s2}, v{v2}, 63')

def silu_pk(a, z, t, n):
    for i in range(0, n, 2):
        a(f'v_pk_mul_f32 v[{t+i}:{t+i+1}], v[{z+i}:{z+i+1}], s[{S_C}:{S_C+1}]')
    for i in range(n):
        a(f'v_exp_f32 v{t+i}, v{t+i}')
    if n <= 4: a('s_nop 0')
    for i in range(0, n, 2):
        a(f'v_pk_add_f32 v[{t+i}:{t+i+1}], v[{t+i}:{t+i+1}], s[{S_C+2}:{S_C+3}]')
    for i in range(n):
        a(f'v_rcp_f32 v{t+i}, v{t+i}')
    if n <= 4: a('s_nop 0')
    for i in range(0, n, 2):
        a(f'v_pk_mul_f32 v[{z+i}:{z+i+1}], v[{z+i}:{z+i+1}], v[{t+i}:{t+i+1}]')

OLDW = {}; NEWW = {}; PREW = {}; OLDPREW = {}
def wgt(x):
    if x.endswith(':'): return 0
    if x.startswith('buffer_') or x.startswith('ds_write') or x.startswith('v_exp') or x.startswith('v_rcp'): return 2
    return 1

def gen(ts=False):
    a = Asm()
    stamps = [0]
    def stamp(idx=None):
        if ECHO:
            i = stamps[0] if idx is None else idx
            e0, e1 = [int(x) for x in ECHO.split(',')]
            if i == e0: a('s_memrealtime s[100:101]'); a.wait_all(v=False)
            if i == e1: a('s_memrealtime s[94:95]'); a.wait_all(v=False)
            if idx is None and not ts: stamps[0] += 1
        if ts:
            a(f's_memtime s[{S_TS}:{S_TS+1}]'); a.wait_all(v=False)
            i = stamps[0] if idx is None else idx
            a(f'v_mov_b32 v15, s{S_TS}\nv_accvgpr_write_b32 a{A_TS+i}, v15')
            if idx is None: stamps[0] += 1
    WSR = f's[{R_WS}:{R_WS+3}]'
    a('s_cmp_ge_u32 s2, 256\ns_cbranch_scc1 L_end')
    a('s_load_dwordx16 s[4:19], s[0:1], 0')
    a('s_load_dwordx8 s[20:27], s[0:1], 64')
    a(f's_memrealtime s[{S_TS+2}:{S_TS+3}]')
    if ECHO: a('s_memrealtime s[100:101]')
    if ts:
        a('s_memtime s[90:91]\ns_memrealtime s[100:101]\ns_waitcnt lgkmcnt(0)\nv_mov_b32 v15, s90\nv_accvgpr_write_b32 a229, v15')
    a('v_lshrrev_b32 v1, 6, v0\nv_and_b32 v2, 63, v0')
    a(f'v_readfirstlane_b32 s{S_WAVE}, v1')
    a(f's_and_b32 s{S_XCD}, s2, 7\ns_lshr_b32 s{S_WITHIN}, s2, 3')
    a(f's_lshr_b32 s{S_BB}, s{S_XCD}, 2\ns_and_b32 s{S_G}, s{S_XCD}, 3')
    a(f's_and_b32 s{S_OCT}, s{S_WITHIN}, 3\ns_lshr_b32 s{S_PXT}, s{S_WITHIN}, 2')
    a(f's_lshl_b32 s{S_OC0}, s{S_G}, 7\ns_lshl_b32 s{S_TMP}, s{S_OCT}, 5\ns_add_u32 s{S_OC0}, s{S_OC0}, s{S_TMP}')
    a(f's_lshl_b32 s{S_Y0}, s{S_PXT}, 2')
    a(f's_mul_i32 s{S_LDS}, s{S_WAVE}, {WAVE_LDS}')
    a(f's_lshl_b32 s{S_LIN}, s{S_XCD}, 5\ns_add_u32 s{S_LIN}, s{S_LIN}, s{S_WITHIN}')
    a(f's_lshr_b32 s{S_IDX}, s{S_LIN}, 1')
    a('v_lshlrev_b32 v3, 1, v2\nv_lshl_add_u32 v3, v1, 9, v3')
    a(f'v_lshlrev_b32 v{V_L16}, 4, v2')
    a(f's_lshl_b32 s{S_TMP+4}, s{S_IDX}, 14')
    a(f's_lshl_b32 s{S_TMP+6}, s{S_WAVE}, 12\ns_add_u32 s{S_O1}, s{S_TMP+4}, s{S_TMP+6}\ns_add_u32 s{S_O1}, s{S_O1}, {A1_OFF}')
    a(f's_and_b32 s{S_TMP+5}, s{S_IDX}, 63\ns_lshl_b32 s{S_TMP+5}, s{S_TMP+5}, 4')
    a(f's_or_b32 s{S_TMP+7}, s2, s{S_WAVE}')
    a(f's_mov_b32 s{S_C}, 0x{NLOG2E:x}\ns_mov_b32 s{S_C+1}, 0x{NLOG2E:x}\ns_mov_b32 s{S_C+2}, 1.0\ns_mov_b32 s{S_C+3}, 1.0')
    a('s_waitcnt lgkmcnt(0)')
    srd(a, R_B, S_DBG, S_DBG+1, 256)
    a(f's_cmp_lg_u32 s{S_TMP+7}, 0\ns_cbranch_scc1 L_noep')
    a(f's_or_b32 s{S_TS+2}, s{S_TS+2}, 1\nv_mov_b32 v5, s{S_TS+2}\nv_mov_b32 v4, 0')
    a(f'buffer_store_dword v5, v4, s[{R_B}:{R_B+3}], 0 offen {SC}')
    a.label('L_noep')
    srd(a, R_X, S_X, S_X+1, 2097152)
    srd(a, R_WS, S_WS, S_WS+1, WS_SIZE)
    a(f's_bitcmp1_b32 s{S_WITHIN}, 0\ns_cbranch_scc1 L_warm')

    def get_epoch(nm, v0_):
        a(f'v_mov_b32 v13, 0\ns_mov_b32 s{S_TMP+1}, 0')
        a.label(nm)
        a(f'v_readfirstlane_b32 s{S_E}, v{v0_}')
        a(f's_add_u32 s{S_TMP+1}, s{S_TMP+1}, 1')
        a(f's_cmp_lg_u32 s{S_E}, 0\ns_cbranch_scc1 {nm}ok')
        a(f's_cmp_gt_u32 s{S_TMP+1}, 0x40000\ns_cbranch_scc1 {nm}ok')
        a(f'buffer_load_dword v{v0_}, v13, s[{R_B}:{R_B+3}], 0 offen {SC}')
        a(f's_waitcnt vmcnt(0)\ns_branch {nm}')
        a.label(nm + 'ok')

    def exchange(nm, vS, loc_own, glob_own, publisher_cond, nld, lanemask, loc_base, glob_base, vA, vL, mid=None):
        loc_own(); glob_own()
        def pub(sreg, flag):
            if publisher_cond: a(f's_cmp_lg_u32 s{S_WAVE}, 0\ns_cbranch_scc1 {nm}_np{len(a.L)}'); lab = a.L[-1].split()[-1]
            a(f'v_mov_b32 v{vA+1}, 0\nv_cmp_eq_u32 vcc, 0, v2\ns_and_saveexec_b64 s[{S_SAVE}:{S_SAVE+1}], vcc')
            a(f'buffer_store_dwordx4 v[{vS}:{vS+3}], v{vA+1}, {WSR}, s{sreg} offen {flag}')
            a(f's_mov_b64 exec, s[{S_SAVE}:{S_SAVE+1}]')
            if publisher_cond: a.label(lab)
        pub(S_TMP+2, '')
        a(f'v_and_b32 v{vA}, {lanemask}, v2\nv_lshlrev_b32 v{vA}, 4, v{vA}')
        loc_base()
        a(f's_mov_b32 s{S_TMP+1}, 0\ns_movk_i32 s{S_TMP+4}, 1024')
        if mid: mid()
        a.label(nm)
        for i in range(nld):
            if i == 0:
                a(f'buffer_load_dwordx4 v[{vL}:{vL+3}], v{vA}, {WSR}, s{S_TMP} offen {SC}')
            else:
                a(f's_add_u32 s{S_TMP+5}, s{S_TMP}, s{S_TMP+4}')
                a(f'buffer_load_dwordx4 v[{vL+4}:{vL+7}], v{vA}, {WSR}, s{S_TMP+5} offen {SC}')
        a('s_waitcnt vmcnt(0)')
        a(f'v_xor_b32 v{vA+1}, s{S_E}, v{vL+1}\nv_xor_b32 v{vA+2}, s{S_E}, v{vL+3}')
        if nld == 2:
            a(f'v_xor_b32 v{vA+3}, s{S_E}, v{vL+5}\nv_or3_b32 v{vA+1}, v{vA+1}, v{vA+2}, v{vA+3}\nv_xor_b32 v{vA+2}, s{S_E}, v{vL+7}')
        a(f'v_or_b32 v{vA+1}, v{vA+1}, v{vA+2}')
        a(f'v_cmp_eq_u32 vcc, 0, v{vA+1}')
        a(f's_add_u32 s{S_TMP+1}, s{S_TMP+1}, 1')
        a(f's_cmp_eq_u64 vcc, exec\ns_cbranch_scc1 {nm}_ok')
        a(f's_cmp_lg_u32 s{S_TMP+1}, {KGLOB}\ns_cbranch_scc1 {nm}_c1')
        pub(S_TMP+3, SC)
        a.label(f'{nm}_c1')
        a(f's_cmp_lg_u32 s{S_TMP+1}, {NLOC}\ns_cbranch_scc1 {nm}_c2')
        a(f'v_lshlrev_b32 v{vA}, 3, v{vA}\ns_movk_i32 s{S_TMP+4}, 8192')
        glob_base()
        a.label(f'{nm}_c2')
        a(f's_cmp_lt_u32 s{S_TMP+1}, 0x40000\ns_cbranch_scc1 {nm}')
        a.label(f'{nm}_ok')
        a(f's_cmp_gt_u32 s{S_TMP+1}, {KGLOB}\ns_cbranch_scc1 {nm}_c3')
        pub(S_TMP+3, SC)
        a.label(f'{nm}_c3')
        if nld == 2:
            a(f'v_add_f32 v{vL}, v{vL}, v{vL+4}\nv_add_f32 v{vL+2}, v{vL+2}, v{vL+6}\ns_nop 0')
        red2(a, vL, vL+2, S_R1, S_R2)

    def mean_rstd(inv, vm):
        ib = f2u(inv)
        a(f'v_mov_b32 v{vm}, 0x{ib:x}\ns_nop 0')
        a(f'v_mul_f32 v{vm+2}, s{S_R2}, v{vm}\nv_mul_f32 v{vm}, s{S_R1}, v{vm}')
        a(f'v_fma_f32 v{vm+2}, -v{vm}, v{vm}, v{vm+2}\nv_max_f32 v{vm+2}, 0, v{vm+2}\nv_add_f32 v{vm+2}, 0x3727c5ac, v{vm+2}')
        a(f'v_rsq_f32 v{vm+2}, v{vm+2}\nv_sub_f32 v{vm}, 0, v{vm}\nv_mov_b32 v{vm+1}, v{vm}\nv_mov_b32 v{vm+3}, v{vm+2}')

    m0cur = [None]
    def set_m0(v):
        if m0cur[0] != v:
            a(f's_add_u32 m0, s{S_LDS}, {v}'); m0cur[0] = v
    def fix_m0():
        if a.L[-1].startswith('s_add_u32 m0'): a('s_nop 0')
    def wsegs(kk):
        return list(range(10)) if ((kk % 8)//2) % 2 == 0 else list(range(1, 9))
    wdone = set(); rawdone = set(); permdone = set()
    def dma_w_pre(kk, n):
        if kk >= 2: assert (kk-2) in rawdone, kk
        if 'w' in NOVM: return
        if kk >= 2: a.need(ltags=[('R', kk-2, 8)])
        if kk == 8 and n == 0:
            srd(a, R_WQ, S_W2, S_W2+1, 4718592+4096, -4096)
        set_m0((kk % 2)*WSLOT + (n - n % 4)*1024)
    def dma_w(kk, n):
        if n == wsegs(kk)[-1]: wdone.add(kk)
        if 'w' in NOVM: return
        assert m0cur[0] == (kk % 2)*WSLOT + (n - n % 4)*1024
        fix_m0()
        a.vmem(f'buffer_load_dwordx4 v{V_WD+n}, s[{R_WQ}:{R_WQ+3}], s{S_WOFF + kk % 8} offen offset:{(n%4)*1024} lds', tag=('W', kk))
    atmp = [None]; adone = set()
    def dma_a_pre(conv, u, kq):
        if 'a' in NOVM: return
        s, j = divmod(u, 3)
        set_m0(A_BASE + (u % NA)*4096)
        key = (conv, s)
        if atmp[0] != key:
            a(f's_add_u32 s{S_TMP+9}, s{S_AOFF+s}, {A1_OFF if conv == 0 else A2_OFF}'); atmp[0] = key
    def dma_a(conv, u, kq):
        if kq == 3: adone.add((conv, u))
        if 'a' in NOVM: return
        s, j = divmod(u, 3)
        assert m0cur[0] == A_BASE + (u % NA)*4096
        fix_m0()
        a.vmem(f'buffer_load_dwordx4 v{V_AD+4*j+kq}, {WSR}, s{S_TMP+9} offen offset:{kq*1024} lds', tag=('A', conv, u))
    def rd_raw(kk, j):
        assert kk in wdone, kk
        if kk >= 1: assert (kk-1) in permdone, kk
        a.need(vtags=[('W', kk)])
        m = j % 4
        odd = ((kk % 8)//2) % 2 == 1
        reg = (V_WRX if (odd and j < 4) else V_WR) + m
        a.lds(f'ds_read_b128 v[{V_RAW+4*j}:{V_RAW+4*j+3}], v{reg} offset:{(kk % 2)*WSLOT + (j//4)*1024}', tag=('R', kk, j))
        if j == 8: rawdone.add(kk)
    def perm(kk, i):
        assert kk in rawdone, kk
        m, t = divmod(i, 9)
        lo = 9*m + t//2; hi = 9*m + (t+9)//2
        if t == 0:
            a.need(ltags=[('R', kk, (9*m+8)//4)])
        d = wf(kk, t) + m
        if t % 2 == 0:
            a(f'v_bfi_b32 v{d}, s{S_FFFF}, v{V_RAW+lo}, v{V_RAW+hi}')
        else:
            a(f'v_alignbit_b32 v{d}, v{V_RAW+hi}, v{V_RAW+lo}, 16')
        if i == 35: permdone.add(kk)
    issued = set()
    def rd_af(conv, s, r, half, dx):
        u = s*3 + r//2
        assert (conv, u) in adone, (conv, u)
        a.need(vtags=[('A', conv, u)])
        reg = V_AR
        if dx == 0 and half == 0: reg = V_AR+1
        if dx == 2 and half == 1: reg = V_AR+2
        off = (u % NA)*4096 + (r % 2)*512 + half*256 + (dx-1)*16
        if reg == V_AR+1: off += 16
        d = af(r, half, dx)
        a.lds(f'ds_read_b128 a[{d}:{d+3}], v{reg} offset:{off}', tag=('F', s, r, half, dx))
        issued.add((conv, s, r, half, dx))
    def w_dma_all(kk):
        for n in wsegs(kk):
            dma_w_pre(kk, n); dma_w(kk, n)
    def w_rawperm(kk, doperm=True):
        for j in range(9): rd_raw(kk, j)
        if doperm:
            for i in range(36): perm(kk, i)

    def setup():
        a('v_lshrrev_b32 v4, 2, v2\nv_and_b32 v5, 3, v2')
        a('v_bfe_u32 v6, v4, 3, 1\nv_lshlrev_b32 v6, 1, v6\nv_xor_b32 v5, v5, v6')
        a(f's_movk_i32 s{S_TMP}, 9216\nv_add_u32 v4, s{S_OC0}, v4\nv_mul_u32_u24 v4, s{S_TMP}, v4\nv_lshl_add_u32 v4, v5, 4, v4')
        for n in range(10):
            a(f'v_add_u32 v{V_WD+n}, {4096 + n*64 - (n%4)*1024}, v4')
        srd(a, R_WQ, S_W1, S_W1+1, 4718592+4096, -4096)
        a(f's_mul_i32 s{S_WOFF}, s{S_WAVE}, 2304')
        for k in range(1, 8):
            a(f's_add_u32 s{S_WOFF+k}, s{S_WOFF}, {(k//2)*576 + (k%2)*147456}')
        a(f's_lshl_b32 s{S_TMP}, s{S_BB}, 20')
        a('v_mov_b32 v5, 0x7ff00000')
        for j in range(3):
            a(f'v_lshrrev_b32 v3, 5, v2\nv_add_u32 v3, {2*j}, v3\nv_add_u32 v3, s{S_Y0}, v3\nv_subrev_u32 v3, 1, v3')
            a('v_and_b32 v4, 31, v2\nv_lshlrev_b32 v4, 4, v4\nv_lshl_add_u32 v4, v3, 9, v4')
            a(f'v_add_u32 v4, s{S_TMP}, v4')
            a('v_cmp_gt_u32 vcc, 32, v3\ns_nop 1')
            a(f'v_cndmask_b32 v{V_AD+4*j}, v5, v4, vcc')
            for kq in range(1, 4):
                a(f'v_add_u32 v{V_AD+4*j+kq}, {kq*15360}, v{V_AD+4*j}')
        a('v_and_b32 v3, 15, v2\nv_lshrrev_b32 v4, 4, v2')
        a(f's_add_u32 s{S_TMP}, s{S_LDS}, {A_BASE}')
        a(f'v_lshlrev_b32 v{V_AR}, 10, v4\nv_lshl_add_u32 v{V_AR}, v3, 4, v{V_AR}\nv_add_u32 v{V_AR}, s{S_TMP}, v{V_AR}')
        a(f'v_mov_b32 v5, 163840\nv_subrev_u32 v6, 16, v{V_AR}')
        a(f'v_cmp_eq_u32 vcc, 0, v3\ns_nop 1\nv_cndmask_b32 v{V_AR+1}, v6, v5, vcc')
        a(f'v_cmp_eq_u32 vcc, 15, v3\ns_nop 1\nv_cndmask_b32 v{V_AR+2}, v{V_AR}, v5, vcc')
        a(f'v_add_u32 v{V_PW}, s{S_TMP}, v{V_L16}')
        a('v_bfe_u32 v6, v3, 3, 1\nv_lshlrev_b32 v6, 1, v6\nv_mul_u32_u24 v5, 9, v4')
        a(f'v_lshlrev_b32 v7, 6, v3\nv_add_u32 v7, s{S_LDS}, v7')
        a('v_mov_b32 v10, 0\nv_mov_b32 v11, 9216\nv_cmp_eq_u32 vcc, 0, v4\ns_nop 1\nv_cndmask_b32 v10, v10, v11, vcc')
        for m in range(4):
            a(f'v_add_u32 v8, {m}, v5\nv_lshrrev_b32 v9, 2, v8\nv_and_b32 v8, 3, v8\nv_xor_b32 v8, v8, v6')
            a(f'v_lshl_add_u32 v{V_WR+m}, v9, 10, v7\nv_lshl_add_u32 v{V_WR+m}, v8, 4, v{V_WR+m}')
            a(f'v_add_u32 v{V_WRX+m}, v{V_WR+m}, v10')
        a(f's_mov_b32 s{S_FFFF}, 0xffff')
        a(f'v_lshlrev_b32 v5, 3, v4\ns_lshl_b32 s{S_TMP}, s{S_OC0}, 1')
        for ptr, r0 in ((S_G2, V_EX+8), (S_B2, V_EX+12)):
            srd(a, R_A, ptr, ptr+1, 1024)
            for o2 in range(2):
                a(f'buffer_load_dwordx2 v[{r0+2*o2}:{r0+1+2*o2}], v5, s[{R_A}:{R_A+3}], s{S_TMP} offen offset:{o2*32}')
        a(f's_lshl_b32 s{S_AOFF}, s{S_WAVE}, 18')
        for s in range(1, 4):
            a(f's_add_u32 s{S_AOFF+s}, s{S_AOFF}, {s*65536}')
        a(f's_lshl_b32 s{S_TMP}, s{S_BB}, 2\ns_add_u32 s{S_TMP}, s{S_TMP}, s{S_WAVE}\ns_lshl_b32 s{S_TMP}, s{S_TMP}, 5')
        a(f'v_lshlrev_b32 v6, 1, v3\nv_add_u32 v{V_PF0}, s{S_TMP}, v6')
        a('v_and_b32 v5, 31, v2')
        a(f'v_lshrrev_b32 v6, 2, v5\nv_subrev_u32 v7, s{S_PXT}, v6\nv_add_u32 v7, 1, v7')
        a(f'v_mov_b32 v8, s{S_PXT}\nv_cmp_gt_u32 vcc, 3, v7\ns_nop 1\nv_cndmask_b32 v6, v8, v6, vcc')
        a(f'v_and_b32 v7, 3, v5\nv_lshl_add_u32 v6, v6, 2, v7\nv_add_u32 v6, s{S_TMP}, v6\nv_lshlrev_b32 v{V_PF1}, 7, v6')
        a(f's_lshl_b32 s{S_TMP+1}, s{S_XCD}, 5\ns_lshl_b32 s{S_TMP+2}, s{S_OCT}, 1\ns_add_u32 s{S_TMP+1}, s{S_TMP+1}, s{S_TMP+2}\ns_add_u32 s{S_TMP+1}, s{S_TMP+1}, 1')
        a(f'v_and_b32 v6, 3, v2\nv_lshlrev_b32 v6, 3, v6\nv_add_u32 v6, s{S_TMP+1}, v6\nv_lshlrev_b32 v{V_PF2}, 7, v6')
        a(f'v_lshlrev_b32 v6, {7 if W2T else 6}, v2\nv_mov_b32 v7, 0x7ff00000\nv_cmp_gt_u32 vcc, {36 if W2T else 18}, v2\ns_nop 1\nv_cndmask_b32 v{V_PFX}, v7, v6, vcc')
        a(f'v_lshlrev_b32 v{V_PF0}, 7, v{V_PF0}')
    X0 = V_H
    for c in range(8):
        if c % 2 == 0 and c:
            a(f's_add_u32 s{S_TMP+4}, s{S_TMP+4}, 4096')
        for q in range(4):
            a(f'buffer_load_ushort v{X0+8*q+c}, v3, s[{R_X}:{R_X+3}], s{S_TMP+4} offen offset:{(c%2)*2048+q*128} {NTX}')
    a(f's_add_u32 s{S_G1}, s{S_G1}, s{S_TMP+5}\ns_addc_u32 s{S_G1+1}, s{S_G1+1}, 0')
    a(f's_add_u32 s{S_B1}, s{S_B1}, s{S_TMP+5}\ns_addc_u32 s{S_B1+1}, s{S_B1+1}, 0')
    GB = 72
    a(f's_load_dwordx4 s[{GB}:{GB+3}], s[{S_G1}:{S_G1+1}], 0\ns_load_dwordx4 s[{GB+4}:{GB+7}], s[{S_B1}:{S_B1+1}], 0')
    EP = V_H + 32
    eps = [int(x) for x in EPS.split(',')]
    def touch():
        if TOUCH:
            a(f's_lshl_b32 s{S_TMP}, s{S_XCD}, 8\ns_add_u32 s{S_TMP}, s{S_TMP}, {ST1L_OFF}')
            a(f'buffer_load_dword v{EP+4}, v{V_L16}, {WSR}, s{S_TMP} offen {SC}')
            a(f's_lshl_b32 s{S_TMP}, s{S_XCD}, 11\ns_add_u32 s{S_TMP}, s{S_TMP}, {ST2L_OFF}')
            a(f'buffer_load_dword v{EP+4}, v{V_L16}, {WSR}, s{S_TMP} offen {SC}')
            a(f'buffer_load_dword v{EP+4}, v{V_L16}, {WSR}, s{S_TMP} offen offset:1024 {SC}')
        if TOUCH & 2:
            a(f'v_lshlrev_b32 v5, 6, v2')
            a(f'buffer_load_dword v{EP+4}, v5, {WSR}, s{S_O1} offen {SC}')
        if TOUCH & 4:
            a(f's_lshl_b32 s{S_TMP}, s{S_LIN}, 7\ns_add_u32 s{S_TMP}, s{S_TMP}, {F0_OFF}\nv_mov_b32 v5, 0')
            a(f'buffer_load_dword v{EP+4}, v5, {WSR}, s{S_TMP} offen {SC}')
    touch()
    setup()
    a(f's_cmp_eq_u32 s{S_WAVE}, 0\ns_cbranch_scc1 L_w0a')
    a('s_waitcnt vmcnt(0)\ns_branch L_stat')
    a.label('L_w0a')
    a('v_mov_b32 v13, 0')
    for i in range(3):
        a(f'v_mov_b32 v{EP+i}, 0')
    for i, sl in enumerate(eps):
        a(f's_sleep {sl}')
        a(f'buffer_load_dword v{EP+i}, v13, s[{R_B}:{R_B+3}], 0 offen {SC}')
    a(f's_waitcnt vmcnt({len(eps)})')
    a.label('L_stat')
    stamp(0)
    for c in range(32):
        a(f'v_lshlrev_b32 v{X0+c}, 16, v{X0+c}')
    a(f'v_pk_add_f32 v[8:9], v[{X0}:{X0+1}], v[{X0+2}:{X0+3}]\nv_pk_mul_f32 v[10:11], v[{X0}:{X0+1}], v[{X0}:{X0+1}]')
    a(f'v_pk_fma_f32 v[10:11], v[{X0+2}:{X0+3}], v[{X0+2}:{X0+3}], v[10:11]')
    for c in range(4, 32, 2):
        a(f'v_pk_add_f32 v[8:9], v[8:9], v[{X0+c}:{X0+c+1}]\nv_pk_fma_f32 v[10:11], v[{X0+c}:{X0+c+1}], v[{X0+c}:{X0+c+1}], v[10:11]')
    a('v_add_f32 v8, v8, v9\nv_add_f32 v9, v10, v11\ns_nop 0')
    red2(a, 8, 9, S_R1, S_R2)
    a(f's_lshl_b32 s{S_TMP}, s{S_WAVE}, 3\ns_add_u32 s{S_TMP}, s{S_TMP}, {MISC}\nv_mov_b32 v10, s{S_TMP}')
    a(f'v_mov_b32 v8, s{S_R1}\nv_mov_b32 v9, s{S_R2}')
    a('ds_write_b64 v10, v[8:9]')
    a(f's_cmp_lg_u32 s{S_WAVE}, 0\ns_cbranch_scc1 L_b1')
    a('s_waitcnt vmcnt(0)')
    a(f'v_or3_b32 v12, v{EP}, v{EP+1}, v{EP+2}')
    get_epoch('L_ep', 12)
    a(f'v_mov_b32 v10, {MISC+32}\nds_write_b32 v10, v12')
    stamp(16)
    if ts: a(f'v_mov_b32 v15, s{S_TMP+1}\nv_accvgpr_write_b32 a{A_TS+19}, v15')
    a.label('L_b1')
    SCLV = V_P0; SHF = V_P0 + 8
    a('s_waitcnt lgkmcnt(0)')
    for c in range(8):
        g = GB + c//2; be = GB + 4 + c//2
        if c % 2 == 0:
            a(f's_lshl_b32 s{S_R1}, s{g}, 16\ns_lshl_b32 s{S_R2}, s{be}, 16')
        else:
            a(f's_and_b32 s{S_R1}, s{g}, 0xffff0000\ns_and_b32 s{S_R2}, s{be}, 0xffff0000')
        a(f'v_mov_b32 v{SCLV+c}, s{S_R1}\nv_mov_b32 v{SHF+c}, s{S_R2}')
    a('s_barrier')
    a(f'v_mov_b32 v12, {MISC}')
    a('ds_read_b128 v[4:7], v12\nds_read_b128 v[8:11], v12 offset:16\nds_read_b32 v13, v12 offset:32')
    a('s_waitcnt lgkmcnt(0)')
    a(f'v_readfirstlane_b32 s{S_E}, v13')
    a('v_pk_add_f32 v[4:5], v[4:5], v[6:7]\nv_pk_add_f32 v[8:9], v[8:9], v[10:11]\nv_pk_add_f32 v[4:5], v[4:5], v[8:9]')
    a('v_mov_b32 v6, v5\nv_mov_b32 v5, v13\nv_mov_b32 v7, v13')
    exchange('L_p1', 4,
             lambda: a(f's_lshl_b32 s{S_TMP+2}, s{S_IDX}, 4\ns_add_u32 s{S_TMP+2}, s{S_TMP+2}, {ST1L_OFF}'),
             lambda: a(f's_lshl_b32 s{S_TMP+3}, s{S_IDX}, 7\ns_add_u32 s{S_TMP+3}, s{S_TMP+3}, {ST1G_OFF}'),
             True, 1, 15,
             lambda: a(f's_lshl_b32 s{S_TMP}, s{S_XCD}, 8\ns_add_u32 s{S_TMP}, s{S_TMP}, {ST1L_OFF}'),
             lambda: a(f's_lshl_b32 s{S_TMP}, s{S_XCD}, 11\ns_add_u32 s{S_TMP}, s{S_TMP}, {ST1G_OFF}'),
             12, 8)
    stamp(1)
    if ts: a(f'v_mov_b32 v15, s{S_TMP+1}\nv_accvgpr_write_b32 a{A_TS+18}, v15')
    a.vq = []; a.lq = []
    mean_rstd(1.0/(4*131072), 8)
    for c in range(0, 8, 2):
        a(f'v_pk_mul_f32 v[{SCLV+c}:{SCLV+c+1}], v[{SCLV+c}:{SCLV+c+1}], v[10:11]')
        a(f'v_pk_fma_f32 v[{SHF+c}:{SHF+c+1}], v[{SCLV+c}:{SCLV+c+1}], v[8:9], v[{SHF+c}:{SHF+c+1}]')
    ZT = V_P0 + 16
    for q in range(4):
        Z = X0 + 8*q
        for c in range(0, 8, 2):
            a(f'v_pk_fma_f32 v[{Z+c}:{Z+c+1}], v[{Z+c}:{Z+c+1}], v[{SCLV+c}:{SCLV+c+1}], v[{SHF+c}:{SHF+c+1}]')
        silu_pk(a, Z, ZT, 8)
        for i in range(4):
            a(f'v_cvt_pk_bf16_f32 v{Z+i}, v{Z+2*i}, v{Z+2*i+1}')
        a.vmem(f'buffer_store_dwordx4 v[{Z}:{Z+3}], v{V_L16}, {WSR}, s{S_O1} offen offset:{1024*q} {SC}', tag='st')
    a('s_branch L_join')

    a.label('L_warm')
    wdone.clear(); m0cur[0] = None; a.vq = []; a.lq = []
    EW = V_WF
    EA = V_WF + 16
    ET = V_WF + 24
    a(f's_lshr_b32 s{S_TMP+8}, s{S_WITHIN}, 1\ns_and_b32 s{S_TMP+9}, s{S_TMP+8}, 3\ns_lshr_b32 s{S_TMP+10}, s{S_TMP+8}, 2')
    if TLB:
        a(f'v_and_b32 v5, 3, v2\nv_lshlrev_b32 v6, 21, v5\nv_and_b32 v5, 1, v5\nv_mul_u32_u24 v5, 0x1f0000, v5\nv_add_u32 v5, v5, v6')
        a(f'buffer_load_dword v{V_H+4}, v5, {WSR}, 0 offen {SC}')
        a('v_mov_b32 v5, 0')
        for ptr, sz in ((S_OUT, 2097152),):
            srd(a, R_A, ptr, ptr+1, sz)
            a(f'buffer_load_dword v{V_H+4}, v5, s[{R_A}:{R_A+3}], 0 offen {SC}')
    if CPF:
        a(f's_getpc_b64 s[{R_A}:{R_A+1}]')
        a(f's_and_b32 s{R_A+1}, s{R_A+1}, 0xffff\ns_mov_b32 s{R_A+2}, {CPF}\ns_mov_b32 s{R_A+3}, 0x20000')
        a(f's_lshl_b32 s{S_TMP}, s{S_TMP+8}, 2\ns_add_u32 s{S_TMP}, s{S_TMP}, s{S_WAVE}\ns_lshl_b32 s{S_TMP}, s{S_TMP}, 10')
        a(f'buffer_load_dwordx4 v[{V_H}:{V_H+3}], v{V_L16}, s[{R_A}:{R_A+3}], s{S_TMP} offen')
    srd(a, R_A, S_WE, S_WE+1, 786432)
    a('v_lshrrev_b32 v6, 2, v0\nv_and_b32 v5, 3, v0')
    a('v_lshlrev_b32 v7, 10, v6\nv_lshl_add_u32 v7, v5, 4, v7')
    a(f's_mul_i32 s{S_TMP}, s{S_TMP+10}, {192*1024}\ns_lshl_b32 s{S_TMP+1}, s{S_G}, 8\ns_add_u32 s{S_TMP}, s{S_TMP}, s{S_TMP+1}')
    a(f's_lshl_b32 s{S_TMP+1}, s{S_TMP+9}, 6\ns_add_u32 s{S_TMP}, s{S_TMP}, s{S_TMP+1}')
    for i in range(3):
        if i: a(f's_add_u32 s{S_TMP}, s{S_TMP}, 65536')
        a(f'buffer_load_dwordx4 v[{EW+4*i}:{EW+4*i+3}], v7, s[{R_A}:{R_A+3}], s{S_TMP} offen')
    srd(a, R_A, S_T, S_T+1, 3072)
    a(f'v_lshlrev_b32 v7, 1, v6\ns_mul_i32 s{S_TMP}, s{S_BB}, 1536\ns_mul_i32 s{S_TMP+1}, s{S_TMP+10}, 384\ns_add_u32 s{S_TMP}, s{S_TMP}, s{S_TMP+1}')
    for i in range(3):
        a(f'buffer_load_ushort v{EW+12+i}, v7, s[{R_A}:{R_A+3}], s{S_TMP} offen offset:{128*i}')
    a(f'v_mov_b32 v{EW+15}, 0')
    if WDLY: a(f's_sleep {WDLY}')
    nbulk = 0
    DUM = V_H
    for bit, ptr in ((1, S_W1), (2, S_W2)):
        if WARM & bit:
            srd(a, R_A, ptr, ptr+1, 4718592)
            if DUP & bit:
                a(f's_lshl_b32 s{S_TMP}, s{S_G}, 6\ns_lshl_b32 s{S_TMP+1}, s{S_TMP+8}, 2\ns_add_u32 s{S_TMP}, s{S_TMP}, s{S_TMP+1}\ns_add_u32 s{S_TMP}, s{S_TMP}, s{S_WAVE}\ns_mul_i32 s{S_TMP}, s{S_TMP}, 18432')
                nl = 18
            else:
                a(f's_lshl_b32 s{S_TMP}, s{S_G}, 7\ns_lshl_b32 s{S_TMP+1}, s{S_TMP+8}, 2\ns_add_u32 s{S_TMP}, s{S_TMP}, s{S_TMP+1}\ns_add_u32 s{S_TMP}, s{S_TMP}, s{S_WAVE}')
                a(f's_lshl_b32 s{S_TMP+1}, s{S_BB}, 6\ns_add_u32 s{S_TMP}, s{S_TMP}, s{S_TMP+1}\ns_mul_i32 s{S_TMP}, s{S_TMP}, 9216')
                nl = 9
            if T128:
                nlines = nl*8
                a('v_lshlrev_b32 v8, 7, v2')
                a(f'v_mov_b32 v9, 0x7ff00000\nv_cmp_gt_u32 vcc, {nlines % 64}, v2\ns_nop 1\nv_cndmask_b32 v9, v9, v8, vcc')
                for i in range((nlines + 63)//64):
                    if i: a(f's_add_u32 s{S_TMP}, s{S_TMP}, 8192')
                    vr = 8 if (i+1)*64 <= nlines else 9
                    a(f'buffer_load_dword v{DUM}, v{vr}, s[{R_A}:{R_A+3}], s{S_TMP} offen {NT1 if bit == 1 else NT2}')
                    nbulk += 1
            else:
                for i in range(nl):
                    if i % 4 == 0 and i: a(f's_add_u32 s{S_TMP}, s{S_TMP}, 4096')
                    a(f'buffer_load_dwordx4 v[{DUM}:{DUM+3}], v{V_L16}, s[{R_A}:{R_A+3}], s{S_TMP} offen offset:{(i%4)*1024} {NT1 if bit == 1 else NT2}')
                    nbulk += 1
    setup()
    a(f's_waitcnt vmcnt({nbulk+4})')
    stamp(0)
    for i in range(3):
        a(f'v_lshlrev_b32 v{EW+12+i}, 16, v{EW+12+i}')
    silu_pk(a, EW+12, ET, 4)
    for i in range(3):
        for d in range(4):
            op = 'v_mul_f32' if i == 0 else 'v_fmac_f32'
            a(f'v_lshlrev_b32 v4, 16, v{EW+4*i+d}\nv_and_b32 v5, 0xffff0000, v{EW+4*i+d}')
            a(f'{op} v{EA+2*d}, v4, v{EW+12+i}\n{op} v{EA+2*d+1}, v5, v{EW+12+i}')
    for mod in ('row_ror:4 row_mask:0xf', 'row_ror:8 row_mask:0xf'):
        a('s_nop 1')
        for e in range(8):
            a(f'v_add_f32_dpp v{EA+e}, v{EA+e}, v{EA+e} {mod} bank_mask:0xf')
    for sw in ('v_permlane16_swap_b32', 'v_permlane32_swap_b32'):
        for e in range(8):
            a(f'v_mov_b32 v{ET+e}, v{EA+e}')
        a('s_nop 1')
        for e in range(8):
            a(f'{sw} v{EA+e}, v{ET+e}')
        a('s_nop 1')
        for e in range(8):
            a(f'v_add_f32 v{EA+e}, v{EA+e}, v{ET+e}')
    a(f's_lshl_b32 s{S_TMP}, s{S_XCD}, 2\ns_add_u32 s{S_TMP}, s{S_TMP}, s{S_TMP+9}\ns_lshl_b32 s{S_TMP}, s{S_TMP}, 2\ns_add_u32 s{S_TMP}, s{S_TMP}, s{S_TMP+10}')
    a(f's_lshl_b32 s{S_TMP}, s{S_TMP}, 2\ns_add_u32 s{S_TMP}, s{S_TMP}, s{S_WAVE}\ns_lshl_b32 s{S_TMP}, s{S_TMP}, 7\ns_add_u32 s{S_TMP}, s{S_TMP}, {EMBP_OFF}')
    a('v_lshlrev_b32 v4, 5, v2')
    a(f'v_cmp_gt_u32 vcc, 4, v2\ns_and_saveexec_b64 s[{S_SAVE}:{S_SAVE+1}], vcc')
    a(f'buffer_store_dwordx4 v[{EA}:{EA+3}], v4, {WSR}, s{S_TMP} offen {SC}')
    a(f'buffer_store_dwordx4 v[{EA+4}:{EA+7}], v4, {WSR}, s{S_TMP} offen offset:16 {SC}')
    a(f's_mov_b64 exec, s[{S_SAVE}:{S_SAVE+1}]')
    a('v_mov_b32 v12, 0')
    get_epoch('L_ep2', 12)
    stamp(1)
    a.label('L_join')
    a.vq = ['st']; a.lq = []
    stamps[0] = 2
    m0cur[0] = None
    a('v_and_b32 v3, 15, v2\nv_lshrrev_b32 v4, 4, v2')
    if E('FINE'): stamp(19)
    if PREF >= 1: w_dma_all(0)
    if PREF >= 2: w_dma_all(1)
    if E('FINE'): stamp(17)
    a.need(vtags=['st'])
    if E('FINE'): stamp(18)
    a('s_barrier')
    def flag_store(off):
        a(f's_cmp_lg_u32 s{S_WAVE}, 0\ns_cbranch_scc1 L_nf{off:x}')
        a(f's_lshl_b32 s{S_TMP}, s{S_LIN}, 7\ns_add_u32 s{S_TMP}, s{S_TMP}, {off}')
        a(f'v_mov_b32 v5, s{S_E}\nv_mov_b32 v6, 0')
        a(f'v_cmp_eq_u32 vcc, 0, v2\ns_and_saveexec_b64 s[{S_SAVE}:{S_SAVE+1}], vcc')
        a(f'buffer_store_dword v5, v6, {WSR}, s{S_TMP} offen {SC}')
        a(f's_mov_b64 exec, s[{S_SAVE}:{S_SAVE+1}]')
        a.label(f'L_nf{off:x}')
    def flag_poll(off, vaddr, name, mid=None):
        a(f's_mov_b32 s{S_TMP+1}, 0\ns_mov_b32 s{S_TMP}, {off}')
        if mid:
            t = a.vmem(f'buffer_load_dword v5, v{vaddr}, {WSR}, s{S_TMP} offen {SC}')
            mid()
            a.need(vtags=[t])
            keep = list(a.vq)
            a(f'v_cmp_eq_u32 vcc, s{S_E}, v5\ns_nop 0\ns_cmp_eq_u64 vcc, exec\ns_cbranch_scc1 {name}ok')
        a.label(name)
        a(f'buffer_load_dword v5, v{vaddr}, {WSR}, s{S_TMP} offen {SC}')
        a('s_waitcnt vmcnt(0)')
        a(f'v_cmp_eq_u32 vcc, s{S_E}, v5')
        a(f's_add_u32 s{S_TMP+1}, s{S_TMP+1}, 1')
        a(f's_cmp_eq_u64 vcc, exec\ns_cbranch_scc1 {name}ok')
        a(f's_cmp_lt_u32 s{S_TMP+1}, 0x40000\ns_cbranch_scc1 {name}')
        a.label(name + 'ok')
        a.vq = keep if mid else []
    flag_store(F0_OFF)
    stamp()

    if ORD == 0:
        if PREF < 1: w_dma_all(0)
        if PREF < 2: w_dma_all(1)
        w_rawperm(0)
        w_dma_all(2)
    else:
        if PREF < 1: w_dma_all(0)
        if PREF < 2 and ORD == 2: w_dma_all(1)
        w_rawperm(0)
        if PREF < 2 and ORD == 1: w_dma_all(1)
    if DLY0: a(f's_sleep {DLY0}')
    flag_poll(F0_OFF, V_PF0, 'L_p2', (lambda: w_dma_all(2)) if ORD else None)
    stamp()

    H = V_H; PL = V_H + 16
    def conv(ci):
        which = ci + 1
        PACE = float(E('PACE%d' % which, '5.0' if which == 1 else '5.5'))
        ex = []
        for u in range(3):
            dma_a_pre(ci, u, 0)
            for kq in range(4): dma_a(ci, u, kq)
        if ci == 0: w_rawperm(1)
        for r in range(3):
            for half in range(2):
                for dx in range(3):
                    rd_af(ci, 0, r, half, dx)
        items = []
        def put(gs, fn): items.append((gs, len(items), fn))
        row_slot = {}
        for s_ in range(4):
            for r in range(6):
                if r < 3:
                    if s_ == 0: row_slot[(s_, r)] = None; continue
                    base = 72*(2*s_-1) + 18*(r+1)
                else:
                    base = 72*(2*s_) + 18*(r-3) + (4 if r > 3 else 0)
                row_slot[(s_, r)] = base
                i = 0
                for half in range(2):
                    for dx in range(3):
                        put(base + 1 + (3*i)//2, (lambda ss=s_, r=r, half=half, dx=dx: rd_af(ci, ss, r, half, dx))); i += 1
        RAWS = 52
        raw_slot = {}
        for k_ in range(8):
            kk_ = ci*8 + k_
            p_ = kk_ + 1
            if LATEW and ci == 0 and k_ == 7: continue
            if p_ < 16 and p_ not in permdone and k_ >= 1:
                for i in range(36):
                    put(72*k_ + 1 + (i*4)//3, (lambda x=p_, i=i: perm(x, i)))
            r_ = kk_ + 2
            if W2T and ci == 0 and r_ >= 8: continue
            if r_ < 16 and r_ not in rawdone:
                rs = 72*k_ + (RAWS if k_ >= 1 else 30)
                raw_slot[r_] = rs
                for j in range(9):
                    put(rs + 2*j, (lambda x=r_, j=j: rd_raw(x, j)))
        ops = []
        for kk_ in range(ci*8, 16):
            if kk_ in wdone: continue
            if (kk_-2) in rawdone: ea = 0
            elif (kk_-2) in raw_slot: ea = raw_slot[kk_-2] + 22
            else: continue
            if ea > 560: continue
            dl = raw_slot.get(kk_, 72*8 + 40*(kk_ - ci*8))
            for n in wsegs(kk_):
                ops.append((dl, ea, (lambda x=kk_, n=n: dma_w_pre(x, n)), (lambda x=kk_, n=n: dma_w(x, n)), kk_))
        for u in range(3, 12):
            s_, j = divmod(u, 3)
            dl = row_slot[(s_, 2*j)] or 0
            ea = 0
            if u >= NA:
                ps, pj = divmod(u - NA, 3)
                ea = (row_slot[(ps, 2*pj+1)] or 0) + 14
            for kq in range(4):
                def pre(u=u, kq=kq):
                    if u >= NA:
                        ps, pj = divmod(u - NA, 3)
                        assert (ci, ps, 2*pj+1, 1, 2) in issued
                        a.need(ltags=[('F', ps, 2*pj+1, 1, 2)])
                    dma_a_pre(ci, u, kq)
                ops.append((dl, ea, pre, (lambda u=u, kq=kq: dma_a(ci, u, kq)), None))
        if W2T and ci == 0:
            def tp(i):
                if i == 0:
                    srd(a, R_B, S_W2, S_W2+1, 4718592)
                    if W2T == 1:
                        a(f's_lshl_b32 s{S_TMP+10}, s{S_BB}, 5\ns_add_u32 s{S_TMP+10}, s{S_TMP+10}, s{S_WITHIN}\ns_lshl_b32 s{S_TMP+10}, s{S_TMP+10}, 2\ns_add_u32 s{S_TMP+10}, s{S_TMP+10}, s{S_WAVE}')
                        a(f's_lshl_b32 s{S_TMP+11}, s{S_G}, 8\ns_add_u32 s{S_TMP+10}, s{S_TMP+10}, s{S_TMP+11}\ns_mul_i32 s{S_TMP+10}, s{S_TMP+10}, 4608')
                    else:
                        a(f's_lshl_b32 s{S_TMP+10}, s{S_WITHIN}, 2\ns_add_u32 s{S_TMP+10}, s{S_TMP+10}, s{S_WAVE}')
                        a(f's_lshl_b32 s{S_TMP+11}, s{S_G}, 7\ns_add_u32 s{S_TMP+10}, s{S_TMP+10}, s{S_TMP+11}\ns_mul_i32 s{S_TMP+10}, s{S_TMP+10}, 9216')
                else:
                    a(f's_add_u32 s{S_TMP+10}, s{S_TMP+10}, 4608')
            lastea = max(o[1] for o in ops if (o[4] is None or o[4] < 8))
            for i in range(W2T):
                ops.append((560, lastea + 1, (lambda i=i: tp(i)), (lambda: a.vmem(f'buffer_load_dword v{V_P0}, v{V_PFX}, s[{R_B}:{R_B+3}], s{S_TMP+10} offen')), -1))
            ops = [(o if (o[4] is None or o[4] < 8) else (o[0], max(o[1], lastea + 2)) + o[2:]) for o in ops]
        ops.sort(key=lambda o: o[0] - (WPRI if o[4] is not None else 0))
        cur = 4.0
        rem = list(ops)
        placed = []
        while rem:
            cand = [o for o in rem if o[1] <= cur]
            if not cand:
                cur = float(min(o[1] for o in rem)); continue
            o = cand[0]; rem.remove(o)
            placed.append((int(cur), o)); cur += PACE
        bad = set(o[4] for sl, o in placed if sl > 572)
        assert None not in bad
        for sl, o in placed:
            if o[4] in bad: continue
            if o[0] < 576 and sl > o[0] - 30: sys.stderr.write(f'warn conv{which}: op at {sl} deadline {o[0]}\n')
            put(sl-1, o[2]); put(sl, o[3])
        base = 72
        SCv = V_P0 + 4; SHv = V_P0 + 12
        if which == 1:
            ef = []
            put(72 + 2, lambda: a(f's_mov_b32 s{S_TMP+1}, {F0_OFF}'))
            put(72 + 4, lambda: ef.append(a.vmem(f'buffer_load_dword v{V_EX+16}, v{V_PF2}, {WSR}, s{S_TMP+1} offen {SC}')))
            def chk():
                a.need(vtags=ef)
                a(f'v_cmp_eq_u32 vcc, s{S_E}, v{V_EX+16}\ns_nop 0\ns_cmp_eq_u64 vcc, exec\ns_cbranch_scc0 L_embslow')
                a.label('L_embok')
            put(144 + 20, chk)
            for i, sl in enumerate([int(x) for x in TRK.split(',')] if TRK else []):
                h_, p_ = divmod(i, 2)
                def t0(i=i):
                    if i == 0:
                        srd(a, R_B, S_W2, S_W2+1, 4718592)
                def t1(i=i):
                    if i == 0:
                        a(f's_lshl_b32 s{S_TMP+10}, s{S_BB}, 5\ns_add_u32 s{S_TMP+10}, s{S_TMP+10}, s{S_WITHIN}\ns_lshl_b32 s{S_TMP+10}, s{S_TMP+10}, 2\ns_add_u32 s{S_TMP+10}, s{S_TMP+10}, s{S_WAVE}')
                        a(f's_lshl_b32 s{S_TMP+11}, s{S_G}, 8\ns_add_u32 s{S_TMP+10}, s{S_TMP+10}, s{S_TMP+11}\ns_mul_i32 s{S_TMP+10}, s{S_TMP+10}, 4608')
                def t2(h_=h_, p_=p_):
                    a.vmem(f'buffer_load_dword v{V_P0}, v{V_PFX}, s[{R_B}:{R_B+3}], s{S_TMP+10} offen offset:{p_*2304 + h_*1152}')
                put(sl-4, t0); put(sl-2, t1); put(sl, t2)
            seq = [lambda: a(f's_lshl_b32 s{S_TMP}, s{S_XCD}, 2\ns_add_u32 s{S_TMP}, s{S_TMP}, s{S_OCT}'),
                   lambda: a(f's_lshl_b32 s{S_TMP}, s{S_TMP}, 11\ns_add_u32 s{S_TMP}, s{S_TMP}, {EMBP_OFF}'),
                   lambda: a('v_lshlrev_b32 v5, 7, v3\nv_lshl_add_u32 v5, v4, 4, v5')]
            for o2 in range(2):
                seq.append(lambda o2=o2: ex.append(a.vmem(f'buffer_load_dwordx4 v[{V_EX+4*o2}:{V_EX+4*o2+3}], v5, {WSR}, s{S_TMP} offen offset:{64*o2} {SC}')))
            seq += [lambda: a('v_lshrrev_b32 v5, 1, v4\nv_lshlrev_b32 v5, 14, v5'), lambda: a('v_lshl_add_u32 v5, v3, 4, v5\nv_and_b32 v6, 1, v4'),
                    lambda: a(f'v_lshl_add_u32 v{V_EX+16}, v6, 8, v5\ns_lshl_b32 s{S_TMP}, s{S_BB}, 20'),
                    lambda: a(f's_lshl_b32 s{S_TMP+1}, s{S_OC0}, 11\ns_add_u32 s{S_TMP}, s{S_TMP}, s{S_TMP+1}'),
                    lambda: a(f's_add_u32 s{S_TMP+1}, s{S_Y0}, s{S_WAVE}\ns_lshl_b32 s{S_TMP+1}, s{S_TMP+1}, 9'),
                    lambda: a(f's_add_u32 s{S_O1}, s{S_TMP}, s{S_TMP+1}\ns_add_u32 s{S_O1}, s{S_O1}, {A2_OFF}'),
                    lambda: a(f's_add_u32 s{S_O2}, s{S_O1}, 32768')]
            for i, fn in enumerate(seq): put(144 + 24 + 3*i, fn)
            seq = [lambda: a.need(vtags=ex)]
            for mod in ('quad_perm:[1,0,3,2]', 'quad_perm:[2,3,0,1]', 'row_half_mirror', 'row_mirror'):
                for i in range(8):
                    seq.append(lambda mod=mod, i=i: a(f'v_add_f32_dpp v{V_EX+i}, v{V_EX+i}, v{V_EX+i} {mod} row_mask:0xf bank_mask:0xf'))
            for o2 in range(2):
                for i in range(4):
                    g = V_EX+8+2*o2+i//2; be = V_EX+12+2*o2+i//2; e = o2*4+i
                    if i % 2 == 0:
                        seq.append(lambda g=g, e=e: a(f'v_lshlrev_b32 v{SCv+e}, 16, v{g}')); seq.append(lambda be=be, e=e: a(f'v_lshlrev_b32 v{SHv+e}, 16, v{be}'))
                    else:
                        seq.append(lambda g=g, e=e: a(f'v_and_b32 v{SCv+e}, 0xffff0000, v{g}')); seq.append(lambda be=be, e=e: a(f'v_and_b32 v{SHv+e}, 0xffff0000, v{be}'))
            for i, fn in enumerate(seq): put(72*4 + 10 + 2*i, fn)
        else:
            seq = [lambda: a(f's_mov_b32 s{R_A}, s{S_OUT}\ns_and_b32 s{R_A+1}, s{S_OUT+1}, 0xffff'), lambda: a(f's_mov_b32 s{R_A+2}, 2097152\ns_mov_b32 s{R_A+3}, 0x20000'),
                   lambda: a(f'v_lshlrev_b32 v{V_EX+16}, 11, v3\nv_lshl_add_u32 v{V_EX+16}, v4, 3, v{V_EX+16}'),
                   lambda: a(f's_lshl_b32 s{S_TMP}, s{S_BB}, 20\ns_lshl_b32 s{S_TMP+1}, s{S_OC0}, 11'),
                   lambda: a(f's_add_u32 s{S_TMP}, s{S_TMP}, s{S_TMP+1}\ns_add_u32 s{S_TMP+1}, s{S_Y0}, s{S_WAVE}'),
                   lambda: a(f's_lshl_b32 s{S_TMP+1}, s{S_TMP+1}, 6\ns_add_u32 s{S_O1}, s{S_TMP}, s{S_TMP+1}'),
                   lambda: a(f's_add_u32 s{S_O2}, s{S_O1}, 32768')]
            for o2 in range(2):
                for half in range(2):
                    r = V_EX + (o2*2+half)*2
                    seq.append(lambda r=r, o2=o2, half=half: ex.append(a.vmem(f'buffer_load_dwordx2 v[{r}:{r+1}], v{V_EX+16}, s[{R_X}:{R_X+3}], s{S_O1 if o2 == 0 else S_O2} offen offset:{half*32}')))
            for i, fn in enumerate(seq): put(6 + 3*i, fn)
            seq = [lambda: a.need(vtags=ex)]
            for q in range(8):
                seq.append(lambda q=q: a(f'v_lshlrev_b32 v{V_P0+2*q}, 16, v{V_EX+q}')); seq.append(lambda q=q: a(f'v_and_b32 v{V_P0+2*q+1}, 0xffff0000, v{V_EX+q}'))
            for i, fn in enumerate(seq): put(72*3 + 3*i, fn)
        def poff(o2, ro, half): return (8192 if o2 == 0 else 0) + (ro*2+half)*1024
        def pw(o2, ro, half):
            c = acc(o2, ro, half)
            a.lds(f'ds_write_b128 v{V_PW}, a[{c}:{c+3}] offset:{poff(o2, ro, half)}', tag=('PW', o2))
        def prd(o2, v, half, dst):
            b_ = V_T if v < 2 else V_T+1
            a.lds(f'ds_read_b128 v[{dst}:{dst+3}], v{b_} offset:{(v%2)*WAVE_LDS + poff(o2, 0, half)}', tag=('P', o2, v, half))
        def red_reads(o2):
            outs = []
            for half in range(2):
                for v in range(4):
                    dst = (H + (o2*2+half)*4) if v == 0 else (PL + (half*3 + v-1)*4)
                    outs.append(lambda v=v, half=half, dst=dst: prd(o2, v, half, dst))
            return outs
        SQ = V_T + 8
        def red_adds(o2, pk):
            outs = []
            for half in range(2):
                h = H + (o2*2+half)*4
                extra = (V_EX + 4*o2) if which == 1 else (V_P0 + (o2*2+half)*4)
                for v in range(1, 5):
                    for i in range(0, 4, 2 if pk else 1):
                        def f(half=half, v=v, i=i, h=h, extra=extra):
                            a.need(ltags=[('P', o2, 3, half)])
                            src = (PL + (half*3+v-1)*4 + i) if v < 4 else extra + i
                            if pk: a(f'v_pk_add_f32 v[{h+i}:{h+i+1}], v[{h+i}:{h+i+1}], v[{src}:{src+1}]')
                            else: a(f'v_add_f32 v{h+i}, v{h+i}, v{src}')
                        outs.append(f)
                if which == 1:
                    if pk:
                        for i in range(0, 4, 2):
                            outs.append(lambda h=h, i=i: a(f'v_pk_fma_f32 v[{SQ+2}:{SQ+3}], v[{h+i}:{h+i+1}], v[{h+i}:{h+i+1}], v[{SQ+2}:{SQ+3}]'))
                            outs.append(lambda h=h, i=i: a(f'v_pk_add_f32 v[{SQ}:{SQ+1}], v[{SQ}:{SQ+1}], v[{h+i}:{h+i+1}]'))
                    else:
                        for i in range(4):
                            outs.append(lambda h=h, i=i: a(f'v_fmac_f32 v{SQ+2+i%2}, v{h+i}, v{h+i}'))
                            outs.append(lambda h=h, i=i: a(f'v_add_f32 v{SQ+i%2}, v{SQ+i%2}, v{h+i}'))
                else:
                    o = V_EX + (o2*2+half)*2
                    outs.append(lambda h=h, o=o: a(f'v_cvt_pk_bf16_f32 v{o}, v{h}, v{h+1}\nv_cvt_pk_bf16_f32 v{o+1}, v{h+2}, v{h+3}'))
                    outs.append(lambda o=o, half=half: a.vmem(f'buffer_store_dwordx2 v[{o}:{o+1}], v{V_EX+16}, s[{R_A}:{R_A+3}], s{S_O1 if o2 == 0 else S_O2} offen offset:{half*32} {OUTF}'))
            return outs
        b6 = 72*6; b7 = 72*7
        put(b6, lambda: a(f's_lshl_b32 s{S_TMP}, s{S_WAVE}, 11\ns_add_u32 s{S_TMP}, s{S_TMP}, {A_BASE}'))
        put(b6 + 2, lambda: a(f'v_add_u32 v{V_T}, s{S_TMP}, v{V_L16}\nv_add_u32 v{V_T+1}, {2*WAVE_LDS}, v{V_T}'))
        if which == 1:
            put(b6 + 4, lambda: a(f'v_mov_b32 v{SQ}, 0\nv_mov_b32 v{SQ+1}, 0'))
            put(b6 + 6, lambda: a(f'v_mov_b32 v{SQ+2}, 0\nv_mov_b32 v{SQ+3}, 0'))
        for o2 in range(2):
            for ro in range(4):
                for half in range(2):
                    sl = 72*(6+o2) + 18*ro + 9*half + 8 + 9
                    if sl <= 575 and not (o2 == 1 and ro == 3):
                        put(sl, (lambda o2=o2, ro=ro, half=half: pw(o2, ro, half)))
        def fbar():
            a.need(ltags=[('PW', 0)]); a('s_barrier')
        put(b7 + 14, fbar)
        for i, fn in enumerate(red_reads(0)): put(b7 + 15 + i, fn)
        for i, fn in enumerate(red_adds(0, False)): put(b7 + 26 + (i*7)//8, fn)
        items.sort(key=lambda x: (x[0], x[1]))
        qi = 0
        gs = 0
        for k in range(8):
            if k in (0, 1): stamp()
            if E('PSTAMP') and ci == int(E('PSTAMP'))-1: stamp(232 - A_TS + k)
            s, ob = divmod(k, 2)
            kk = ci*8 + k
            assert kk in permdone
            for ro in range(4):
                for half in range(2):
                    for dy in range(3):
                        for dx in range(3):
                            nb = len(a.L)
                            if dx == 0:
                                while not all((ci, s, ro+dy, half, d2) in issued for d2 in range(3)):
                                    items[qi][2](); qi += 1
                                a.need(ltags=[('F', s, ro+dy, half, d2) for d2 in range(3)])
                            PREW[(ci, gs)] = len(a.L) - nb
                            c = acc(ob, ro, half); w_ = wf(kk, dy*3+dx); f_ = af(ro+dy, half, dx)
                            srcc = '0' if (s == 0 and dy == 0 and dx == 0) else f'a[{c}:{c+3}]'
                            if which == 1:
                                a(f'v_mfma_f32_16x16x32_bf16 a[{c}:{c+3}], v[{w_}:{w_+3}], a[{f_}:{f_+3}], {srcc}')
                            else:
                                a(f'v_mfma_f32_16x16x32_bf16 a[{c}:{c+3}], a[{f_}:{f_+3}], v[{w_}:{w_+3}], {srcc}')
                            used = OLDPREW.get((ci, gs+1), 0)
                            last = (gs == 575) or (gs % 72 == 71 and (kk+1) not in permdone and k < 7)
                            while qi < len(items) and items[qi][0] <= gs:
                                key = (ci, items[qi][1])
                                wexp = OLDW.get(key, 1)
                                if not last and used > 0 and used + wexp > CAP: break
                                if not last and used >= CAP and wexp > 0: break
                                n1 = len(a.L)
                                items[qi][2](); qi += 1
                                wact = sum(wgt(x) for x in a.L[n1:])
                                NEWW[key] = wact
                                used += wact
                            gs += 1
            if k < 7 and not a.L[-1].startswith('v_mfma') and (a.L[-1].startswith('v_bfi') or a.L[-1].startswith('v_alignbit') or a.L[-2].startswith('v_bfi') or a.L[-2].startswith('v_alignbit')): a('s_nop 1')
        assert qi == len(items), (qi, len(items))
        if E('PSTAMP') and ci == int(E('PSTAMP'))-1: stamp(240 - A_TS)
        pw(1, 3, 0)
        a('s_nop 7')
        pw(1, 3, 1)
        a.need(ltags=[('PW', 1)]); a('s_barrier')
        for fn in red_reads(1): fn()
        for fn in red_adds(1, True): fn()
        stamp()
        if which == 1:
            G = V_T + 4
            a(f'v_add_f32 v{SQ}, v{SQ}, v{SQ+1}\nv_add_f32 v{SQ+1}, v{SQ+2}, v{SQ+3}\ns_nop 0')
            red2(a, SQ, SQ+1, S_R1, S_R2)
            a(f'v_mov_b32 v{G+1}, s{S_E}\nv_mov_b32 v{G+3}, s{S_E}\nv_mov_b32 v{G}, s{S_R1}\nv_mov_b32 v{G+2}, s{S_R2}')
            a(f's_lshl_b32 s{S_TMP+6}, s{S_LIN}, 2\ns_add_u32 s{S_TMP+6}, s{S_TMP+6}, s{S_WAVE}')
            def mid3():
                a.vq.append(('pub',))
                if 9 in rawdone and 9 not in permdone:
                    for i in range(36): perm(9, i)
            exchange('L_p3', G,
                     lambda: a(f's_lshl_b32 s{S_TMP+2}, s{S_TMP+6}, 4\ns_add_u32 s{S_TMP+2}, s{S_TMP+2}, {ST2L_OFF}'),
                     lambda: a(f's_lshl_b32 s{S_TMP+3}, s{S_TMP+6}, 7\ns_add_u32 s{S_TMP+3}, s{S_TMP+3}, {ST2G_OFF}'),
                     False, 2, 63,
                     lambda: a(f's_lshl_b32 s{S_TMP}, s{S_XCD}, 11\ns_add_u32 s{S_TMP}, s{S_TMP}, {ST2L_OFF}'),
                     lambda: a(f's_lshl_b32 s{S_TMP}, s{S_XCD}, 14\ns_add_u32 s{S_TMP}, s{S_TMP}, {ST2G_OFF}'),
                     V_T+8, PL, mid3)
            a.vq = []
            stamp()
            M = V_T + 8
            mean_rstd(1.0/131072, M)
            for e in range(0, 8, 2):
                a(f'v_pk_mul_f32 v[{SCv+e}:{SCv+e+1}], v[{SCv+e}:{SCv+e+1}], v[{M+2}:{M+3}]')
                a(f'v_pk_fma_f32 v[{SHv+e}:{SHv+e+1}], v[{SCv+e}:{SCv+e+1}], v[{M}:{M+1}], v[{SHv+e}:{SHv+e+1}]')
            for o2 in range(2):
                Z = H + o2*8
                for half in range(2):
                    for i in range(0, 4, 2):
                        r = Z + half*4 + i
                        a(f'v_pk_fma_f32 v[{r}:{r+1}], v[{r}:{r+1}], v[{SCv+o2*4+i}:{SCv+o2*4+i+1}], v[{SHv+o2*4+i}:{SHv+o2*4+i+1}]')
                silu_pk(a, Z, PL, 8)
                r = PL + 8 + o2*4
                for q in range(4):
                    a(f'v_cvt_pk_bf16_f32 v{r+q}, v{Z+2*q}, v{Z+2*q+1}')
                a('s_nop 1')
                a(f'v_permlane16_swap_b32 v{r}, v{r+2}\nv_permlane16_swap_b32 v{r+1}, v{r+3}')
                a(f'buffer_store_dwordx4 v[{r}:{r+3}], v{V_EX+16}, {WSR}, s{S_O1 if o2 == 0 else S_O2} offen {SC}')
            a.vq = []
            if 8 not in rawdone: w_rawperm(8)
            if 8 not in permdone:
                for i in range(36): perm(8, i)
            if 9 not in rawdone: w_rawperm(9)
            if BND and 10 in wdone and 10 not in rawdone:
                w_rawperm(10, False)
            a('s_waitcnt vmcnt(0)\ns_barrier')
            a.vq = []
            flag_store(F1_OFF)
            a.vq = [('flag',)]
            stamp()
            todo = [kk_ for kk_ in (10, 11, 12) if kk_ not in wdone and (kk_-2) in rawdone and (BND or kk_ < 12)]
            for kk_ in (todo[:-1] if ORDB else todo): w_dma_all(kk_)
            if DLY1: a(f's_sleep {DLY1}')
            flag_poll(F1_OFF, V_PF1, 'L_p4', (lambda: w_dma_all(todo[-1])) if ORDB else None)
            stamp()
    conv(0)
    conv(1)
    if ECHO:
        a('s_waitcnt vmcnt(0)')
        stamp()
        a('s_sub_u32 s94, s94, s100')
        a('s_memrealtime s[100:101]\ns_waitcnt lgkmcnt(0)\ns_add_u32 s94, s94, s100')
        a.label('L_echo')
        a('s_memrealtime s[100:101]\ns_waitcnt lgkmcnt(0)\ns_sub_u32 s95, s94, s100\ns_cmp_gt_i32 s95, 0\ns_cbranch_scc1 L_echo')
    if ts:
        a('s_waitcnt vmcnt(0)')
        stamp()
        a('s_memrealtime s[98:99]\ns_waitcnt lgkmcnt(0)')
        for i in range(16):
            a(f'v_accvgpr_read_b32 v{72+i}, a{A_TS+i}')
        for i in range(4):
            a(f'v_accvgpr_read_b32 v{92+i}, a{A_TS+16+i}')
        a('v_accvgpr_read_b32 v88, a229\nv_mov_b32 v89, s100\nv_mov_b32 v90, s98\nv_mov_b32 v91, 0')
        a(f's_lshl_b32 s{S_TMP}, s2, 9\ns_lshl_b32 s{S_TMP+1}, s{S_WAVE}, 7\ns_add_u32 s{S_TMP}, s{S_TMP}, s{S_TMP+1}\nv_mov_b32 v8, s{S_TMP}')
        srd(a, R_B, S_WS, S_WS+1, 0x40000, TS_OFF)
        a(f'v_cmp_eq_u32 vcc, 0, v2\ns_and_saveexec_b64 s[{S_SAVE}:{S_SAVE+1}], vcc')
        for i in range(6):
            a(f'buffer_store_dwordx4 v[{72+4*i}:{75+4*i}], v8, s[{R_B}:{R_B+3}], 0 offen offset:{16*i}')
        if E('DBGOUT'):
            wg = int(E('DBGOUT'))
            a(f's_cmp_lg_u32 s2, {wg}\ns_cbranch_scc1 L_end\ns_cmp_lg_u32 s{S_WAVE}, 1\ns_cbranch_scc1 L_end')
            srd(a, R_B, S_DBG, S_DBG+1, 256)
            for i in range(14):
                a(f'v_sub_u32 v{72+i}, v{72+i}, v88')
            a('v_sub_u32 v90, v90, v89\nv_mov_b32 v8, 0')
            a(f'buffer_store_dword v90, v8, s[{R_B}:{R_B+3}], 0 offen offset:4')
            for i in range(7):
                a(f'buffer_store_dwordx2 v[{72+2*i}:{73+2*i}], v8, s[{R_B}:{R_B+3}], 0 offen offset:{8+8*i}')
        if E('PSTAMP'):
            for i in range(12):
                a(f'v_accvgpr_read_b32 v{100+i}, a{232+i}')
            srd(a, R_B, S_WS, S_WS+1, 0x40000, TS_OFF + 0x100000)
            for i in range(3):
                a(f'buffer_store_dwordx4 v[{100+4*i}:{103+4*i}], v8, s[{R_B}:{R_B+3}], 0 offen offset:{16*i}')
    a.label('L_end')
    a('s_endpgm')
    a.label('L_embslow')
    a(f's_mov_b32 s{S_TMP+2}, 0')
    a.label('L_embslow2')
    a(f'buffer_load_dword v{V_EX+16}, v{V_PF2}, {WSR}, s{S_TMP+1} offen {SC}')
    a('s_waitcnt vmcnt(0)')
    a(f'v_cmp_eq_u32 vcc, s{S_E}, v{V_EX+16}')
    a(f's_add_u32 s{S_TMP+2}, s{S_TMP+2}, 1')
    a('s_cmp_eq_u64 vcc, exec\ns_cbranch_scc1 L_embok')
    a(f's_cmp_lt_u32 s{S_TMP+2}, 0x40000\ns_cbranch_scc1 L_embslow2')
    a('s_branch L_embok')
    name = 'standalone__adm_resblock__diffusion_kernel'
    return khead(name) + a.text(), kd(name, 256+(248 if ts else 208), 256)

def main():
    ts = '--ts' in sys.argv
    hdr = open('standalone__adm_resblock__diffusion.s.ref').read().split('\n')
    top = [l for l in hdr if l.startswith(';') and '@launch' not in l]
    top += ['; @launch grid=(256,1,1) block=(256,1,1) lds=163840']
    for it in range(4):
        k = gen(ts)
        OLDW.clear(); OLDW.update(NEWW); OLDPREW.clear(); OLDPREW.update(PREW)
    out = '\n'.join(top) + '\n.amdgcn_target "amdgcn-amd-amdhsa--gfx950"\n.text\n'
    out += k[0] + '\n.section .rodata,"a"\n' + k[1] + '\n'
    print(out)

main()
```

```python
import sys, struct, os
from genlib import *

E = os.environ.get
WARM = int(E('WARM', '3'))
TRK = E('TRK', '')
TOUCH = int(E('TOUCH', '1'))
PREF = int(E('PREF', '0'))
ORD = int(E('ORD', '0'))
CPF = int(E('CPF', '0'))
TLB = int(E('TLB', '1'))
WPRI = int(E('WPRI', '0'))
LATEW = int(E('LATEW', '1'))
T128 = int(E('T128', '1'))
NOWIN = int(E('NOWIN', '0'))
REP = int(E('REP', '0'))
PSL = int(E('PSL', '0'))
FULL = int(E('FULL', '1'))
FT = int(E('FT', '1'))
W2T = int(E('W2T', '0'))
ECHO = E('ECHO', '')
ORDB = int(E('ORDB', '0'))
OUTF = E('OUTF', '')
DUP = int(E('DUP', '1'))
NT1 = E('NT1', ''); NT2 = E('NT2', ''); NTX = E('NTX', '')
WDLY = int(E('WDLY', '0'))
NOVM = E('NOVM', '')
EPS = E('EPS', '10,6')
DLY0 = int(E('DLY0', '0')); DLY1 = int(E('DLY1', '0'))
CAP = int(E('CAP', '2'))
BND = int(E('BND', '1'))
NLOC = int(E('NLOC', '12')); KGLOB = int(E('KGLOB', '2'))
SC = 'sc1'

A1_OFF = 0x010000
A2_OFF = 0x410000
EMBP_OFF = 0x700000
ST1L_OFF = 0x720000
ST2L_OFF = 0x724000
ST1G_OFF = 0x730000
F0_OFF = 0x780000
F1_OFF = 0x7A0000
ST2G_OFF = 0x760000
WS_SIZE = 0x800000
TS_OFF = 0x8000000

WAVE_LDS = 40960
WSLOT = 10240
NA = 5
A_BASE = 2*WSLOT
MISC = A_BASE

V_AD = 16; V_AR = 28; V_L16 = 31; V_EX = 32
V_PF0 = 49; V_PF1 = 50; V_PW = 51
V_T = 52
V_PF2 = 54; V_PFX = 55
V_WD = 64
V_WR = 74
V_WRX = 78
V_RAW = 82
V_WF = 118
V_P0 = 190
V_H = 216
A_ACC = 0; A_AF = 64; A_TS = 208
def acc(ob, ro, half): return A_ACC + ((ob*4 + ro)*2 + half)*4
def af(r, half, dx): return A_AF + ((r*2 + half)*3 + dx)*4
def wf(kk, tap): return V_WF + (kk % 2)*36 + tap*4

S_X, S_T, S_G1, S_B1, S_W1, S_WE, S_G2, S_B2, S_W2, S_OUT, S_DBG, S_WS = 4, 6, 8, 10, 12, 14, 16, 18, 20, 22, 24, 26
R_WS = 28; R_X = 32; R_A = 36; R_B = 40
S_WAVE = 44; S_XCD = 45; S_WITHIN = 46; S_BB = 47; S_G = 48; S_OCT = 49; S_PXT = 50; S_OC0 = 51; S_Y0 = 52
S_LDS = 53; S_E = 54; S_FFFF = 55
S_WOFF = 56
S_AOFF = 64
S_TMP = 68
S_C = 80
S_LIN = 84; S_IDX = 85; S_R1 = 86; S_R2 = 87
S_O1 = 88; S_O2 = 89; S_SAVE = 90
S_TS = 92
R_WQ = 96

def red2(a, v1, v2, s1, s2):
    for mod in ('quad_perm:[1,0,3,2] row_mask:0xf', 'quad_perm:[2,3,0,1] row_mask:0xf', 'row_half_mirror row_mask:0xf',
                'row_mirror row_mask:0xf', 'row_bcast:15 row_mask:0xa', 'row_bcast:31 row_mask:0xc'):
        a('s_nop 0')
        a(f'v_add_f32_dpp v{v1}, v{v1}, v{v1} {mod} bank_mask:0xf')
        a(f'v_add_f32_dpp v{v2}, v{v2}, v{v2} {mod} bank_mask:0xf')
    a(f'v_readlane_b32 s{s1}, v{v1}, 63\ns_nop 0\nv_readlane_b32 s{s2}, v{v2}, 63')

def silu_pk(a, z, t, n):
    for i in range(0, n, 2):
        a(f'v_pk_mul_f32 v[{t+i}:{t+i+1}], v[{z+i}:{z+i+1}], s[{S_C}:{S_C+1}]')
    for i in range(n):
        a(f'v_exp_f32 v{t+i}, v{t+i}')
    if n <= 4: a('s_nop 0')
    for i in range(0, n, 2):
        a(f'v_pk_add_f32 v[{t+i}:{t+i+1}], v[{t+i}:{t+i+1}], s[{S_C+2}:{S_C+3}]')
    for i in range(n):
        a(f'v_rcp_f32 v{t+i}, v{t+i}')
    if n <= 4: a('s_nop 0')
    for i in range(0, n, 2):
        a(f'v_pk_mul_f32 v[{z+i}:{z+i+1}], v[{z+i}:{z+i+1}], v[{t+i}:{t+i+1}]')

OLDW = {}; NEWW = {}; PREW = {}; OLDPREW = {}
def wgt(x):
    if x.endswith(':'): return 0
    if x.startswith('buffer_') or x.startswith('ds_write') or x.startswith('v_exp') or x.startswith('v_rcp'): return 2
    return 1

def gen(ts=False):
    a = Asm()
    stamps = [0]
    def stamp(idx=None):
        if ECHO:
            i = stamps[0] if idx is None else idx
            e0, e1 = [int(x) for x in ECHO.split(',')]
            if i == e0: a('s_memrealtime s[100:101]'); a.wait_all(v=False)
            if i == e1: a('s_memrealtime s[94:95]'); a.wait_all(v=False)
            if idx is None and not ts: stamps[0] += 1
        if ts:
            a(f's_memtime s[{S_TS}:{S_TS+1}]'); a.wait_all(v=False)
            i = stamps[0] if idx is None else idx
            a(f'v_mov_b32 v15, s{S_TS}\nv_accvgpr_write_b32 a{A_TS+i}, v15')
            if idx is None: stamps[0] += 1
    WSR = f's[{R_WS}:{R_WS+3}]'
    a('s_cmp_ge_u32 s2, 256\ns_cbranch_scc1 L_end')
    a('s_load_dwordx16 s[4:19], s[0:1], 0')
    a('s_load_dwordx8 s[20:27], s[0:1], 64')
    a(f's_memrealtime s[{S_TS+2}:{S_TS+3}]')
    if ECHO: a('s_memrealtime s[100:101]')
    if ts:
        a('s_memtime s[90:91]\ns_memrealtime s[100:101]\ns_waitcnt lgkmcnt(0)\nv_mov_b32 v15, s90\nv_accvgpr_write_b32 a229, v15')
    a('v_lshrrev_b32 v1, 6, v0\nv_and_b32 v2, 63, v0')
    a(f'v_readfirstlane_b32 s{S_WAVE}, v1')
    a(f's_and_b32 s{S_XCD}, s2, 7\ns_lshr_b32 s{S_WITHIN}, s2, 3')
    a(f's_lshr_b32 s{S_BB}, s{S_XCD}, 2\ns_and_b32 s{S_G}, s{S_XCD}, 3')
    a(f's_and_b32 s{S_OCT}, s{S_WITHIN}, 3\ns_lshr_b32 s{S_PXT}, s{S_WITHIN}, 2')
    a(f's_lshl_b32 s{S_OC0}, s{S_G}, 7\ns_lshl_b32 s{S_TMP}, s{S_OCT}, 5\ns_add_u32 s{S_OC0}, s{S_OC0}, s{S_TMP}')
    a(f's_lshl_b32 s{S_Y0}, s{S_PXT}, 2')
    a(f's_mul_i32 s{S_LDS}, s{S_WAVE}, {WAVE_LDS}')
    a(f's_lshl_b32 s{S_LIN}, s{S_XCD}, 5\ns_add_u32 s{S_LIN}, s{S_LIN}, s{S_WITHIN}')
    a(f's_lshr_b32 s{S_IDX}, s{S_LIN}, 1')
    a('v_lshlrev_b32 v3, 1, v2\nv_lshl_add_u32 v3, v1, 9, v3')
    a(f'v_lshlrev_b32 v{V_L16}, 4, v2')
    a(f's_lshl_b32 s{S_TMP+4}, s{S_IDX}, 14')
    a(f's_lshl_b32 s{S_TMP+6}, s{S_WAVE}, 12\ns_add_u32 s{S_O1}, s{S_TMP+4}, s{S_TMP+6}\ns_add_u32 s{S_O1}, s{S_O1}, {A1_OFF}')
    a(f's_and_b32 s{S_TMP+5}, s{S_IDX}, 63\ns_lshl_b32 s{S_TMP+5}, s{S_TMP+5}, 4')
    a(f's_or_b32 s{S_TMP+7}, s2, s{S_WAVE}')
    a(f's_mov_b32 s{S_C}, 0x{NLOG2E:x}\ns_mov_b32 s{S_C+1}, 0x{NLOG2E:x}\ns_mov_b32 s{S_C+2}, 1.0\ns_mov_b32 s{S_C+3}, 1.0')
    a('s_waitcnt lgkmcnt(0)')
    srd(a, R_B, S_DBG, S_DBG+1, 256)
    a(f's_cmp_lg_u32 s{S_TMP+7}, 0\ns_cbranch_scc1 L_noep')
    a(f's_or_b32 s{S_TS+2}, s{S_TS+2}, 1\nv_mov_b32 v5, s{S_TS+2}\nv_mov_b32 v4, 0')
    a(f'buffer_store_dword v5, v4, s[{R_B}:{R_B+3}], 0 offen {SC}')
    a.label('L_noep')
    srd(a, R_X, S_X, S_X+1, 2097152)
    srd(a, R_WS, S_WS, S_WS+1, WS_SIZE)
    a(f's_bitcmp1_b32 s{S_WITHIN}, 0\ns_cbranch_scc1 L_warm')

    def get_epoch(nm, v0_):
        a(f'v_mov_b32 v13, 0\ns_mov_b32 s{S_TMP+1}, 0')
        a.label(nm)
        a(f'v_readfirstlane_b32 s{S_E}, v{v0_}')
        a(f's_add_u32 s{S_TMP+1}, s{S_TMP+1}, 1')
        a(f's_cmp_lg_u32 s{S_E}, 0\ns_cbranch_scc1 {nm}ok')
        a(f's_cmp_gt_u32 s{S_TMP+1}, 0x40000\ns_cbranch_scc1 {nm}ok')
        a(f'buffer_load_dword v{v0_}, v13, s[{R_B}:{R_B+3}], 0 offen {SC}')
        a(f's_waitcnt vmcnt(0)\ns_branch {nm}')
        a.label(nm + 'ok')

    def exchange(nm, vS, loc_own, glob_own, publisher_cond, nld, lanemask, loc_base, glob_base, vA, vL, mid=None):
        loc_own(); glob_own()
        def pub(sreg, flag):
            if publisher_cond: a(f's_cmp_lg_u32 s{S_WAVE}, 0\ns_cbranch_scc1 {nm}_np{len(a.L)}'); lab = a.L[-1].split()[-1]
            a(f'v_mov_b32 v{vA+1}, 0\nv_cmp_eq_u32 vcc, 0, v2\ns_and_saveexec_b64 s[{S_SAVE}:{S_SAVE+1}], vcc')
            a(f'buffer_store_dwordx4 v[{vS}:{vS+3}], v{vA+1}, {WSR}, s{sreg} offen {flag}')
            a(f's_mov_b64 exec, s[{S_SAVE}:{S_SAVE+1}]')
            if publisher_cond: a.label(lab)
        pub(S_TMP+2, '')
        a(f'v_and_b32 v{vA}, {lanemask}, v2\nv_lshlrev_b32 v{vA}, 4, v{vA}')
        loc_base()
        a(f's_mov_b32 s{S_TMP+1}, 0\ns_movk_i32 s{S_TMP+4}, 1024')
        if mid: mid()
        a.label(nm)
        for i in range(nld):
            if i == 0:
                a(f'buffer_load_dwordx4 v[{vL}:{vL+3}], v{vA}, {WSR}, s{S_TMP} offen {SC}')
            else:
                a(f's_add_u32 s{S_TMP+5}, s{S_TMP}, s{S_TMP+4}')
                a(f'buffer_load_dwordx4 v[{vL+4}:{vL+7}], v{vA}, {WSR}, s{S_TMP+5} offen {SC}')
        a('s_waitcnt vmcnt(0)')
        a(f'v_xor_b32 v{vA+1}, s{S_E}, v{vL+1}\nv_xor_b32 v{vA+2}, s{S_E}, v{vL+3}')
        if nld == 2:
            a(f'v_xor_b32 v{vA+3}, s{S_E}, v{vL+5}\nv_or3_b32 v{vA+1}, v{vA+1}, v{vA+2}, v{vA+3}\nv_xor_b32 v{vA+2}, s{S_E}, v{vL+7}')
        a(f'v_or_b32 v{vA+1}, v{vA+1}, v{vA+2}')
        a(f'v_cmp_eq_u32 vcc, 0, v{vA+1}')
        a(f's_add_u32 s{S_TMP+1}, s{S_TMP+1}, 1')
        a(f's_cmp_eq_u64 vcc, exec\ns_cbranch_scc1 {nm}_ok')
        a(f's_cmp_lg_u32 s{S_TMP+1}, {KGLOB}\ns_cbranch_scc1 {nm}_c1')
        pub(S_TMP+3, SC)
        a.label(f'{nm}_c1')
        a(f's_cmp_lg_u32 s{S_TMP+1}, {NLOC}\ns_cbranch_scc1 {nm}_c2')
        a(f'v_lshlrev_b32 v{vA}, 3, v{vA}\ns_movk_i32 s{S_TMP+4}, 8192')
        glob_base()
        a.label(f'{nm}_c2')
        a(f's_cmp_lt_u32 s{S_TMP+1}, 0x40000\ns_cbranch_scc1 {nm}')
        a.label(f'{nm}_ok')
        a(f's_cmp_gt_u32 s{S_TMP+1}, {KGLOB}\ns_cbranch_scc1 {nm}_c3')
        pub(S_TMP+3, SC)
        a.label(f'{nm}_c3')
        if nld == 2:
            a(f'v_add_f32 v{vL}, v{vL}, v{vL+4}\nv_add_f32 v{vL+2}, v{vL+2}, v{vL+6}\ns_nop 0')
        red2(a, vL, vL+2, S_R1, S_R2)

    def mean_rstd(inv, vm):
        ib = f2u(inv)
        a(f'v_mov_b32 v{vm}, 0x{ib:x}\ns_nop 0')
        a(f'v_mul_f32 v{vm+2}, s{S_R2}, v{vm}\nv_mul_f32 v{vm}, s{S_R1}, v{vm}')
        a(f'v_fma_f32 v{vm+2}, -v{vm}, v{vm}, v{vm+2}\nv_max_f32 v{vm+2}, 0, v{vm+2}\nv_add_f32 v{vm+2}, 0x3727c5ac, v{vm+2}')
        a(f'v_rsq_f32 v{vm+2}, v{vm+2}\nv_sub_f32 v{vm}, 0, v{vm}\nv_mov_b32 v{vm+1}, v{vm}\nv_mov_b32 v{vm+3}, v{vm+2}')

    m0cur = [None]
    def set_m0(v):
        if m0cur[0] != v:
            a(f's_add_u32 m0, s{S_LDS}, {v}'); m0cur[0] = v
    def fix_m0():
        if a.L[-1].startswith('s_add_u32 m0'): a('s_nop 0')
    def wsegs(kk):
        return list(range(10)) if ((kk % 8)//2) % 2 == 0 else list(range(1, 9))
    wdone = set(); rawdone = set(); permdone = set()
    def dma_w_pre(kk, n):
        if kk >= 2: assert (kk-2) in rawdone, kk
        if 'w' in NOVM: return
        if kk >= 2: a.need(ltags=[('R', kk-2, 8)])
        if kk == 8 and n == 0:
            srd(a, R_WQ, S_W2, S_W2+1, 4718592+4096, -4096)
        set_m0((kk % 2)*WSLOT + (n - n % 4)*1024)
    def dma_w(kk, n):
        if n == wsegs(kk)[-1]: wdone.add(kk)
        if 'w' in NOVM: return
        assert m0cur[0] == (kk % 2)*WSLOT + (n - n % 4)*1024
        fix_m0()
        a.vmem(f'buffer_load_dwordx4 v{V_WD+n}, s[{R_WQ}:{R_WQ+3}], s{S_WOFF + kk % 8} offen offset:{(n%4)*1024} lds', tag=('W', kk))
    atmp = [None]; adone = set()
    def dma_a_pre(conv, u, kq):
        if 'a' in NOVM: return
        s, j = divmod(u, 3)
        set_m0(A_BASE + (u % NA)*4096)
        key = (conv, s)
        if atmp[0] != key:
            a(f's_add_u32 s{S_TMP+9}, s{S_AOFF+s}, {A1_OFF if conv == 0 else A2_OFF}'); atmp[0] = key
    def dma_a(conv, u, kq):
        if kq == 3: adone.add((conv, u))
        if 'a' in NOVM: return
        s, j = divmod(u, 3)
        assert m0cur[0] == A_BASE + (u % NA)*4096
        fix_m0()
        a.vmem(f'buffer_load_dwordx4 v{V_AD+4*j+kq}, {WSR}, s{S_TMP+9} offen offset:{kq*1024} lds', tag=('A', conv, u))
    def rd_raw(kk, j):
        assert kk in wdone, kk
        if kk >= 1: assert (kk-1) in permdone, kk
        a.need(vtags=[('W', kk)])
        m = j % 4
        odd = ((kk % 8)//2) % 2 == 1
        reg = (V_WRX if (odd and j < 4) else V_WR) + m
        a.lds(f'ds_read_b128 v[{V_RAW+4*j}:{V_RAW+4*j+3}], v{reg} offset:{(kk % 2)*WSLOT + (j//4)*1024}', tag=('R', kk, j))
        if j == 8: rawdone.add(kk)
    def perm(kk, i):
        assert kk in rawdone, kk
        m, t = divmod(i, 9)
        lo = 9*m + t//2; hi = 9*m + (t+9)//2
        if t == 0:
            a.need(ltags=[('R', kk, (9*m+8)//4)])
        d = wf(kk, t) + m
        if t % 2 == 0:
            a(f'v_bfi_b32 v{d}, s{S_FFFF}, v{V_RAW+lo}, v{V_RAW+hi}')
        else:
            a(f'v_alignbit_b32 v{d}, v{V_RAW+hi}, v{V_RAW+lo}, 16')
        if i == 35: permdone.add(kk)
    issued = set()
    def rd_af(conv, s, r, half, dx):
        u = s*3 + r//2
        assert (conv, u) in adone, (conv, u)
        a.need(vtags=[('A', conv, u)])
        reg = V_AR
        if dx == 0 and half == 0: reg = V_AR+1
        if dx == 2 and half == 1: reg = V_AR+2
        off = (u % NA)*4096 + (r % 2)*512 + half*256 + (dx-1)*16
        if reg == V_AR+1: off += 16
        d = af(r, half, dx)
        a.lds(f'ds_read_b128 a[{d}:{d+3}], v{reg} offset:{off}', tag=('F', s, r, half, dx))
        issued.add((conv, s, r, half, dx))
    def w_dma_all(kk):
        for n in wsegs(kk):
            dma_w_pre(kk, n); dma_w(kk, n)
    def w_rawperm(kk, doperm=True):
        for j in range(9): rd_raw(kk, j)
        if doperm:
            for i in range(36): perm(kk, i)

    def setup():
        a('v_lshrrev_b32 v4, 2, v2\nv_and_b32 v5, 3, v2')
        a('v_bfe_u32 v6, v4, 3, 1\nv_lshlrev_b32 v6, 1, v6\nv_xor_b32 v5, v5, v6')
        a(f's_movk_i32 s{S_TMP}, 9216\nv_add_u32 v4, s{S_OC0}, v4\nv_mul_u32_u24 v4, s{S_TMP}, v4\nv_lshl_add_u32 v4, v5, 4, v4')
        for n in range(10):
            a(f'v_add_u32 v{V_WD+n}, {4096 + n*64 - (n%4)*1024}, v4')
        srd(a, R_WQ, S_W1, S_W1+1, 4718592+4096, -4096)
        a(f's_mul_i32 s{S_WOFF}, s{S_WAVE}, 2304')
        for k in range(1, 8):
            a(f's_add_u32 s{S_WOFF+k}, s{S_WOFF}, {(k//2)*576 + (k%2)*147456}')
        a(f's_lshl_b32 s{S_TMP}, s{S_BB}, 20')
        a('v_mov_b32 v5, 0x7ff00000')
        for j in range(3):
            a(f'v_lshrrev_b32 v3, 5, v2\nv_add_u32 v3, {2*j}, v3\nv_add_u32 v3, s{S_Y0}, v3\nv_subrev_u32 v3, 1, v3')
            a('v_and_b32 v4, 31, v2\nv_lshlrev_b32 v4, 4, v4\nv_lshl_add_u32 v4, v3, 9, v4')
            a(f'v_add_u32 v4, s{S_TMP}, v4')
            a('v_cmp_gt_u32 vcc, 32, v3\ns_nop 1')
            a(f'v_cndmask_b32 v{V_AD+4*j}, v5, v4, vcc')
            for kq in range(1, 4):
                a(f'v_add_u32 v{V_AD+4*j+kq}, {kq*15360}, v{V_AD+4*j}')
        a('v_and_b32 v3, 15, v2\nv_lshrrev_b32 v4, 4, v2')
        a(f's_add_u32 s{S_TMP}, s{S_LDS}, {A_BASE}')
        a(f'v_lshlrev_b32 v{V_AR}, 10, v4\nv_lshl_add_u32 v{V_AR}, v3, 4, v{V_AR}\nv_add_u32 v{V_AR}, s{S_TMP}, v{V_AR}')
        a(f'v_mov_b32 v5, 163840\nv_subrev_u32 v6, 16, v{V_AR}')
        a(f'v_cmp_eq_u32 vcc, 0, v3\ns_nop 1\nv_cndmask_b32 v{V_AR+1}, v6, v5, vcc')
        a(f'v_cmp_eq_u32 vcc, 15, v3\ns_nop 1\nv_cndmask_b32 v{V_AR+2}, v{V_AR}, v5, vcc')
        a(f'v_add_u32 v{V_PW}, s{S_TMP}, v{V_L16}')
        a('v_bfe_u32 v6, v3, 3, 1\nv_lshlrev_b32 v6, 1, v6\nv_mul_u32_u24 v5, 9, v4')
        a(f'v_lshlrev_b32 v7, 6, v3\nv_add_u32 v7, s{S_LDS}, v7')
        a('v_mov_b32 v10, 0\nv_mov_b32 v11, 9216\nv_cmp_eq_u32 vcc, 0, v4\ns_nop 1\nv_cndmask_b32 v10, v10, v11, vcc')
        for m in range(4):
            a(f'v_add_u32 v8, {m}, v5\nv_lshrrev_b32 v9, 2, v8\nv_and_b32 v8, 3, v8\nv_xor_b32 v8, v8, v6')
            a(f'v_lshl_add_u32 v{V_WR+m}, v9, 10, v7\nv_lshl_add_u32 v{V_WR+m}, v8, 4, v{V_WR+m}')
            a(f'v_add_u32 v{V_WRX+m}, v{V_WR+m}, v10')
        a(f's_mov_b32 s{S_FFFF}, 0xffff')
        a(f'v_lshlrev_b32 v5, 3, v4\ns_lshl_b32 s{S_TMP}, s{S_OC0}, 1')
        for ptr, r0 in ((S_G2, V_EX+8), (S_B2, V_EX+12)):
            srd(a, R_A, ptr, ptr+1, 1024)
            for o2 in range(2):
                a(f'buffer_load_dwordx2 v[{r0+2*o2}:{r0+1+2*o2}], v5, s[{R_A}:{R_A+3}], s{S_TMP} offen offset:{o2*32}')
        a(f's_lshl_b32 s{S_AOFF}, s{S_WAVE}, 18')
        for s in range(1, 4):
            a(f's_add_u32 s{S_AOFF+s}, s{S_AOFF}, {s*65536}')
        a(f's_lshl_b32 s{S_TMP}, s{S_BB}, 2\ns_add_u32 s{S_TMP}, s{S_TMP}, s{S_WAVE}\ns_lshl_b32 s{S_TMP}, s{S_TMP}, 5')
        a(f'v_lshlrev_b32 v6, 1, v3\nv_add_u32 v{V_PF0}, s{S_TMP}, v6')
        a('v_and_b32 v5, 31, v2')
        a(f'v_lshrrev_b32 v6, 2, v5\nv_subrev_u32 v7, s{S_PXT}, v6\nv_add_u32 v7, 1, v7')
        a(f'v_mov_b32 v8, s{S_PXT}\nv_cmp_gt_u32 vcc, 3, v7\ns_nop 1\nv_cndmask_b32 v6, v8, v6, vcc')
        a(f'v_and_b32 v7, 3, v5\nv_lshl_add_u32 v6, v6, 2, v7\nv_add_u32 v6, s{S_TMP}, v6\nv_lshlrev_b32 v{V_PF1}, 7, v6')
        a(f's_lshl_b32 s{S_TMP+1}, s{S_XCD}, 5\ns_lshl_b32 s{S_TMP+2}, s{S_OCT}, 1\ns_add_u32 s{S_TMP+1}, s{S_TMP+1}, s{S_TMP+2}\ns_add_u32 s{S_TMP+1}, s{S_TMP+1}, 1')
        a(f'v_and_b32 v6, 3, v2\nv_lshlrev_b32 v6, 3, v6\nv_add_u32 v6, s{S_TMP+1}, v6\nv_lshlrev_b32 v{V_PF2}, 7, v6')
        a(f'v_lshlrev_b32 v6, {7 if W2T else 6}, v2\nv_mov_b32 v7, 0x7ff00000\nv_cmp_gt_u32 vcc, {36 if W2T else 18}, v2\ns_nop 1\nv_cndmask_b32 v{V_PFX}, v7, v6, vcc')
        a(f'v_lshlrev_b32 v{V_PF0}, 7, v{V_PF0}')
    X0 = V_H
    for c in range(8):
        if c % 2 == 0 and c:
            a(f's_add_u32 s{S_TMP+4}, s{S_TMP+4}, 4096')
        for q in range(4):
            a(f'buffer_load_ushort v{X0+8*q+c}, v3, s[{R_X}:{R_X+3}], s{S_TMP+4} offen offset:{(c%2)*2048+q*128} {NTX}')
    a(f's_add_u32 s{S_G1}, s{S_G1}, s{S_TMP+5}\ns_addc_u32 s{S_G1+1}, s{S_G1+1}, 0')
    a(f's_add_u32 s{S_B1}, s{S_B1}, s{S_TMP+5}\ns_addc_u32 s{S_B1+1}, s{S_B1+1}, 0')
    GB = 72
    a(f's_load_dwordx4 s[{GB}:{GB+3}], s[{S_G1}:{S_G1+1}], 0\ns_load_dwordx4 s[{GB+4}:{GB+7}], s[{S_B1}:{S_B1+1}], 0')
    EP = V_H + 32
    eps = [int(x) for x in EPS.split(',')]
    def touch():
        if TOUCH:
            a(f's_lshl_b32 s{S_TMP}, s{S_XCD}, 8\ns_add_u32 s{S_TMP}, s{S_TMP}, {ST1L_OFF}')
            a(f'buffer_load_dword v{EP+4}, v{V_L16}, {WSR}, s{S_TMP} offen {SC}')
            a(f's_lshl_b32 s{S_TMP}, s{S_XCD}, 11\ns_add_u32 s{S_TMP}, s{S_TMP}, {ST2L_OFF}')
            a(f'buffer_load_dword v{EP+4}, v{V_L16}, {WSR}, s{S_TMP} offen {SC}')
            a(f'buffer_load_dword v{EP+4}, v{V_L16}, {WSR}, s{S_TMP} offen offset:1024 {SC}')
        if TOUCH & 2:
            a(f'v_lshlrev_b32 v5, 6, v2')
            a(f'buffer_load_dword v{EP+4}, v5, {WSR}, s{S_O1} offen {SC}')
        if TOUCH & 4:
            a(f's_lshl_b32 s{S_TMP}, s{S_LIN}, 7\ns_add_u32 s{S_TMP}, s{S_TMP}, {F0_OFF}\nv_mov_b32 v5, 0')
            a(f'buffer_load_dword v{EP+4}, v5, {WSR}, s{S_TMP} offen {SC}')
    touch()
    setup()
    a(f's_cmp_eq_u32 s{S_WAVE}, 0\ns_cbranch_scc1 L_w0a')
    a('s_waitcnt vmcnt(0)\ns_branch L_stat')
    a.label('L_w0a')
    a('v_mov_b32 v13, 0')
    for i in range(3):
        a(f'v_mov_b32 v{EP+i}, 0')
    for i, sl in enumerate(eps):
        a(f's_sleep {sl}')
        a(f'buffer_load_dword v{EP+i}, v13, s[{R_B}:{R_B+3}], 0 offen {SC}')
    a(f's_waitcnt vmcnt({len(eps)})')
    a.label('L_stat')
    stamp(0)
    for c in range(32):
        a(f'v_lshlrev_b32 v{X0+c}, 16, v{X0+c}')
    a(f'v_pk_add_f32 v[8:9], v[{X0}:{X0+1}], v[{X0+2}:{X0+3}]\nv_pk_mul_f32 v[10:11], v[{X0}:{X0+1}], v[{X0}:{X0+1}]')
    a(f'v_pk_fma_f32 v[10:11], v[{X0+2}:{X0+3}], v[{X0+2}:{X0+3}], v[10:11]')
    for c in range(4, 32, 2):
        a(f'v_pk_add_f32 v[8:9], v[8:9], v[{X0+c}:{X0+c+1}]\nv_pk_fma_f32 v[10:11], v[{X0+c}:{X0+c+1}], v[{X0+c}:{X0+c+1}], v[10:11]')
    a('v_add_f32 v8, v8, v9\nv_add_f32 v9, v10, v11\ns_nop 0')
    red2(a, 8, 9, S_R1, S_R2)
    a(f's_lshl_b32 s{S_TMP}, s{S_WAVE}, 3\ns_add_u32 s{S_TMP}, s{S_TMP}, {MISC}\nv_mov_b32 v10, s{S_TMP}')
    a(f'v_mov_b32 v8, s{S_R1}\nv_mov_b32 v9, s{S_R2}')
    a('ds_write_b64 v10, v[8:9]')
    a(f's_cmp_lg_u32 s{S_WAVE}, 0\ns_cbranch_scc1 L_b1')
    a('s_waitcnt vmcnt(0)')
    a(f'v_or3_b32 v12, v{EP}, v{EP+1}, v{EP+2}')
    get_epoch('L_ep', 12)
    a(f'v_mov_b32 v10, {MISC+32}\nds_write_b32 v10, v12')
    stamp(16)
    if ts: a(f'v_mov_b32 v15, s{S_TMP+1}\nv_accvgpr_write_b32 a{A_TS+19}, v15')
    a.label('L_b1')
    SCLV = V_P0; SHF = V_P0 + 8
    a('s_waitcnt lgkmcnt(0)')
    for c in range(8):
        g = GB + c//2; be = GB + 4 + c//2
        if c % 2 == 0:
            a(f's_lshl_b32 s{S_R1}, s{g}, 16\ns_lshl_b32 s{S_R2}, s{be}, 16')
        else:
            a(f's_and_b32 s{S_R1}, s{g}, 0xffff0000\ns_and_b32 s{S_R2}, s{be}, 0xffff0000')
        a(f'v_mov_b32 v{SCLV+c}, s{S_R1}\nv_mov_b32 v{SHF+c}, s{S_R2}')
    a('s_barrier')
    a(f'v_mov_b32 v12, {MISC}')
    a('ds_read_b128 v[4:7], v12\nds_read_b128 v[8:11], v12 offset:16\nds_read_b32 v13, v12 offset:32')
    a('s_waitcnt lgkmcnt(0)')
    a(f'v_readfirstlane_b32 s{S_E}, v13')
    a('v_pk_add_f32 v[4:5], v[4:5], v[6:7]\nv_pk_add_f32 v[8:9], v[8:9], v[10:11]\nv_pk_add_f32 v[4:5], v[4:5], v[8:9]')
    a('v_mov_b32 v6, v5\nv_mov_b32 v5, v13\nv_mov_b32 v7, v13')
    exchange('L_p1', 4,
             lambda: a(f's_lshl_b32 s{S_TMP+2}, s{S_IDX}, 4\ns_add_u32 s{S_TMP+2}, s{S_TMP+2}, {ST1L_OFF}'),
             lambda: a(f's_lshl_b32 s{S_TMP+3}, s{S_IDX}, 7\ns_add_u32 s{S_TMP+3}, s{S_TMP+3}, {ST1G_OFF}'),
             True, 1, 15,
             lambda: a(f's_lshl_b32 s{S_TMP}, s{S_XCD}, 8\ns_add_u32 s{S_TMP}, s{S_TMP}, {ST1L_OFF}'),
             lambda: a(f's_lshl_b32 s{S_TMP}, s{S_XCD}, 11\ns_add_u32 s{S_TMP}, s{S_TMP}, {ST1G_OFF}'),
             12, 8)
    stamp(1)
    if ts: a(f'v_mov_b32 v15, s{S_TMP+1}\nv_accvgpr_write_b32 a{A_TS+18}, v15')
    a.vq = []; a.lq = []
    mean_rstd(1.0/(4*131072), 8)
    for c in range(0, 8, 2):
        a(f'v_pk_mul_f32 v[{SCLV+c}:{SCLV+c+1}], v[{SCLV+c}:{SCLV+c+1}], v[10:11]')
        a(f'v_pk_fma_f32 v[{SHF+c}:{SHF+c+1}], v[{SCLV+c}:{SCLV+c+1}], v[8:9], v[{SHF+c}:{SHF+c+1}]')
    ZT = V_P0 + 16
    for q in range(4):
        Z = X0 + 8*q
        for c in range(0, 8, 2):
            a(f'v_pk_fma_f32 v[{Z+c}:{Z+c+1}], v[{Z+c}:{Z+c+1}], v[{SCLV+c}:{SCLV+c+1}], v[{SHF+c}:{SHF+c+1}]')
        silu_pk(a, Z, ZT, 8)
        for i in range(4):
            a(f'v_cvt_pk_bf16_f32 v{Z+i}, v{Z+2*i}, v{Z+2*i+1}')
        a.vmem(f'buffer_store_dwordx4 v[{Z}:{Z+3}], v{V_L16}, {WSR}, s{S_O1} offen offset:{1024*q} {SC}', tag='st')
    a('s_branch L_join')

    a.label('L_warm')
    wdone.clear(); m0cur[0] = None; a.vq = []; a.lq = []
    EW = V_WF
    EA = V_WF + 16
    ET = V_WF + 24
    a(f's_lshr_b32 s{S_TMP+8}, s{S_WITHIN}, 1\ns_and_b32 s{S_TMP+9}, s{S_TMP+8}, 3\ns_lshr_b32 s{S_TMP+10}, s{S_TMP+8}, 2')
    if TLB:
        a(f'v_and_b32 v5, 3, v2\nv_lshlrev_b32 v6, 21, v5\nv_and_b32 v5, 1, v5\nv_mul_u32_u24 v5, 0x1f0000, v5\nv_add_u32 v5, v5, v6')
        a(f'buffer_load_dword v{V_H+4}, v5, {WSR}, 0 offen {SC}')
        a('v_mov_b32 v5, 0')
        for ptr, sz in ((S_OUT, 2097152),):
            srd(a, R_A, ptr, ptr+1, sz)
            a(f'buffer_load_dword v{V_H+4}, v5, s[{R_A}:{R_A+3}], 0 offen {SC}')
    if FT:
        a(f's_and_b32 s{S_TMP}, s{S_LIN}, 0xfe\ns_lshl_b32 s{S_TMP}, s{S_TMP}, 7\ns_add_u32 s{S_TMP}, s{S_TMP}, {F0_OFF}')
        a(f'v_and_b32 v5, 1, v2\nv_lshlrev_b32 v5, 7, v5\nv_bfe_u32 v6, v2, 1, 1\nv_mul_u32_u24 v6, {F1_OFF-F0_OFF}, v6\nv_add_u32 v5, v5, v6')
        a(f'buffer_load_dword v{V_H+4}, v5, {WSR}, s{S_TMP} offen {SC}')
    if CPF:
        a(f's_getpc_b64 s[{R_A}:{R_A+1}]')
        a(f's_and_b32 s{R_A+1}, s{R_A+1}, 0xffff\ns_mov_b32 s{R_A+2}, {CPF}\ns_mov_b32 s{R_A+3}, 0x20000')
        a(f's_lshl_b32 s{S_TMP}, s{S_TMP+8}, 2\ns_add_u32 s{S_TMP}, s{S_TMP}, s{S_WAVE}\ns_lshl_b32 s{S_TMP}, s{S_TMP}, 10')
        a(f'buffer_load_dwordx4 v[{V_H}:{V_H+3}], v{V_L16}, s[{R_A}:{R_A+3}], s{S_TMP} offen')
    srd(a, R_A, S_WE, S_WE+1, 786432)
    a('v_lshrrev_b32 v6, 2, v0\nv_and_b32 v5, 3, v0')
    a('v_lshlrev_b32 v7, 10, v6\nv_lshl_add_u32 v7, v5, 4, v7')
    a(f's_mul_i32 s{S_TMP}, s{S_TMP+10}, {192*1024}\ns_lshl_b32 s{S_TMP+1}, s{S_G}, 8\ns_add_u32 s{S_TMP}, s{S_TMP}, s{S_TMP+1}')
    a(f's_lshl_b32 s{S_TMP+1}, s{S_TMP+9}, 6\ns_add_u32 s{S_TMP}, s{S_TMP}, s{S_TMP+1}')
    for i in range(3):
        if i: a(f's_add_u32 s{S_TMP}, s{S_TMP}, 65536')
        a(f'buffer_load_dwordx4 v[{EW+4*i}:{EW+4*i+3}], v7, s[{R_A}:{R_A+3}], s{S_TMP} offen')
    srd(a, R_A, S_T, S_T+1, 3072)
    a(f'v_lshlrev_b32 v7, 1, v6\ns_mul_i32 s{S_TMP}, s{S_BB}, 1536\ns_mul_i32 s{S_TMP+1}, s{S_TMP+10}, 384\ns_add_u32 s{S_TMP}, s{S_TMP}, s{S_TMP+1}')
    for i in range(3):
        a(f'buffer_load_ushort v{EW+12+i}, v7, s[{R_A}:{R_A+3}], s{S_TMP} offen offset:{128*i}')
    a(f'v_mov_b32 v{EW+15}, 0')
    if WDLY: a(f's_sleep {WDLY}')
    nbulk = 0
    DUM = V_H
    for bit, ptr in ((1, S_W1), (2, S_W2)):
        if WARM & bit:
            srd(a, R_A, ptr, ptr+1, 4718592)
            if DUP & bit:
                a(f's_lshl_b32 s{S_TMP}, s{S_G}, 6\ns_lshl_b32 s{S_TMP+1}, s{S_TMP+8}, 2\ns_add_u32 s{S_TMP}, s{S_TMP}, s{S_TMP+1}\ns_add_u32 s{S_TMP}, s{S_TMP}, s{S_WAVE}\ns_mul_i32 s{S_TMP}, s{S_TMP}, 18432')
                nl = 18
            else:
                a(f's_lshl_b32 s{S_TMP}, s{S_G}, 7\ns_lshl_b32 s{S_TMP+1}, s{S_TMP+8}, 2\ns_add_u32 s{S_TMP}, s{S_TMP}, s{S_TMP+1}\ns_add_u32 s{S_TMP}, s{S_TMP}, s{S_WAVE}')
                a(f's_lshl_b32 s{S_TMP+1}, s{S_BB}, 6\ns_add_u32 s{S_TMP}, s{S_TMP}, s{S_TMP+1}\ns_mul_i32 s{S_TMP}, s{S_TMP}, 9216')
                nl = 9
            if T128:
                nlines = nl*8
                a('v_lshlrev_b32 v8, 7, v2')
                a(f'v_mov_b32 v9, 0x7ff00000\nv_cmp_gt_u32 vcc, {nlines % 64}, v2\ns_nop 1\nv_cndmask_b32 v9, v9, v8, vcc')
                for i in range((nlines + 63)//64):
                    if i: a(f's_add_u32 s{S_TMP}, s{S_TMP}, 8192')
                    vr = 8 if (i+1)*64 <= nlines else 9
                    a(f'buffer_load_dword v{DUM}, v{vr}, s[{R_A}:{R_A+3}], s{S_TMP} offen {NT1 if bit == 1 else NT2}')
                    nbulk += 1
            else:
                for i in range(nl):
                    if i % 4 == 0 and i: a(f's_add_u32 s{S_TMP}, s{S_TMP}, 4096')
                    a(f'buffer_load_dwordx4 v[{DUM}:{DUM+3}], v{V_L16}, s[{R_A}:{R_A+3}], s{S_TMP} offen offset:{(i%4)*1024} {NT1 if bit == 1 else NT2}')
                    nbulk += 1
    setup()
    a(f's_waitcnt vmcnt({nbulk+4})')
    stamp(20 if ECHO else 0)
    for i in range(3):
        a(f'v_lshlrev_b32 v{EW+12+i}, 16, v{EW+12+i}')
    silu_pk(a, EW+12, ET, 4)
    for i in range(3):
        for d in range(4):
            op = 'v_mul_f32' if i == 0 else 'v_fmac_f32'
            a(f'v_lshlrev_b32 v4, 16, v{EW+4*i+d}\nv_and_b32 v5, 0xffff0000, v{EW+4*i+d}')
            a(f'{op} v{EA+2*d}, v4, v{EW+12+i}\n{op} v{EA+2*d+1}, v5, v{EW+12+i}')
    for mod in ('row_ror:4 row_mask:0xf', 'row_ror:8 row_mask:0xf'):
        a('s_nop 1')
        for e in range(8):
            a(f'v_add_f32_dpp v{EA+e}, v{EA+e}, v{EA+e} {mod} bank_mask:0xf')
    for sw in ('v_permlane16_swap_b32', 'v_permlane32_swap_b32'):
        for e in range(8):
            a(f'v_mov_b32 v{ET+e}, v{EA+e}')
        a('s_nop 1')
        for e in range(8):
            a(f'{sw} v{EA+e}, v{ET+e}')
        a('s_nop 1')
        for e in range(8):
            a(f'v_add_f32 v{EA+e}, v{EA+e}, v{ET+e}')
    a(f's_lshl_b32 s{S_TMP}, s{S_XCD}, 2\ns_add_u32 s{S_TMP}, s{S_TMP}, s{S_TMP+9}\ns_lshl_b32 s{S_TMP}, s{S_TMP}, 2\ns_add_u32 s{S_TMP}, s{S_TMP}, s{S_TMP+10}')
    a(f's_lshl_b32 s{S_TMP}, s{S_TMP}, 2\ns_add_u32 s{S_TMP}, s{S_TMP}, s{S_WAVE}\ns_lshl_b32 s{S_TMP}, s{S_TMP}, 7\ns_add_u32 s{S_TMP}, s{S_TMP}, {EMBP_OFF}')
    a('v_lshlrev_b32 v4, 5, v2')
    a(f'v_cmp_gt_u32 vcc, 4, v2\ns_and_saveexec_b64 s[{S_SAVE}:{S_SAVE+1}], vcc')
    a(f'buffer_store_dwordx4 v[{EA}:{EA+3}], v4, {WSR}, s{S_TMP} offen {SC}')
    a(f'buffer_store_dwordx4 v[{EA+4}:{EA+7}], v4, {WSR}, s{S_TMP} offen offset:16 {SC}')
    a(f's_mov_b64 exec, s[{S_SAVE}:{S_SAVE+1}]')
    a('v_mov_b32 v12, 0')
    get_epoch('L_ep2', 12)
    stamp(21 if ECHO else 1)
    a.label('L_join')
    a.vq = ['st']; a.lq = []
    stamps[0] = 2
    m0cur[0] = None
    a('v_and_b32 v3, 15, v2\nv_lshrrev_b32 v4, 4, v2')
    if E('FINE'): stamp(19)
    if PREF >= 1: w_dma_all(0)
    if PREF >= 2: w_dma_all(1)
    if E('FINE'): stamp(17)
    a.need(vtags=['st'])
    if E('FINE'): stamp(18)
    a('s_barrier')
    def flag_store(off):
        a(f's_cmp_lg_u32 s{S_WAVE}, 0\ns_cbranch_scc1 L_nf{off:x}')
        a(f's_lshl_b32 s{S_TMP}, s{S_LIN}, 7\ns_add_u32 s{S_TMP}, s{S_TMP}, {off}')
        if FULL:
            a(f'v_mov_b32 v8, s{S_E}\nv_mov_b32 v9, s{S_E}\nv_mov_b32 v10, s{S_E}\nv_mov_b32 v11, s{S_E}')
            a(f'v_cmp_gt_u32 vcc, 8, v2\ns_and_saveexec_b64 s[{S_SAVE}:{S_SAVE+1}], vcc')
            a(f'buffer_store_dwordx4 v[8:11], v{V_L16}, {WSR}, s{S_TMP} offen {SC}')
        else:
            a(f'v_mov_b32 v5, s{S_E}\nv_lshlrev_b32 v6, 15, v2')
            a(f'v_cmp_gt_u32 vcc, {4 if REP else 1}, v2\ns_and_saveexec_b64 s[{S_SAVE}:{S_SAVE+1}], vcc')
            a(f'buffer_store_dword v5, v6, {WSR}, s{S_TMP} offen {SC}')
        a(f's_mov_b64 exec, s[{S_SAVE}:{S_SAVE+1}]')
        a.label(f'L_nf{off:x}')
    def flag_poll(off, vaddr, name, mid=None):
        a(f's_mov_b32 s{S_TMP+1}, 0\ns_mov_b32 s{S_TMP}, {off}')
        if REP: a(f's_lshl_b32 s{S_TMP+2}, s{S_G}, 15\ns_add_u32 s{S_TMP}, s{S_TMP}, s{S_TMP+2}')
        if mid:
            t = a.vmem(f'buffer_load_dword v5, v{vaddr}, {WSR}, s{S_TMP} offen {SC}')
            mid()
            a.need(vtags=[t])
            keep = list(a.vq)
            a(f'v_cmp_eq_u32 vcc, s{S_E}, v5\ns_nop 0\ns_cmp_eq_u64 vcc, exec\ns_cbranch_scc1 {name}ok')
        a.label(name)
        a(f'buffer_load_dword v5, v{vaddr}, {WSR}, s{S_TMP} offen {SC}')
        a('s_waitcnt vmcnt(0)')
        a(f'v_cmp_eq_u32 vcc, s{S_E}, v5')
        a(f's_add_u32 s{S_TMP+1}, s{S_TMP+1}, 1')
        a(f's_cmp_eq_u64 vcc, exec\ns_cbranch_scc1 {name}ok')
        if PSL: a(f's_sleep {PSL}')
        a(f's_cmp_lt_u32 s{S_TMP+1}, 0x40000\ns_cbranch_scc1 {name}')
        a.label(name + 'ok')
        a.vq = keep if mid else []
    flag_store(F0_OFF)
    stamp()

    if ORD == 0:
        if PREF < 1: w_dma_all(0)
        if PREF < 2: w_dma_all(1)
        w_rawperm(0)
        w_dma_all(2)
    else:
        if PREF < 1: w_dma_all(0)
        if PREF < 2 and ORD == 2: w_dma_all(1)
        w_rawperm(0)
        if PREF < 2 and ORD == 1: w_dma_all(1)
    if DLY0: a(f's_sleep {DLY0}')
    flag_poll(F0_OFF, V_PF0, 'L_p2', (lambda: w_dma_all(2)) if ORD else None)
    stamp()

    H = V_H; PL = V_H + 16
    def conv(ci):
        which = ci + 1
        PACE = float(E('PACE%d' % which, '5.0' if which == 1 else '5.5'))
        ex = []
        for u in range(3):
            dma_a_pre(ci, u, 0)
            for kq in range(4): dma_a(ci, u, kq)
        if ci == 0: w_rawperm(1)
        for r in range(3):
            for half in range(2):
                for dx in range(3):
                    rd_af(ci, 0, r, half, dx)
        items = []
        def put(gs, fn): items.append((gs, len(items), fn))
        row_slot = {}
        for s_ in range(4):
            for r in range(6):
                if r < 3:
                    if s_ == 0: row_slot[(s_, r)] = None; continue
                    base = 72*(2*s_-1) + 18*(r+1)
                else:
                    base = 72*(2*s_) + 18*(r-3) + (4 if r > 3 else 0)
                row_slot[(s_, r)] = base
                i = 0
                for half in range(2):
                    for dx in range(3):
                        put(base + 1 + (3*i)//2, (lambda ss=s_, r=r, half=half, dx=dx: rd_af(ci, ss, r, half, dx))); i += 1
        RAWS = 52
        raw_slot = {}
        for k_ in range(8):
            kk_ = ci*8 + k_
            p_ = kk_ + 1
            if LATEW and ci == 0 and k_ == 7: continue
            if p_ < 16 and p_ not in permdone and k_ >= 1:
                for i in range(36):
                    put(72*k_ + 1 + (i*4)//3, (lambda x=p_, i=i: perm(x, i)))
            r_ = kk_ + 2
            if W2T and ci == 0 and r_ >= 8: continue
            if r_ < 16 and r_ not in rawdone:
                rs = 72*k_ + (RAWS if k_ >= 1 else 30)
                raw_slot[r_] = rs
                for j in range(9):
                    put(rs + 2*j, (lambda x=r_, j=j: rd_raw(x, j)))
        ops = []
        for kk_ in range(ci*8, 16):
            if kk_ in wdone: continue
            if (kk_-2) in rawdone: ea = 0
            elif (kk_-2) in raw_slot: ea = raw_slot[kk_-2] + 22
            else: continue
            if ea > 560: continue
            dl = raw_slot.get(kk_, 72*8 + 40*(kk_ - ci*8))
            for n in wsegs(kk_):
                ops.append((dl, ea, (lambda x=kk_, n=n: dma_w_pre(x, n)), (lambda x=kk_, n=n: dma_w(x, n)), kk_))
        for u in range(3, 12):
            s_, j = divmod(u, 3)
            dl = row_slot[(s_, 2*j)] or 0
            ea = 0
            if u >= NA:
                ps, pj = divmod(u - NA, 3)
                ea = (row_slot[(ps, 2*pj+1)] or 0) + 14
            for kq in range(4):
                def pre(u=u, kq=kq):
                    if u >= NA:
                        ps, pj = divmod(u - NA, 3)
                        assert (ci, ps, 2*pj+1, 1, 2) in issued
                        a.need(ltags=[('F', ps, 2*pj+1, 1, 2)])
                    dma_a_pre(ci, u, kq)
                ops.append((dl, ea, pre, (lambda u=u, kq=kq: dma_a(ci, u, kq)), None))
        if W2T and ci == 0:
            def tp(i):
                if i == 0:
                    srd(a, R_B, S_W2, S_W2+1, 4718592)
                    if W2T == 1:
                        a(f's_lshl_b32 s{S_TMP+10}, s{S_BB}, 5\ns_add_u32 s{S_TMP+10}, s{S_TMP+10}, s{S_WITHIN}\ns_lshl_b32 s{S_TMP+10}, s{S_TMP+10}, 2\ns_add_u32 s{S_TMP+10}, s{S_TMP+10}, s{S_WAVE}')
                        a(f's_lshl_b32 s{S_TMP+11}, s{S_G}, 8\ns_add_u32 s{S_TMP+10}, s{S_TMP+10}, s{S_TMP+11}\ns_mul_i32 s{S_TMP+10}, s{S_TMP+10}, 4608')
                    else:
                        a(f's_lshl_b32 s{S_TMP+10}, s{S_WITHIN}, 2\ns_add_u32 s{S_TMP+10}, s{S_TMP+10}, s{S_WAVE}')
                        a(f's_lshl_b32 s{S_TMP+11}, s{S_G}, 7\ns_add_u32 s{S_TMP+10}, s{S_TMP+10}, s{S_TMP+11}\ns_mul_i32 s{S_TMP+10}, s{S_TMP+10}, 9216')
                else:
                    a(f's_add_u32 s{S_TMP+10}, s{S_TMP+10}, 4608')
            lastea = max(o[1] for o in ops if (o[4] is None or o[4] < 8))
            for i in range(W2T):
                ops.append((560, lastea + 1, (lambda i=i: tp(i)), (lambda: a.vmem(f'buffer_load_dword v{V_P0}, v{V_PFX}, s[{R_B}:{R_B+3}], s{S_TMP+10} offen')), -1))
            ops = [(o if (o[4] is None or o[4] < 8) else (o[0], max(o[1], lastea + 2)) + o[2:]) for o in ops]
        ops.sort(key=lambda o: o[0] - (WPRI if o[4] is not None else 0))
        cur = 4.0
        rem = list(ops)
        placed = []
        while rem:
            cand = [o for o in rem if o[1] <= cur]
            if not cand:
                cur = float(min(o[1] for o in rem)); continue
            o = cand[0]; rem.remove(o)
            placed.append((int(cur), o)); cur += PACE
        bad = set(o[4] for sl, o in placed if sl > 572)
        assert None not in bad
        for sl, o in placed:
            if o[4] in bad: continue
            if o[0] < 576 and sl > o[0] - 30: sys.stderr.write(f'warn conv{which}: op at {sl} deadline {o[0]}\n')
            put(sl-1, o[2]); put(sl, o[3])
        base = 72
        SCv = V_P0 + 4; SHv = V_P0 + 12
        if which == 1:
            ef = []
            put(72 + 2, lambda: a(f's_mov_b32 s{S_TMP+1}, {F0_OFF}'))
            put(72 + 4, lambda: ef.append(a.vmem(f'buffer_load_dword v{V_EX+16}, v{V_PF2}, {WSR}, s{S_TMP+1} offen {SC}')))
            def chk():
                a.need(vtags=ef)
                a(f'v_cmp_eq_u32 vcc, s{S_E}, v{V_EX+16}\ns_nop 0\ns_cmp_eq_u64 vcc, exec\ns_cbranch_scc0 L_embslow')
                a.label('L_embok')
            put(144 + 20, chk)
            for i, sl in enumerate([int(x) for x in TRK.split(',')] if TRK else []):
                h_, p_ = divmod(i, 2)
                def t0(i=i):
                    if i == 0:
                        srd(a, R_B, S_W2, S_W2+1, 4718592)
                def t1(i=i):
                    if i == 0:
                        a(f's_lshl_b32 s{S_TMP+10}, s{S_BB}, 5\ns_add_u32 s{S_TMP+10}, s{S_TMP+10}, s{S_WITHIN}\ns_lshl_b32 s{S_TMP+10}, s{S_TMP+10}, 2\ns_add_u32 s{S_TMP+10}, s{S_TMP+10}, s{S_WAVE}')
                        a(f's_lshl_b32 s{S_TMP+11}, s{S_G}, 8\ns_add_u32 s{S_TMP+10}, s{S_TMP+10}, s{S_TMP+11}\ns_mul_i32 s{S_TMP+10}, s{S_TMP+10}, 4608')
                def t2(h_=h_, p_=p_):
                    a.vmem(f'buffer_load_dword v{V_P0}, v{V_PFX}, s[{R_B}:{R_B+3}], s{S_TMP+10} offen offset:{p_*2304 + h_*1152}')
                put(sl-4, t0); put(sl-2, t1); put(sl, t2)
            seq = [lambda: a(f's_lshl_b32 s{S_TMP}, s{S_XCD}, 2\ns_add_u32 s{S_TMP}, s{S_TMP}, s{S_OCT}'),
                   lambda: a(f's_lshl_b32 s{S_TMP}, s{S_TMP}, 11\ns_add_u32 s{S_TMP}, s{S_TMP}, {EMBP_OFF}'),
                   lambda: a('v_lshlrev_b32 v5, 7, v3\nv_lshl_add_u32 v5, v4, 4, v5')]
            for o2 in range(2):
                seq.append(lambda o2=o2: ex.append(a.vmem(f'buffer_load_dwordx4 v[{V_EX+4*o2}:{V_EX+4*o2+3}], v5, {WSR}, s{S_TMP} offen offset:{64*o2} {SC}')))
            seq += [lambda: a('v_lshrrev_b32 v5, 1, v4\nv_lshlrev_b32 v5, 14, v5'), lambda: a('v_lshl_add_u32 v5, v3, 4, v5\nv_and_b32 v6, 1, v4'),
                    lambda: a(f'v_lshl_add_u32 v{V_EX+16}, v6, 8, v5\ns_lshl_b32 s{S_TMP}, s{S_BB}, 20'),
                    lambda: a(f's_lshl_b32 s{S_TMP+1}, s{S_OC0}, 11\ns_add_u32 s{S_TMP}, s{S_TMP}, s{S_TMP+1}'),
                    lambda: a(f's_add_u32 s{S_TMP+1}, s{S_Y0}, s{S_WAVE}\ns_lshl_b32 s{S_TMP+1}, s{S_TMP+1}, 9'),
                    lambda: a(f's_add_u32 s{S_O1}, s{S_TMP}, s{S_TMP+1}\ns_add_u32 s{S_O1}, s{S_O1}, {A2_OFF}'),
                    lambda: a(f's_add_u32 s{S_O2}, s{S_O1}, 32768')]
            for i, fn in enumerate(seq): put(144 + 24 + 3*i, fn)
            seq = [lambda: a.need(vtags=ex)]
            for mod in ('quad_perm:[1,0,3,2]', 'quad_perm:[2,3,0,1]', 'row_half_mirror', 'row_mirror'):
                for i in range(8):
                    seq.append(lambda mod=mod, i=i: a(f'v_add_f32_dpp v{V_EX+i}, v{V_EX+i}, v{V_EX+i} {mod} row_mask:0xf bank_mask:0xf'))
            for o2 in range(2):
                for i in range(4):
                    g = V_EX+8+2*o2+i//2; be = V_EX+12+2*o2+i//2; e = o2*4+i
                    if i % 2 == 0:
                        seq.append(lambda g=g, e=e: a(f'v_lshlrev_b32 v{SCv+e}, 16, v{g}')); seq.append(lambda be=be, e=e: a(f'v_lshlrev_b32 v{SHv+e}, 16, v{be}'))
                    else:
                        seq.append(lambda g=g, e=e: a(f'v_and_b32 v{SCv+e}, 0xffff0000, v{g}')); seq.append(lambda be=be, e=e: a(f'v_and_b32 v{SHv+e}, 0xffff0000, v{be}'))
            for i, fn in enumerate(seq): put(72*4 + 10 + 2*i, fn)
        else:
            seq = [lambda: a(f's_mov_b32 s{R_A}, s{S_OUT}\ns_and_b32 s{R_A+1}, s{S_OUT+1}, 0xffff'), lambda: a(f's_mov_b32 s{R_A+2}, 2097152\ns_mov_b32 s{R_A+3}, 0x20000'),
                   lambda: a(f'v_lshlrev_b32 v{V_EX+16}, 11, v3\nv_lshl_add_u32 v{V_EX+16}, v4, 3, v{V_EX+16}'),
                   lambda: a(f's_lshl_b32 s{S_TMP}, s{S_BB}, 20\ns_lshl_b32 s{S_TMP+1}, s{S_OC0}, 11'),
                   lambda: a(f's_add_u32 s{S_TMP}, s{S_TMP}, s{S_TMP+1}\ns_add_u32 s{S_TMP+1}, s{S_Y0}, s{S_WAVE}'),
                   lambda: a(f's_lshl_b32 s{S_TMP+1}, s{S_TMP+1}, 6\ns_add_u32 s{S_O1}, s{S_TMP}, s{S_TMP+1}'),
                   lambda: a(f's_add_u32 s{S_O2}, s{S_O1}, 32768')]
            for o2 in range(2):
                for half in range(2):
                    r = V_EX + (o2*2+half)*2
                    seq.append(lambda r=r, o2=o2, half=half: ex.append(a.vmem(f'buffer_load_dwordx2 v[{r}:{r+1}], v{V_EX+16}, s[{R_X}:{R_X+3}], s{S_O1 if o2 == 0 else S_O2} offen offset:{half*32}')))
            for i, fn in enumerate(seq): put(6 + 3*i, fn)
            seq = [lambda: a.need(vtags=ex)]
            for q in range(8):
                seq.append(lambda q=q: a(f'v_lshlrev_b32 v{V_P0+2*q}, 16, v{V_EX+q}')); seq.append(lambda q=q: a(f'v_and_b32 v{V_P0+2*q+1}, 0xffff0000, v{V_EX+q}'))
            for i, fn in enumerate(seq): put(72*3 + 3*i, fn)
        def poff(o2, ro, half): return (8192 if o2 == 0 else 0) + (ro*2+half)*1024
        def pw(o2, ro, half):
            c = acc(o2, ro, half)
            a.lds(f'ds_write_b128 v{V_PW}, a[{c}:{c+3}] offset:{poff(o2, ro, half)}', tag=('PW', o2))
        def prd(o2, v, half, dst):
            b_ = V_T if v < 2 else V_T+1
            a.lds(f'ds_read_b128 v[{dst}:{dst+3}], v{b_} offset:{(v%2)*WAVE_LDS + poff(o2, 0, half)}', tag=('P', o2, v, half))
        def red_reads(o2):
            outs = []
            for half in range(2):
                for v in range(4):
                    dst = (H + (o2*2+half)*4) if v == 0 else (PL + (half*3 + v-1)*4)
                    outs.append(lambda v=v, half=half, dst=dst: prd(o2, v, half, dst))
            return outs
        SQ = V_T + 8
        def red_adds(o2, pk):
            outs = []
            for half in range(2):
                h = H + (o2*2+half)*4
                extra = (V_EX + 4*o2) if which == 1 else (V_P0 + (o2*2+half)*4)
                for v in range(1, 5):
                    for i in range(0, 4, 2 if pk else 1):
                        def f(half=half, v=v, i=i, h=h, extra=extra):
                            a.need(ltags=[('P', o2, 3, half)])
                            src = (PL + (half*3+v-1)*4 + i) if v < 4 else extra + i
                            if pk: a(f'v_pk_add_f32 v[{h+i}:{h+i+1}], v[{h+i}:{h+i+1}], v[{src}:{src+1}]')
                            else: a(f'v_add_f32 v{h+i}, v{h+i}, v{src}')
                        outs.append(f)
                if which == 1:
                    if pk:
                        for i in range(0, 4, 2):
                            outs.append(lambda h=h, i=i: a(f'v_pk_fma_f32 v[{SQ+2}:{SQ+3}], v[{h+i}:{h+i+1}], v[{h+i}:{h+i+1}], v[{SQ+2}:{SQ+3}]'))
                            outs.append(lambda h=h, i=i: a(f'v_pk_add_f32 v[{SQ}:{SQ+1}], v[{SQ}:{SQ+1}], v[{h+i}:{h+i+1}]'))
                    else:
                        for i in range(4):
                            outs.append(lambda h=h, i=i: a(f'v_fmac_f32 v{SQ+2+i%2}, v{h+i}, v{h+i}'))
                            outs.append(lambda h=h, i=i: a(f'v_add_f32 v{SQ+i%2}, v{SQ+i%2}, v{h+i}'))
                else:
                    o = V_EX + (o2*2+half)*2
                    outs.append(lambda h=h, o=o: a(f'v_cvt_pk_bf16_f32 v{o}, v{h}, v{h+1}\nv_cvt_pk_bf16_f32 v{o+1}, v{h+2}, v{h+3}'))
                    outs.append(lambda o=o, half=half: a.vmem(f'buffer_store_dwordx2 v[{o}:{o+1}], v{V_EX+16}, s[{R_A}:{R_A+3}], s{S_O1 if o2 == 0 else S_O2} offen offset:{half*32} {OUTF}'))
            return outs
        b6 = 72*6; b7 = 72*7
        put(b6, lambda: a(f's_lshl_b32 s{S_TMP}, s{S_WAVE}, 11\ns_add_u32 s{S_TMP}, s{S_TMP}, {A_BASE}'))
        put(b6 + 2, lambda: a(f'v_add_u32 v{V_T}, s{S_TMP}, v{V_L16}\nv_add_u32 v{V_T+1}, {2*WAVE_LDS}, v{V_T}'))
        if which == 1:
            put(b6 + 4, lambda: a(f'v_mov_b32 v{SQ}, 0\nv_mov_b32 v{SQ+1}, 0'))
            put(b6 + 6, lambda: a(f'v_mov_b32 v{SQ+2}, 0\nv_mov_b32 v{SQ+3}, 0'))
        for o2 in range(2):
            for ro in range(4):
                for half in range(2):
                    sl = 72*(6+o2) + 18*ro + 9*half + 8 + 9
                    if sl <= 575 and not (o2 == 1 and ro == 3):
                        put(sl, (lambda o2=o2, ro=ro, half=half: pw(o2, ro, half)))
        def fbar():
            a.need(ltags=[('PW', 0)]); a('s_barrier')
        put(b7 + 14, fbar)
        for i, fn in enumerate(red_reads(0)): put(b7 + 15 + i, fn)
        for i, fn in enumerate(red_adds(0, False)): put(b7 + 26 + (i*7)//8, fn)
        items.sort(key=lambda x: (x[0], x[1]))
        qi = 0
        gs = 0
        for k in range(8):
            if k in (0, 1): stamp()
            if E('PSTAMP') and ci == int(E('PSTAMP'))-1: stamp(232 - A_TS + k)
            s, ob = divmod(k, 2)
            kk = ci*8 + k
            assert kk in permdone
            for ro in range(4):
                for half in range(2):
                    for dy in range(3):
                        for dx in range(3):
                            nb = len(a.L)
                            if dx == 0:
                                while not all((ci, s, ro+dy, half, d2) in issued for d2 in range(3)):
                                    items[qi][2](); qi += 1
                                a.need(ltags=[('F', s, ro+dy, half, d2) for d2 in range(3)])
                            PREW[(ci, gs)] = len(a.L) - nb
                            c = acc(ob, ro, half); w_ = wf(kk, dy*3+dx); f_ = af(ro+dy, half, dx)
                            srcc = '0' if (s == 0 and dy == 0 and dx == 0) else f'a[{c}:{c+3}]'
                            if which == 1:
                                a(f'v_mfma_f32_16x16x32_bf16 a[{c}:{c+3}], v[{w_}:{w_+3}], a[{f_}:{f_+3}], {srcc}')
                            else:
                                a(f'v_mfma_f32_16x16x32_bf16 a[{c}:{c+3}], a[{f_}:{f_+3}], v[{w_}:{w_+3}], {srcc}')
                            used = OLDPREW.get((ci, gs+1), 0)
                            last = (gs == 575) or (gs % 72 == 71 and (kk+1) not in permdone and k < 7)
                            while qi < len(items) and items[qi][0] <= gs:
                                key = (ci, items[qi][1])
                                wexp = OLDW.get(key, 1)
                                if not last and used > 0 and used + wexp > CAP: break
                                if not last and used >= CAP and wexp > 0: break
                                n1 = len(a.L)
                                items[qi][2](); qi += 1
                                wact = sum(wgt(x) for x in a.L[n1:])
                                NEWW[key] = wact
                                used += wact
                            gs += 1
            if k < 7 and not a.L[-1].startswith('v_mfma') and (a.L[-1].startswith('v_bfi') or a.L[-1].startswith('v_alignbit') or a.L[-2].startswith('v_bfi') or a.L[-2].startswith('v_alignbit')): a('s_nop 1')
        assert qi == len(items), (qi, len(items))
        if E('PSTAMP') and ci == int(E('PSTAMP'))-1: stamp(240 - A_TS)
        pw(1, 3, 0)
        a('s_nop 7')
        pw(1, 3, 1)
        a.need(ltags=[('PW', 1)]); a('s_barrier')
        for fn in red_reads(1): fn()
        for fn in red_adds(1, True): fn()
        stamp()
        if which == 1:
            G = V_T + 4
            a(f'v_add_f32 v{SQ}, v{SQ}, v{SQ+1}\nv_add_f32 v{SQ+1}, v{SQ+2}, v{SQ+3}\ns_nop 0')
            red2(a, SQ, SQ+1, S_R1, S_R2)
            a(f'v_mov_b32 v{G+1}, s{S_E}\nv_mov_b32 v{G+3}, s{S_E}\nv_mov_b32 v{G}, s{S_R1}\nv_mov_b32 v{G+2}, s{S_R2}')
            a(f's_lshl_b32 s{S_TMP+6}, s{S_LIN}, 2\ns_add_u32 s{S_TMP+6}, s{S_TMP+6}, s{S_WAVE}')
            def mid3():
                a.vq.append(('pub',))
                if 9 in rawdone and 9 not in permdone:
                    for i in range(36): perm(9, i)
            exchange('L_p3', G,
                     lambda: a(f's_lshl_b32 s{S_TMP+2}, s{S_TMP+6}, 4\ns_add_u32 s{S_TMP+2}, s{S_TMP+2}, {ST2L_OFF}'),
                     lambda: a(f's_lshl_b32 s{S_TMP+3}, s{S_TMP+6}, 7\ns_add_u32 s{S_TMP+3}, s{S_TMP+3}, {ST2G_OFF}'),
                     False, 2, 63,
                     lambda: a(f's_lshl_b32 s{S_TMP}, s{S_XCD}, 11\ns_add_u32 s{S_TMP}, s{S_TMP}, {ST2L_OFF}'),
                     lambda: a(f's_lshl_b32 s{S_TMP}, s{S_XCD}, 14\ns_add_u32 s{S_TMP}, s{S_TMP}, {ST2G_OFF}'),
                     V_T+8, PL, mid3)
            a.vq = []
            stamp()
            M = V_T + 8
            mean_rstd(1.0/131072, M)
            for e in range(0, 8, 2):
                a(f'v_pk_mul_f32 v[{SCv+e}:{SCv+e+1}], v[{SCv+e}:{SCv+e+1}], v[{M+2}:{M+3}]')
                a(f'v_pk_fma_f32 v[{SHv+e}:{SHv+e+1}], v[{SCv+e}:{SCv+e+1}], v[{M}:{M+1}], v[{SHv+e}:{SHv+e+1}]')
            for o2 in range(2):
                Z = H + o2*8
                for half in range(2):
                    for i in range(0, 4, 2):
                        r = Z + half*4 + i
                        a(f'v_pk_fma_f32 v[{r}:{r+1}], v[{r}:{r+1}], v[{SCv+o2*4+i}:{SCv+o2*4+i+1}], v[{SHv+o2*4+i}:{SHv+o2*4+i+1}]')
                silu_pk(a, Z, PL, 8)
                r = PL + 8 + o2*4
                for q in range(4):
                    a(f'v_cvt_pk_bf16_f32 v{r+q}, v{Z+2*q}, v{Z+2*q+1}')
                a('s_nop 1')
                a(f'v_permlane16_swap_b32 v{r}, v{r+2}\nv_permlane16_swap_b32 v{r+1}, v{r+3}')
                a(f'buffer_store_dwordx4 v[{r}:{r+3}], v{V_EX+16}, {WSR}, s{S_O1 if o2 == 0 else S_O2} offen {SC}')
            a.vq = []
            if 8 not in rawdone: w_rawperm(8)
            if 8 not in permdone:
                for i in range(36): perm(8, i)
            if 9 not in rawdone: w_rawperm(9)
            if BND and 10 in wdone and 10 not in rawdone:
                w_rawperm(10, False)
            a('s_waitcnt vmcnt(0)\ns_barrier')
            a.vq = []
            flag_store(F1_OFF)
            a.vq = [('flag',)]
            stamp()
            todo = [kk_ for kk_ in (10, 11, 12) if kk_ not in wdone and (kk_-2) in rawdone and (BND or kk_ < 12)]
            if NOWIN: todo = todo[:max(0, len(todo)-NOWIN)]
            for kk_ in (todo[:-1] if ORDB else todo): w_dma_all(kk_)
            if DLY1: a(f's_sleep {DLY1}')
            flag_poll(F1_OFF, V_PF1, 'L_p4', (lambda: w_dma_all(todo[-1])) if ORDB else None)
            stamp()
    conv(0)
    conv(1)
    if ECHO:
        a('s_waitcnt vmcnt(0)')
        stamp()
        a('s_sub_u32 s94, s94, s100')
        a('s_memrealtime s[100:101]\ns_waitcnt lgkmcnt(0)\ns_add_u32 s94, s94, s100')
        a.label('L_echo')
        a('s_memrealtime s[100:101]\ns_waitcnt lgkmcnt(0)\ns_sub_u32 s95, s94, s100\ns_cmp_gt_i32 s95, 0\ns_cbranch_scc1 L_echo')
    if ts:
        a('s_waitcnt vmcnt(0)')
        stamp()
        a('s_memrealtime s[98:99]\ns_waitcnt lgkmcnt(0)')
        for i in range(16):
            a(f'v_accvgpr_read_b32 v{72+i}, a{A_TS+i}')
        for i in range(4):
            a(f'v_accvgpr_read_b32 v{92+i}, a{A_TS+16+i}')
        a('v_accvgpr_read_b32 v88, a229\nv_mov_b32 v89, s100\nv_mov_b32 v90, s98\nv_mov_b32 v91, 0')
        a(f's_lshl_b32 s{S_TMP}, s2, 9\ns_lshl_b32 s{S_TMP+1}, s{S_WAVE}, 7\ns_add_u32 s{S_TMP}, s{S_TMP}, s{S_TMP+1}\nv_mov_b32 v8, s{S_TMP}')
        srd(a, R_B, S_WS, S_WS+1, 0x40000, TS_OFF)
        a(f'v_cmp_eq_u32 vcc, 0, v2\ns_and_saveexec_b64 s[{S_SAVE}:{S_SAVE+1}], vcc')
        for i in range(6):
            a(f'buffer_store_dwordx4 v[{72+4*i}:{75+4*i}], v8, s[{R_B}:{R_B+3}], 0 offen offset:{16*i}')
        if E('DBGOUT'):
            wg = int(E('DBGOUT'))
            a(f's_cmp_lg_u32 s2, {wg}\ns_cbranch_scc1 L_end\ns_cmp_lg_u32 s{S_WAVE}, 1\ns_cbranch_scc1 L_end')
            srd(a, R_B, S_DBG, S_DBG+1, 256)
            for i in range(14):
                a(f'v_sub_u32 v{72+i}, v{72+i}, v88')
            a('v_sub_u32 v90, v90, v89\nv_mov_b32 v8, 0')
            a(f'buffer_store_dword v90, v8, s[{R_B}:{R_B+3}], 0 offen offset:4')
            for i in range(7):
                a(f'buffer_store_dwordx2 v[{72+2*i}:{73+2*i}], v8, s[{R_B}:{R_B+3}], 0 offen offset:{8+8*i}')
        if E('PSTAMP'):
            for i in range(12):
                a(f'v_accvgpr_read_b32 v{100+i}, a{232+i}')
            srd(a, R_B, S_WS, S_WS+1, 0x40000, TS_OFF + 0x100000)
            for i in range(3):
                a(f'buffer_store_dwordx4 v[{100+4*i}:{103+4*i}], v8, s[{R_B}:{R_B+3}], 0 offen offset:{16*i}')
    a.label('L_end')
    a('s_endpgm')
    a.label('L_embslow')
    a(f's_mov_b32 s{S_TMP+2}, 0')
    a.label('L_embslow2')
    a(f'buffer_load_dword v{V_EX+16}, v{V_PF2}, {WSR}, s{S_TMP+1} offen {SC}')
    a('s_waitcnt vmcnt(0)')
    a(f'v_cmp_eq_u32 vcc, s{S_E}, v{V_EX+16}')
    a(f's_add_u32 s{S_TMP+2}, s{S_TMP+2}, 1')
    a('s_cmp_eq_u64 vcc, exec\ns_cbranch_scc1 L_embok')
    a(f's_cmp_lt_u32 s{S_TMP+2}, 0x40000\ns_cbranch_scc1 L_embslow2')
    a('s_branch L_embok')
    name = 'standalone__adm_resblock__diffusion_kernel'
    return khead(name) + a.text(), kd(name, 256+(248 if ts else 208), 256)

def main():
    ts = '--ts' in sys.argv
    hdr = open('standalone__adm_resblock__diffusion.s.ref').read().split('\n')
    top = [l for l in hdr if l.startswith(';') and '@launch' not in l]
    top += ['; @launch grid=(256,1,1) block=(256,1,1) lds=163840']
    for it in range(4):
        k = gen(ts)
        OLDW.clear(); OLDW.update(NEWW); OLDPREW.clear(); OLDPREW.update(PREW)
    out = '\n'.join(top) + '\n.amdgcn_target "amdgcn-amd-amdhsa--gfx950"\n.text\n'
    out += k[0] + '\n.section .rodata,"a"\n' + k[1] + '\n'
    print(out)

main()
```

```python
import sys, struct, os
from genlib import *

E = os.environ.get
WARM = int(E('WARM', '3'))
TRK = E('TRK', '')
TOUCH = int(E('TOUCH', '1'))
PREF = int(E('PREF', '0'))
ORD = int(E('ORD', '0'))
CPF = int(E('CPF', '0'))
TLB = int(E('TLB', '1'))
WPRI = int(E('WPRI', '0'))
LATEW = int(E('LATEW', '1'))
T128 = int(E('T128', '1'))
NOWIN = int(E('NOWIN', '0'))
REP = int(E('REP', '0'))
PSL = int(E('PSL', '0'))
FULL = int(E('FULL', '1'))
FT = int(E('FT', '1'))
W2T = int(E('W2T', '0'))
ECHO = E('ECHO', '')
ORDB = int(E('ORDB', '0'))
OUTF = E('OUTF', '')
DUP = int(E('DUP', '1'))
NT1 = E('NT1', ''); NT2 = E('NT2', ''); NTX = E('NTX', '')
WDLY = int(E('WDLY', '0'))
NOVM = E('NOVM', '')
EPS = E('EPS', '10,6')
DLY0 = int(E('DLY0', '0')); DLY1 = int(E('DLY1', '0'))
CAP = int(E('CAP', '2'))
BND = int(E('BND', '1'))
NLOC = int(E('NLOC', '12')); KGLOB = int(E('KGLOB', '2'))
SC = 'sc1'

A1_OFF = 0x010000
A2_OFF = 0x410000
EMBP_OFF = 0x700000
ST1L_OFF = 0x720000
ST2L_OFF = 0x724000
ST1G_OFF = 0x730000
F0_OFF = 0x780000
F1_OFF = 0x7A0000
ST2G_OFF = 0x760000
WS_SIZE = 0x800000
TS_OFF = 0x8000000

WAVE_LDS = 40960
WSLOT = 10240
NA = 5
A_BASE = 2*WSLOT
MISC = A_BASE

V_AD = 16; V_AR = 28; V_L16 = 31; V_EX = 32
V_PF0 = 49; V_PF1 = 50; V_PW = 51
V_T = 52
V_PF2 = 54; V_PFX = 55
V_WD = 64
V_WR = 74
V_WRX = 78
V_RAW = 82
V_WF = 118
V_P0 = 190
V_H = 216
A_ACC = 0; A_AF = 64; A_TS = 208
def acc(ob, ro, half): return A_ACC + ((ob*4 + ro)*2 + half)*4
def af(r, half, dx): return A_AF + ((r*2 + half)*3 + dx)*4
def wf(kk, tap): return V_WF + (kk % 2)*36 + tap*4

S_X, S_T, S_G1, S_B1, S_W1, S_WE, S_G2, S_B2, S_W2, S_OUT, S_DBG, S_WS = 4, 6, 8, 10, 12, 14, 16, 18, 20, 22, 24, 26
R_WS = 28; R_X = 32; R_A = 36; R_B = 40
S_WAVE = 44; S_XCD = 45; S_WITHIN = 46; S_BB = 47; S_G = 48; S_OCT = 49; S_PXT = 50; S_OC0 = 51; S_Y0 = 52
S_LDS = 53; S_E = 54; S_FFFF = 55
S_WOFF = 56
S_AOFF = 64
S_TMP = 68
S_C = 80
S_LIN = 84; S_IDX = 85; S_R1 = 86; S_R2 = 87
S_O1 = 88; S_O2 = 89; S_SAVE = 90
S_TS = 92
R_WQ = 96

def red2(a, v1, v2, s1, s2):
    for mod in ('quad_perm:[1,0,3,2] row_mask:0xf', 'quad_perm:[2,3,0,1] row_mask:0xf', 'row_half_mirror row_mask:0xf',
                'row_mirror row_mask:0xf', 'row_bcast:15 row_mask:0xa', 'row_bcast:31 row_mask:0xc'):
        a('s_nop 0')
        a(f'v_add_f32_dpp v{v1}, v{v1}, v{v1} {mod} bank_mask:0xf')
        a(f'v_add_f32_dpp v{v2}, v{v2}, v{v2} {mod} bank_mask:0xf')
    a(f'v_readlane_b32 s{s1}, v{v1}, 63\ns_nop 0\nv_readlane_b32 s{s2}, v{v2}, 63')

def silu_pk(a, z, t, n):
    for i in range(0, n, 2):
        a(f'v_pk_mul_f32 v[{t+i}:{t+i+1}], v[{z+i}:{z+i+1}], s[{S_C}:{S_C+1}]')
    for i in range(n):
        a(f'v_exp_f32 v{t+i}, v{t+i}')
    if n <= 4: a('s_nop 0')
    for i in range(0, n, 2):
        a(f'v_pk_add_f32 v[{t+i}:{t+i+1}], v[{t+i}:{t+i+1}], s[{S_C+2}:{S_C+3}]')
    for i in range(n):
        a(f'v_rcp_f32 v{t+i}, v{t+i}')
    if n <= 4: a('s_nop 0')
    for i in range(0, n, 2):
        a(f'v_pk_mul_f32 v[{z+i}:{z+i+1}], v[{z+i}:{z+i+1}], v[{t+i}:{t+i+1}]')

OLDW = {}; NEWW = {}; PREW = {}; OLDPREW = {}
def wgt(x):
    if x.endswith(':'): return 0
    if x.startswith('buffer_') or x.startswith('ds_write') or x.startswith('v_exp') or x.startswith('v_rcp'): return 2
    return 1

def gen(ts=False):
    a = Asm()
    stamps = [0]
    def stamp(idx=None):
        if ECHO:
            i = stamps[0] if idx is None else idx
            e0, e1 = [int(x) for x in ECHO.split(',')]
            if i == e0: a('s_memrealtime s[100:101]'); a.wait_all(v=False)
            if i == e1: a('s_memrealtime s[94:95]'); a.wait_all(v=False)
            if idx is None and not ts: stamps[0] += 1
        if ts:
            a(f's_memtime s[{S_TS}:{S_TS+1}]'); a.wait_all(v=False)
            i = stamps[0] if idx is None else idx
            a(f'v_mov_b32 v15, s{S_TS}\nv_accvgpr_write_b32 a{A_TS+i}, v15')
            if idx is None: stamps[0] += 1
    WSR = f's[{R_WS}:{R_WS+3}]'
    a('s_cmp_ge_u32 s2, 256\ns_cbranch_scc1 L_end')
    a('s_load_dwordx16 s[4:19], s[0:1], 0')
    a('s_load_dwordx8 s[20:27], s[0:1], 64')
    a(f's_memrealtime s[{S_TS+2}:{S_TS+3}]')
    if ECHO: a('s_memrealtime s[100:101]')
    if ts:
        a('s_memtime s[90:91]\ns_memrealtime s[100:101]\ns_waitcnt lgkmcnt(0)\nv_mov_b32 v15, s90\nv_accvgpr_write_b32 a229, v15')
    a('v_lshrrev_b32 v1, 6, v0\nv_and_b32 v2, 63, v0')
    a(f'v_readfirstlane_b32 s{S_WAVE}, v1')
    a(f's_and_b32 s{S_XCD}, s2, 7\ns_lshr_b32 s{S_WITHIN}, s2, 3')
    a(f's_lshr_b32 s{S_BB}, s{S_XCD}, 2\ns_and_b32 s{S_G}, s{S_XCD}, 3')
    a(f's_and_b32 s{S_OCT}, s{S_WITHIN}, 3\ns_lshr_b32 s{S_PXT}, s{S_WITHIN}, 2')
    a(f's_lshl_b32 s{S_OC0}, s{S_G}, 7\ns_lshl_b32 s{S_TMP}, s{S_OCT}, 5\ns_add_u32 s{S_OC0}, s{S_OC0}, s{S_TMP}')
    a(f's_lshl_b32 s{S_Y0}, s{S_PXT}, 2')
    a(f's_mul_i32 s{S_LDS}, s{S_WAVE}, {WAVE_LDS}')
    a(f's_lshl_b32 s{S_LIN}, s{S_XCD}, 5\ns_add_u32 s{S_LIN}, s{S_LIN}, s{S_WITHIN}')
    a(f's_lshr_b32 s{S_IDX}, s{S_LIN}, 1')
    a('v_lshlrev_b32 v3, 1, v2\nv_lshl_add_u32 v3, v1, 9, v3')
    a(f'v_lshlrev_b32 v{V_L16}, 4, v2')
    a(f's_lshl_b32 s{S_TMP+4}, s{S_IDX}, 14')
    a(f's_lshl_b32 s{S_TMP+6}, s{S_WAVE}, 12\ns_add_u32 s{S_O1}, s{S_TMP+4}, s{S_TMP+6}\ns_add_u32 s{S_O1}, s{S_O1}, {A1_OFF}')
    a(f's_and_b32 s{S_TMP+5}, s{S_IDX}, 63\ns_lshl_b32 s{S_TMP+5}, s{S_TMP+5}, 4')
    a(f's_or_b32 s{S_TMP+7}, s2, s{S_WAVE}')
    a(f's_mov_b32 s{S_C}, 0x{NLOG2E:x}\ns_mov_b32 s{S_C+1}, 0x{NLOG2E:x}\ns_mov_b32 s{S_C+2}, 1.0\ns_mov_b32 s{S_C+3}, 1.0')
    a('s_waitcnt lgkmcnt(0)')
    srd(a, R_B, S_DBG, S_DBG+1, 256)
    a(f's_cmp_lg_u32 s{S_TMP+7}, 0\ns_cbranch_scc1 L_noep')
    a(f's_or_b32 s{S_TS+2}, s{S_TS+2}, 1\nv_mov_b32 v5, s{S_TS+2}\nv_mov_b32 v4, 0')
    a(f'buffer_store_dword v5, v4, s[{R_B}:{R_B+3}], 0 offen {SC}')
    a.label('L_noep')
    srd(a, R_X, S_X, S_X+1, 2097152)
    srd(a, R_WS, S_WS, S_WS+1, WS_SIZE)
    a(f's_bitcmp1_b32 s{S_WITHIN}, 0\ns_cbranch_scc1 L_warm')

    def get_epoch(nm, v0_):
        a(f'v_mov_b32 v13, 0\ns_mov_b32 s{S_TMP+1}, 0')
        a.label(nm)
        a(f'v_readfirstlane_b32 s{S_E}, v{v0_}')
        a(f's_add_u32 s{S_TMP+1}, s{S_TMP+1}, 1')
        a(f's_cmp_lg_u32 s{S_E}, 0\ns_cbranch_scc1 {nm}ok')
        a(f's_cmp_gt_u32 s{S_TMP+1}, 0x40000\ns_cbranch_scc1 {nm}ok')
        a(f'buffer_load_dword v{v0_}, v13, s[{R_B}:{R_B+3}], 0 offen {SC}')
        a(f's_waitcnt vmcnt(0)\ns_branch {nm}')
        a.label(nm + 'ok')

    def exchange(nm, vS, loc_own, glob_own, publisher_cond, nld, lanemask, loc_base, glob_base, vA, vL, mid=None):
        loc_own(); glob_own()
        def pub(sreg, flag):
            if publisher_cond: a(f's_cmp_lg_u32 s{S_WAVE}, 0\ns_cbranch_scc1 {nm}_np{len(a.L)}'); lab = a.L[-1].split()[-1]
            a(f'v_mov_b32 v{vA+1}, 0\nv_cmp_eq_u32 vcc, 0, v2\ns_and_saveexec_b64 s[{S_SAVE}:{S_SAVE+1}], vcc')
            a(f'buffer_store_dwordx4 v[{vS}:{vS+3}], v{vA+1}, {WSR}, s{sreg} offen {flag}')
            a(f's_mov_b64 exec, s[{S_SAVE}:{S_SAVE+1}]')
            if publisher_cond: a.label(lab)
        pub(S_TMP+2, '')
        a(f'v_and_b32 v{vA}, {lanemask}, v2\nv_lshlrev_b32 v{vA}, 4, v{vA}')
        loc_base()
        a(f's_mov_b32 s{S_TMP+1}, 0\ns_movk_i32 s{S_TMP+4}, 1024')
        if mid: mid()
        a.label(nm)
        for i in range(nld):
            if i == 0:
                a(f'buffer_load_dwordx4 v[{vL}:{vL+3}], v{vA}, {WSR}, s{S_TMP} offen {SC}')
            else:
                a(f's_add_u32 s{S_TMP+5}, s{S_TMP}, s{S_TMP+4}')
                a(f'buffer_load_dwordx4 v[{vL+4}:{vL+7}], v{vA}, {WSR}, s{S_TMP+5} offen {SC}')
        a('s_waitcnt vmcnt(0)')
        a(f'v_xor_b32 v{vA+1}, s{S_E}, v{vL+1}\nv_xor_b32 v{vA+2}, s{S_E}, v{vL+3}')
        if nld == 2:
            a(f'v_xor_b32 v{vA+3}, s{S_E}, v{vL+5}\nv_or3_b32 v{vA+1}, v{vA+1}, v{vA+2}, v{vA+3}\nv_xor_b32 v{vA+2}, s{S_E}, v{vL+7}')
        a(f'v_or_b32 v{vA+1}, v{vA+1}, v{vA+2}')
        a(f'v_cmp_eq_u32 vcc, 0, v{vA+1}')
        a(f's_add_u32 s{S_TMP+1}, s{S_TMP+1}, 1')
        a(f's_cmp_eq_u64 vcc, exec\ns_cbranch_scc1 {nm}_ok')
        a(f's_cmp_lg_u32 s{S_TMP+1}, {KGLOB}\ns_cbranch_scc1 {nm}_c1')
        pub(S_TMP+3, SC)
        a.label(f'{nm}_c1')
        a(f's_cmp_lg_u32 s{S_TMP+1}, {NLOC}\ns_cbranch_scc1 {nm}_c2')
        a(f'v_lshlrev_b32 v{vA}, 3, v{vA}\ns_movk_i32 s{S_TMP+4}, 8192')
        glob_base()
        a.label(f'{nm}_c2')
        a(f's_cmp_lt_u32 s{S_TMP+1}, 0x40000\ns_cbranch_scc1 {nm}')
        a.label(f'{nm}_ok')
        a(f's_cmp_gt_u32 s{S_TMP+1}, {KGLOB}\ns_cbranch_scc1 {nm}_c3')
        pub(S_TMP+3, SC)
        a.label(f'{nm}_c3')
        if nld == 2:
            a(f'v_add_f32 v{vL}, v{vL}, v{vL+4}\nv_add_f32 v{vL+2}, v{vL+2}, v{vL+6}\ns_nop 0')
        red2(a, vL, vL+2, S_R1, S_R2)

    def mean_rstd(inv, vm):
        ib = f2u(inv)
        a(f'v_mov_b32 v{vm}, 0x{ib:x}\ns_nop 0')
        a(f'v_mul_f32 v{vm+2}, s{S_R2}, v{vm}\nv_mul_f32 v{vm}, s{S_R1}, v{vm}')
        a(f'v_fma_f32 v{vm+2}, -v{vm}, v{vm}, v{vm+2}\nv_max_f32 v{vm+2}, 0, v{vm+2}\nv_add_f32 v{vm+2}, 0x3727c5ac, v{vm+2}')
        a(f'v_rsq_f32 v{vm+2}, v{vm+2}\nv_sub_f32 v{vm}, 0, v{vm}\nv_mov_b32 v{vm+1}, v{vm}\nv_mov_b32 v{vm+3}, v{vm+2}')

    m0cur = [None]
    def set_m0(v):
        if m0cur[0] != v:
            a(f's_add_u32 m0, s{S_LDS}, {v}'); m0cur[0] = v
    def fix_m0():
        if a.L[-1].startswith('s_add_u32 m0'): a('s_nop 0')
    def wsegs(kk):
        return list(range(10)) if ((kk % 8)//2) % 2 == 0 else list(range(1, 9))
    wdone = set(); rawdone = set(); permdone = set()
    def dma_w_pre(kk, n):
        if kk >= 2: assert (kk-2) in rawdone, kk
        if 'w' in NOVM: return
        if kk >= 2: a.need(ltags=[('R', kk-2, 8)])
        if kk == 8 and n == 0:
            srd(a, R_WQ, S_W2, S_W2+1, 4718592+4096, -4096)
        set_m0((kk % 2)*WSLOT + (n - n % 4)*1024)
    def dma_w(kk, n):
        if n == wsegs(kk)[-1]: wdone.add(kk)
        if 'w' in NOVM: return
        assert m0cur[0] == (kk % 2)*WSLOT + (n - n % 4)*1024
        fix_m0()
        a.vmem(f'buffer_load_dwordx4 v{V_WD+n}, s[{R_WQ}:{R_WQ+3}], s{S_WOFF + kk % 8} offen offset:{(n%4)*1024} lds', tag=('W', kk))
    atmp = [None]; adone = set()
    def dma_a_pre(conv, u, kq):
        if 'a' in NOVM: return
        s, j = divmod(u, 3)
        set_m0(A_BASE + (u % NA)*4096)
        key = (conv, s)
        if atmp[0] != key:
            a(f's_add_u32 s{S_TMP+9}, s{S_AOFF+s}, {A1_OFF if conv == 0 else A2_OFF}'); atmp[0] = key
    def dma_a(conv, u, kq):
        if kq == 3: adone.add((conv, u))
        if 'a' in NOVM: return
        s, j = divmod(u, 3)
        assert m0cur[0] == A_BASE + (u % NA)*4096
        fix_m0()
        a.vmem(f'buffer_load_dwordx4 v{V_AD+4*j+kq}, {WSR}, s{S_TMP+9} offen offset:{kq*1024} lds', tag=('A', conv, u))
    def rd_raw(kk, j):
        assert kk in wdone, kk
        if kk >= 1: assert (kk-1) in permdone, kk
        a.need(vtags=[('W', kk)])
        m = j % 4
        odd = ((kk % 8)//2) % 2 == 1
        reg = (V_WRX if (odd and j < 4) else V_WR) + m
        a.lds(f'ds_read_b128 v[{V_RAW+4*j}:{V_RAW+4*j+3}], v{reg} offset:{(kk % 2)*WSLOT + (j//4)*1024}', tag=('R', kk, j))
        if j == 8: rawdone.add(kk)
    def perm(kk, i):
        assert kk in rawdone, kk
        m, t = divmod(i, 9)
        lo = 9*m + t//2; hi = 9*m + (t+9)//2
        if t == 0:
            a.need(ltags=[('R', kk, (9*m+8)//4)])
        d = wf(kk, t) + m
        if t % 2 == 0:
            a(f'v_bfi_b32 v{d}, s{S_FFFF}, v{V_RAW+lo}, v{V_RAW+hi}')
        else:
            a(f'v_alignbit_b32 v{d}, v{V_RAW+hi}, v{V_RAW+lo}, 16')
        if i == 35: permdone.add(kk)
    issued = set()
    def rd_af(conv, s, r, half, dx):
        u = s*3 + r//2
        assert (conv, u) in adone, (conv, u)
        a.need(vtags=[('A', conv, u)])
        reg = V_AR
        if dx == 0 and half == 0: reg = V_AR+1
        if dx == 2 and half == 1: reg = V_AR+2
        off = (u % NA)*4096 + (r % 2)*512 + half*256 + (dx-1)*16
        if reg == V_AR+1: off += 16
        d = af(r, half, dx)
        a.lds(f'ds_read_b128 a[{d}:{d+3}], v{reg} offset:{off}', tag=('F', s, r, half, dx))
        issued.add((conv, s, r, half, dx))
    def w_dma_all(kk):
        for n in wsegs(kk):
            dma_w_pre(kk, n); dma_w(kk, n)
    def w_rawperm(kk, doperm=True):
        for j in range(9): rd_raw(kk, j)
        if doperm:
            for i in range(36): perm(kk, i)

    def setup():
        a('v_lshrrev_b32 v4, 2, v2\nv_and_b32 v5, 3, v2')
        a('v_bfe_u32 v6, v4, 3, 1\nv_lshlrev_b32 v6, 1, v6\nv_xor_b32 v5, v5, v6')
        a(f's_movk_i32 s{S_TMP}, 9216\nv_add_u32 v4, s{S_OC0}, v4\nv_mul_u32_u24 v4, s{S_TMP}, v4\nv_lshl_add_u32 v4, v5, 4, v4')
        for n in range(10):
            a(f'v_add_u32 v{V_WD+n}, {4096 + n*64 - (n%4)*1024}, v4')
        srd(a, R_WQ, S_W1, S_W1+1, 4718592+4096, -4096)
        a(f's_mul_i32 s{S_WOFF}, s{S_WAVE}, 2304')
        for k in range(1, 8):
            a(f's_add_u32 s{S_WOFF+k}, s{S_WOFF}, {(k//2)*576 + (k%2)*147456}')
        a(f's_lshl_b32 s{S_TMP}, s{S_BB}, 20')
        a('v_mov_b32 v5, 0x7ff00000')
        for j in range(3):
            a(f'v_lshrrev_b32 v3, 5, v2\nv_add_u32 v3, {2*j}, v3\nv_add_u32 v3, s{S_Y0}, v3\nv_subrev_u32 v3, 1, v3')
            a('v_and_b32 v4, 31, v2\nv_lshlrev_b32 v4, 4, v4\nv_lshl_add_u32 v4, v3, 9, v4')
            a(f'v_add_u32 v4, s{S_TMP}, v4')
            a('v_cmp_gt_u32 vcc, 32, v3\ns_nop 1')
            a(f'v_cndmask_b32 v{V_AD+4*j}, v5, v4, vcc')
            for kq in range(1, 4):
                a(f'v_add_u32 v{V_AD+4*j+kq}, {kq*15360}, v{V_AD+4*j}')
        a('v_and_b32 v3, 15, v2\nv_lshrrev_b32 v4, 4, v2')
        a(f's_add_u32 s{S_TMP}, s{S_LDS}, {A_BASE}')
        a(f'v_lshlrev_b32 v{V_AR}, 10, v4\nv_lshl_add_u32 v{V_AR}, v3, 4, v{V_AR}\nv_add_u32 v{V_AR}, s{S_TMP}, v{V_AR}')
        a(f'v_mov_b32 v5, 163840\nv_subrev_u32 v6, 16, v{V_AR}')
        a(f'v_cmp_eq_u32 vcc, 0, v3\ns_nop 1\nv_cndmask_b32 v{V_AR+1}, v6, v5, vcc')
        a(f'v_cmp_eq_u32 vcc, 15, v3\ns_nop 1\nv_cndmask_b32 v{V_AR+2}, v{V_AR}, v5, vcc')
        a(f'v_add_u32 v{V_PW}, s{S_TMP}, v{V_L16}')
        a('v_bfe_u32 v6, v3, 3, 1\nv_lshlrev_b32 v6, 1, v6\nv_mul_u32_u24 v5, 9, v4')
        a(f'v_lshlrev_b32 v7, 6, v3\nv_add_u32 v7, s{S_LDS}, v7')
        a('v_mov_b32 v10, 0\nv_mov_b32 v11, 9216\nv_cmp_eq_u32 vcc, 0, v4\ns_nop 1\nv_cndmask_b32 v10, v10, v11, vcc')
        for m in range(4):
            a(f'v_add_u32 v8, {m}, v5\nv_lshrrev_b32 v9, 2, v8\nv_and_b32 v8, 3, v8\nv_xor_b32 v8, v8, v6')
            a(f'v_lshl_add_u32 v{V_WR+m}, v9, 10, v7\nv_lshl_add_u32 v{V_WR+m}, v8, 4, v{V_WR+m}')
            a(f'v_add_u32 v{V_WRX+m}, v{V_WR+m}, v10')
        a(f's_mov_b32 s{S_FFFF}, 0xffff')
        a(f'v_lshlrev_b32 v5, 3, v4\ns_lshl_b32 s{S_TMP}, s{S_OC0}, 1')
        for ptr, r0 in ((S_G2, V_EX+8), (S_B2, V_EX+12)):
            srd(a, R_A, ptr, ptr+1, 1024)
            for o2 in range(2):
                a(f'buffer_load_dwordx2 v[{r0+2*o2}:{r0+1+2*o2}], v5, s[{R_A}:{R_A+3}], s{S_TMP} offen offset:{o2*32}')
        a(f's_lshl_b32 s{S_AOFF}, s{S_WAVE}, 18')
        for s in range(1, 4):
            a(f's_add_u32 s{S_AOFF+s}, s{S_AOFF}, {s*65536}')
        a(f's_lshl_b32 s{S_TMP}, s{S_BB}, 2\ns_add_u32 s{S_TMP}, s{S_TMP}, s{S_WAVE}\ns_lshl_b32 s{S_TMP}, s{S_TMP}, 5')
        a(f'v_lshlrev_b32 v6, 1, v3\nv_add_u32 v{V_PF0}, s{S_TMP}, v6')
        a('v_and_b32 v5, 31, v2')
        a(f'v_lshrrev_b32 v6, 2, v5\nv_subrev_u32 v7, s{S_PXT}, v6\nv_add_u32 v7, 1, v7')
        a(f'v_mov_b32 v8, s{S_PXT}\nv_cmp_gt_u32 vcc, 3, v7\ns_nop 1\nv_cndmask_b32 v6, v8, v6, vcc')
        a(f'v_and_b32 v7, 3, v5\nv_lshl_add_u32 v6, v6, 2, v7\nv_add_u32 v6, s{S_TMP}, v6\nv_lshlrev_b32 v{V_PF1}, 7, v6')
        a(f's_lshl_b32 s{S_TMP+1}, s{S_XCD}, 5\ns_lshl_b32 s{S_TMP+2}, s{S_OCT}, 1\ns_add_u32 s{S_TMP+1}, s{S_TMP+1}, s{S_TMP+2}\ns_add_u32 s{S_TMP+1}, s{S_TMP+1}, 1')
        a(f'v_and_b32 v6, 3, v2\nv_lshlrev_b32 v6, 3, v6\nv_add_u32 v6, s{S_TMP+1}, v6\nv_lshlrev_b32 v{V_PF2}, 7, v6')
        a(f'v_lshlrev_b32 v6, {7 if W2T else 6}, v2\nv_mov_b32 v7, 0x7ff00000\nv_cmp_gt_u32 vcc, {36 if W2T else 18}, v2\ns_nop 1\nv_cndmask_b32 v{V_PFX}, v7, v6, vcc')
        a(f'v_lshlrev_b32 v{V_PF0}, 7, v{V_PF0}')
    X0 = V_H
    for c in range(8):
        if c % 2 == 0 and c:
            a(f's_add_u32 s{S_TMP+4}, s{S_TMP+4}, 4096')
        for q in range(4):
            a(f'buffer_load_ushort v{X0+8*q+c}, v3, s[{R_X}:{R_X+3}], s{S_TMP+4} offen offset:{(c%2)*2048+q*128} {NTX}')
    a(f's_add_u32 s{S_G1}, s{S_G1}, s{S_TMP+5}\ns_addc_u32 s{S_G1+1}, s{S_G1+1}, 0')
    a(f's_add_u32 s{S_B1}, s{S_B1}, s{S_TMP+5}\ns_addc_u32 s{S_B1+1}, s{S_B1+1}, 0')
    GB = 72
    a(f's_load_dwordx4 s[{GB}:{GB+3}], s[{S_G1}:{S_G1+1}], 0\ns_load_dwordx4 s[{GB+4}:{GB+7}], s[{S_B1}:{S_B1+1}], 0')
    EP = V_H + 32
    eps = [int(x) for x in EPS.split(',')]
    def touch():
        if TOUCH:
            a(f's_lshl_b32 s{S_TMP}, s{S_XCD}, 10\ns_add_u32 s{S_TMP}, s{S_TMP}, {ST1L_OFF}')
            a(f'buffer_load_dword v{EP+4}, v{V_L16}, {WSR}, s{S_TMP} offen {SC}')
            a(f's_lshl_b32 s{S_TMP}, s{S_XCD}, 11\ns_add_u32 s{S_TMP}, s{S_TMP}, {ST2L_OFF}')
            a(f'buffer_load_dword v{EP+4}, v{V_L16}, {WSR}, s{S_TMP} offen {SC}')
            a(f'buffer_load_dword v{EP+4}, v{V_L16}, {WSR}, s{S_TMP} offen offset:1024 {SC}')
        if TOUCH & 2:
            a(f'v_lshlrev_b32 v5, 6, v2')
            a(f'buffer_load_dword v{EP+4}, v5, {WSR}, s{S_O1} offen {SC}')
        if TOUCH & 4:
            a(f's_lshl_b32 s{S_TMP}, s{S_LIN}, 7\ns_add_u32 s{S_TMP}, s{S_TMP}, {F0_OFF}\nv_mov_b32 v5, 0')
            a(f'buffer_load_dword v{EP+4}, v5, {WSR}, s{S_TMP} offen {SC}')
    touch()
    setup()
    SCLV = V_P0; SHF = V_P0 + 8
    a('s_waitcnt lgkmcnt(0)')
    for c in range(8):
        g = GB + c//2; be = GB + 4 + c//2
        if c % 2 == 0:
            a(f's_lshl_b32 s{S_R1}, s{g}, 16\ns_lshl_b32 s{S_R2}, s{be}, 16')
        else:
            a(f's_and_b32 s{S_R1}, s{g}, 0xffff0000\ns_and_b32 s{S_R2}, s{be}, 0xffff0000')
        a(f'v_mov_b32 v{SCLV+c}, s{S_R1}\nv_mov_b32 v{SHF+c}, s{S_R2}')
    a('v_mov_b32 v13, 0')
    for i in range(3):
        a(f'v_mov_b32 v{EP+i}, 0')
    for i, sl in enumerate(eps):
        if sl: a(f's_sleep {sl}')
        a(f'buffer_load_dword v{EP+i}, v13, s[{R_B}:{R_B+3}], 0 offen {SC}')
    a(f's_waitcnt vmcnt({len(eps)})')
    a.label('L_stat')
    stamp(0)
    for c in range(32):
        a(f'v_lshlrev_b32 v{X0+c}, 16, v{X0+c}')
    a(f'v_pk_add_f32 v[8:9], v[{X0}:{X0+1}], v[{X0+2}:{X0+3}]\nv_pk_mul_f32 v[10:11], v[{X0}:{X0+1}], v[{X0}:{X0+1}]')
    a(f'v_pk_fma_f32 v[10:11], v[{X0+2}:{X0+3}], v[{X0+2}:{X0+3}], v[10:11]')
    for c in range(4, 32, 2):
        a(f'v_pk_add_f32 v[8:9], v[8:9], v[{X0+c}:{X0+c+1}]\nv_pk_fma_f32 v[10:11], v[{X0+c}:{X0+c+1}], v[{X0+c}:{X0+c+1}], v[10:11]')
    a('v_add_f32 v8, v8, v9\nv_add_f32 v9, v10, v11\ns_nop 0')
    red2(a, 8, 9, S_R1, S_R2)
    a('s_waitcnt vmcnt(0)')
    a(f'v_or3_b32 v12, v{EP}, v{EP+1}, v{EP+2}\nv_mov_b32 v4, s{S_R1}\nv_mov_b32 v6, s{S_R2}')
    get_epoch('L_ep', 12)
    stamp(16)
    if ts: a(f'v_mov_b32 v15, s{S_TMP+1}\nv_accvgpr_write_b32 a{A_TS+19}, v15')
    a('v_mov_b32 v5, v12\nv_mov_b32 v7, v12')
    a(f's_lshl_b32 s{S_TMP+6}, s{S_IDX}, 2\ns_add_u32 s{S_TMP+6}, s{S_TMP+6}, s{S_WAVE}')
    exchange('L_p1', 4,
             lambda: a(f's_lshl_b32 s{S_TMP+2}, s{S_TMP+6}, 4\ns_add_u32 s{S_TMP+2}, s{S_TMP+2}, {ST1L_OFF}'),
             lambda: a(f's_lshl_b32 s{S_TMP+3}, s{S_TMP+6}, 7\ns_add_u32 s{S_TMP+3}, s{S_TMP+3}, {ST1G_OFF}'),
             False, 1, 63,
             lambda: a(f's_lshl_b32 s{S_TMP}, s{S_XCD}, 10\ns_add_u32 s{S_TMP}, s{S_TMP}, {ST1L_OFF}'),
             lambda: a(f's_lshl_b32 s{S_TMP}, s{S_XCD}, 13\ns_add_u32 s{S_TMP}, s{S_TMP}, {ST1G_OFF}'),
             12, 8)
    stamp(1)
    if ts: a(f'v_mov_b32 v15, s{S_TMP+1}\nv_accvgpr_write_b32 a{A_TS+18}, v15')
    a.vq = []; a.lq = []
    mean_rstd(1.0/131072, 8)
    for c in range(0, 8, 2):
        a(f'v_pk_mul_f32 v[{SCLV+c}:{SCLV+c+1}], v[{SCLV+c}:{SCLV+c+1}], v[10:11]')
        a(f'v_pk_fma_f32 v[{SHF+c}:{SHF+c+1}], v[{SCLV+c}:{SCLV+c+1}], v[8:9], v[{SHF+c}:{SHF+c+1}]')
    ZT = V_P0 + 16
    for q in range(4):
        Z = X0 + 8*q
        for c in range(0, 8, 2):
            a(f'v_pk_fma_f32 v[{Z+c}:{Z+c+1}], v[{Z+c}:{Z+c+1}], v[{SCLV+c}:{SCLV+c+1}], v[{SHF+c}:{SHF+c+1}]')
        silu_pk(a, Z, ZT, 8)
        for i in range(4):
            a(f'v_cvt_pk_bf16_f32 v{Z+i}, v{Z+2*i}, v{Z+2*i+1}')
        a.vmem(f'buffer_store_dwordx4 v[{Z}:{Z+3}], v{V_L16}, {WSR}, s{S_O1} offen offset:{1024*q} {SC}', tag='st')
    a('s_branch L_join')

    a.label('L_warm')
    wdone.clear(); m0cur[0] = None; a.vq = []; a.lq = []
    EW = V_WF
    EA = V_WF + 16
    ET = V_WF + 24
    a(f's_lshr_b32 s{S_TMP+8}, s{S_WITHIN}, 1\ns_and_b32 s{S_TMP+9}, s{S_TMP+8}, 3\ns_lshr_b32 s{S_TMP+10}, s{S_TMP+8}, 2')
    if TLB:
        a(f'v_and_b32 v5, 3, v2\nv_lshlrev_b32 v6, 21, v5\nv_and_b32 v5, 1, v5\nv_mul_u32_u24 v5, 0x1f0000, v5\nv_add_u32 v5, v5, v6')
        a(f'buffer_load_dword v{V_H+4}, v5, {WSR}, 0 offen {SC}')
        a('v_mov_b32 v5, 0')
        for ptr, sz in ((S_OUT, 2097152),):
            srd(a, R_A, ptr, ptr+1, sz)
            a(f'buffer_load_dword v{V_H+4}, v5, s[{R_A}:{R_A+3}], 0 offen {SC}')
    if FT:
        a(f's_and_b32 s{S_TMP}, s{S_LIN}, 0xfe\ns_lshl_b32 s{S_TMP}, s{S_TMP}, 7\ns_add_u32 s{S_TMP}, s{S_TMP}, {F0_OFF}')
        a(f'v_and_b32 v5, 1, v2\nv_lshlrev_b32 v5, 7, v5\nv_bfe_u32 v6, v2, 1, 1\nv_mul_u32_u24 v6, {F1_OFF-F0_OFF}, v6\nv_add_u32 v5, v5, v6')
        a(f'buffer_load_dword v{V_H+4}, v5, {WSR}, s{S_TMP} offen {SC}')
    if CPF:
        a(f's_getpc_b64 s[{R_A}:{R_A+1}]')
        a(f's_and_b32 s{R_A+1}, s{R_A+1}, 0xffff\ns_mov_b32 s{R_A+2}, {CPF}\ns_mov_b32 s{R_A+3}, 0x20000')
        a(f's_lshl_b32 s{S_TMP}, s{S_TMP+8}, 2\ns_add_u32 s{S_TMP}, s{S_TMP}, s{S_WAVE}\ns_lshl_b32 s{S_TMP}, s{S_TMP}, 10')
        a(f'buffer_load_dwordx4 v[{V_H}:{V_H+3}], v{V_L16}, s[{R_A}:{R_A+3}], s{S_TMP} offen')
    srd(a, R_A, S_WE, S_WE+1, 786432)
    a('v_lshrrev_b32 v6, 2, v0\nv_and_b32 v5, 3, v0')
    a('v_lshlrev_b32 v7, 10, v6\nv_lshl_add_u32 v7, v5, 4, v7')
    a(f's_mul_i32 s{S_TMP}, s{S_TMP+10}, {192*1024}\ns_lshl_b32 s{S_TMP+1}, s{S_G}, 8\ns_add_u32 s{S_TMP}, s{S_TMP}, s{S_TMP+1}')
    a(f's_lshl_b32 s{S_TMP+1}, s{S_TMP+9}, 6\ns_add_u32 s{S_TMP}, s{S_TMP}, s{S_TMP+1}')
    for i in range(3):
        if i: a(f's_add_u32 s{S_TMP}, s{S_TMP}, 65536')
        a(f'buffer_load_dwordx4 v[{EW+4*i}:{EW+4*i+3}], v7, s[{R_A}:{R_A+3}], s{S_TMP} offen')
    srd(a, R_A, S_T, S_T+1, 3072)
    a(f'v_lshlrev_b32 v7, 1, v6\ns_mul_i32 s{S_TMP}, s{S_BB}, 1536\ns_mul_i32 s{S_TMP+1}, s{S_TMP+10}, 384\ns_add_u32 s{S_TMP}, s{S_TMP}, s{S_TMP+1}')
    for i in range(3):
        a(f'buffer_load_ushort v{EW+12+i}, v7, s[{R_A}:{R_A+3}], s{S_TMP} offen offset:{128*i}')
    a(f'v_mov_b32 v{EW+15}, 0')
    if WDLY: a(f's_sleep {WDLY}')
    nbulk = 0
    DUM = V_H
    for bit, ptr in ((1, S_W1), (2, S_W2)):
        if WARM & bit:
            srd(a, R_A, ptr, ptr+1, 4718592)
            if DUP & bit:
                a(f's_lshl_b32 s{S_TMP}, s{S_G}, 6\ns_lshl_b32 s{S_TMP+1}, s{S_TMP+8}, 2\ns_add_u32 s{S_TMP}, s{S_TMP}, s{S_TMP+1}\ns_add_u32 s{S_TMP}, s{S_TMP}, s{S_WAVE}\ns_mul_i32 s{S_TMP}, s{S_TMP}, 18432')
                nl = 18
            else:
                a(f's_lshl_b32 s{S_TMP}, s{S_G}, 7\ns_lshl_b32 s{S_TMP+1}, s{S_TMP+8}, 2\ns_add_u32 s{S_TMP}, s{S_TMP}, s{S_TMP+1}\ns_add_u32 s{S_TMP}, s{S_TMP}, s{S_WAVE}')
                a(f's_lshl_b32 s{S_TMP+1}, s{S_BB}, 6\ns_add_u32 s{S_TMP}, s{S_TMP}, s{S_TMP+1}\ns_mul_i32 s{S_TMP}, s{S_TMP}, 9216')
                nl = 9
            if T128:
                nlines = nl*8
                a('v_lshlrev_b32 v8, 7, v2')
                a(f'v_mov_b32 v9, 0x7ff00000\nv_cmp_gt_u32 vcc, {nlines % 64}, v2\ns_nop 1\nv_cndmask_b32 v9, v9, v8, vcc')
                for i in range((nlines + 63)//64):
                    if i: a(f's_add_u32 s{S_TMP}, s{S_TMP}, 8192')
                    vr = 8 if (i+1)*64 <= nlines else 9
                    a(f'buffer_load_dword v{DUM}, v{vr}, s[{R_A}:{R_A+3}], s{S_TMP} offen {NT1 if bit == 1 else NT2}')
                    nbulk += 1
            else:
                for i in range(nl):
                    if i % 4 == 0 and i: a(f's_add_u32 s{S_TMP}, s{S_TMP}, 4096')
                    a(f'buffer_load_dwordx4 v[{DUM}:{DUM+3}], v{V_L16}, s[{R_A}:{R_A+3}], s{S_TMP} offen offset:{(i%4)*1024} {NT1 if bit == 1 else NT2}')
                    nbulk += 1
    setup()
    a(f's_waitcnt vmcnt({nbulk+4})')
    stamp(0)
    for i in range(3):
        a(f'v_lshlrev_b32 v{EW+12+i}, 16, v{EW+12+i}')
    silu_pk(a, EW+12, ET, 4)
    for i in range(3):
        for d in range(4):
            op = 'v_mul_f32' if i == 0 else 'v_fmac_f32'
            a(f'v_lshlrev_b32 v4, 16, v{EW+4*i+d}\nv_and_b32 v5, 0xffff0000, v{EW+4*i+d}')
            a(f'{op} v{EA+2*d}, v4, v{EW+12+i}\n{op} v{EA+2*d+1}, v5, v{EW+12+i}')
    for mod in ('row_ror:4 row_mask:0xf', 'row_ror:8 row_mask:0xf'):
        a('s_nop 1')
        for e in range(8):
            a(f'v_add_f32_dpp v{EA+e}, v{EA+e}, v{EA+e} {mod} bank_mask:0xf')
    for sw in ('v_permlane16_swap_b32', 'v_permlane32_swap_b32'):
        for e in range(8):
            a(f'v_mov_b32 v{ET+e}, v{EA+e}')
        a('s_nop 1')
        for e in range(8):
            a(f'{sw} v{EA+e}, v{ET+e}')
        a('s_nop 1')
        for e in range(8):
            a(f'v_add_f32 v{EA+e}, v{EA+e}, v{ET+e}')
    a(f's_lshl_b32 s{S_TMP}, s{S_XCD}, 2\ns_add_u32 s{S_TMP}, s{S_TMP}, s{S_TMP+9}\ns_lshl_b32 s{S_TMP}, s{S_TMP}, 2\ns_add_u32 s{S_TMP}, s{S_TMP}, s{S_TMP+10}')
    a(f's_lshl_b32 s{S_TMP}, s{S_TMP}, 2\ns_add_u32 s{S_TMP}, s{S_TMP}, s{S_WAVE}\ns_lshl_b32 s{S_TMP}, s{S_TMP}, 7\ns_add_u32 s{S_TMP}, s{S_TMP}, {EMBP_OFF}')
    a('v_lshlrev_b32 v4, 5, v2')
    a(f'v_cmp_gt_u32 vcc, 4, v2\ns_and_saveexec_b64 s[{S_SAVE}:{S_SAVE+1}], vcc')
    a(f'buffer_store_dwordx4 v[{EA}:{EA+3}], v4, {WSR}, s{S_TMP} offen {SC}')
    a(f'buffer_store_dwordx4 v[{EA+4}:{EA+7}], v4, {WSR}, s{S_TMP} offen offset:16 {SC}')
    a(f's_mov_b64 exec, s[{S_SAVE}:{S_SAVE+1}]')
    a('v_mov_b32 v12, 0')
    get_epoch('L_ep2', 12)
    stamp(1)
    a.label('L_join')
    a.vq = ['st']; a.lq = []
    stamps[0] = 2
    m0cur[0] = None
    a('v_and_b32 v3, 15, v2\nv_lshrrev_b32 v4, 4, v2')
    if E('FINE'): stamp(19)
    if PREF >= 1: w_dma_all(0)
    if PREF >= 2: w_dma_all(1)
    if E('FINE'): stamp(17)
    a.need(vtags=['st'])
    if E('FINE'): stamp(18)
    a('s_barrier')
    def flag_store(off):
        a(f's_cmp_lg_u32 s{S_WAVE}, 0\ns_cbranch_scc1 L_nf{off:x}')
        a(f's_lshl_b32 s{S_TMP}, s{S_LIN}, 7\ns_add_u32 s{S_TMP}, s{S_TMP}, {off}')
        if FULL:
            a(f'v_mov_b32 v8, s{S_E}\nv_mov_b32 v9, s{S_E}\nv_mov_b32 v10, s{S_E}\nv_mov_b32 v11, s{S_E}')
            a(f'v_cmp_gt_u32 vcc, 8, v2\ns_and_saveexec_b64 s[{S_SAVE}:{S_SAVE+1}], vcc')
            a(f'buffer_store_dwordx4 v[8:11], v{V_L16}, {WSR}, s{S_TMP} offen {SC}')
        else:
            a(f'v_mov_b32 v5, s{S_E}\nv_lshlrev_b32 v6, 15, v2')
            a(f'v_cmp_gt_u32 vcc, {4 if REP else 1}, v2\ns_and_saveexec_b64 s[{S_SAVE}:{S_SAVE+1}], vcc')
            a(f'buffer_store_dword v5, v6, {WSR}, s{S_TMP} offen {SC}')
        a(f's_mov_b64 exec, s[{S_SAVE}:{S_SAVE+1}]')
        a.label(f'L_nf{off:x}')
    def flag_poll(off, vaddr, name, mid=None):
        a(f's_mov_b32 s{S_TMP+1}, 0\ns_mov_b32 s{S_TMP}, {off}')
        if REP: a(f's_lshl_b32 s{S_TMP+2}, s{S_G}, 15\ns_add_u32 s{S_TMP}, s{S_TMP}, s{S_TMP+2}')
        if mid:
            t = a.vmem(f'buffer_load_dword v5, v{vaddr}, {WSR}, s{S_TMP} offen {SC}')
            mid()
            a.need(vtags=[t])
            keep = list(a.vq)
            a(f'v_cmp_eq_u32 vcc, s{S_E}, v5\ns_nop 0\ns_cmp_eq_u64 vcc, exec\ns_cbranch_scc1 {name}ok')
        a.label(name)
        a(f'buffer_load_dword v5, v{vaddr}, {WSR}, s{S_TMP} offen {SC}')
        a('s_waitcnt vmcnt(0)')
        a(f'v_cmp_eq_u32 vcc, s{S_E}, v5')
        a(f's_add_u32 s{S_TMP+1}, s{S_TMP+1}, 1')
        a(f's_cmp_eq_u64 vcc, exec\ns_cbranch_scc1 {name}ok')
        if PSL: a(f's_sleep {PSL}')
        a(f's_cmp_lt_u32 s{S_TMP+1}, 0x40000\ns_cbranch_scc1 {name}')
        a.label(name + 'ok')
        a.vq = keep if mid else []
    flag_store(F0_OFF)
    stamp()

    if ORD == 0:
        if PREF < 1: w_dma_all(0)
        if PREF < 2: w_dma_all(1)
        w_rawperm(0)
        w_dma_all(2)
    else:
        if PREF < 1: w_dma_all(0)
        if PREF < 2 and ORD == 2: w_dma_all(1)
        w_rawperm(0)
        if PREF < 2 and ORD == 1: w_dma_all(1)
    if DLY0: a(f's_sleep {DLY0}')
    flag_poll(F0_OFF, V_PF0, 'L_p2', (lambda: w_dma_all(2)) if ORD else None)
    stamp()

    H = V_H; PL = V_H + 16
    def conv(ci):
        which = ci + 1
        PACE = float(E('PACE%d' % which, '5.0' if which == 1 else '5.5'))
        ex = []
        for u in range(3):
            dma_a_pre(ci, u, 0)
            for kq in range(4): dma_a(ci, u, kq)
        if ci == 0: w_rawperm(1)
        for r in range(3):
            for half in range(2):
                for dx in range(3):
                    rd_af(ci, 0, r, half, dx)
        items = []
        def put(gs, fn): items.append((gs, len(items), fn))
        row_slot = {}
        for s_ in range(4):
            for r in range(6):
                if r < 3:
                    if s_ == 0: row_slot[(s_, r)] = None; continue
                    base = 72*(2*s_-1) + 18*(r+1)
                else:
                    base = 72*(2*s_) + 18*(r-3) + (4 if r > 3 else 0)
                row_slot[(s_, r)] = base
                i = 0
                for half in range(2):
                    for dx in range(3):
                        put(base + 1 + (3*i)//2, (lambda ss=s_, r=r, half=half, dx=dx: rd_af(ci, ss, r, half, dx))); i += 1
        RAWS = 52
        raw_slot = {}
        for k_ in range(8):
            kk_ = ci*8 + k_
            p_ = kk_ + 1
            if LATEW and ci == 0 and k_ == 7: continue
            if p_ < 16 and p_ not in permdone and k_ >= 1:
                for i in range(36):
                    put(72*k_ + 1 + (i*4)//3, (lambda x=p_, i=i: perm(x, i)))
            r_ = kk_ + 2
            if W2T and ci == 0 and r_ >= 8: continue
            if r_ < 16 and r_ not in rawdone:
                rs = 72*k_ + (RAWS if k_ >= 1 else 30)
                raw_slot[r_] = rs
                for j in range(9):
                    put(rs + 2*j, (lambda x=r_, j=j: rd_raw(x, j)))
        ops = []
        for kk_ in range(ci*8, 16):
            if kk_ in wdone: continue
            if (kk_-2) in rawdone: ea = 0
            elif (kk_-2) in raw_slot: ea = raw_slot[kk_-2] + 22
            else: continue
            if ea > 560: continue
            dl = raw_slot.get(kk_, 72*8 + 40*(kk_ - ci*8))
            for n in wsegs(kk_):
                ops.append((dl, ea, (lambda x=kk_, n=n: dma_w_pre(x, n)), (lambda x=kk_, n=n: dma_w(x, n)), kk_))
        for u in range(3, 12):
            s_, j = divmod(u, 3)
            dl = row_slot[(s_, 2*j)] or 0
            ea = 0
            if u >= NA:
                ps, pj = divmod(u - NA, 3)
                ea = (row_slot[(ps, 2*pj+1)] or 0) + 14
            for kq in range(4):
                def pre(u=u, kq=kq):
                    if u >= NA:
                        ps, pj = divmod(u - NA, 3)
                        assert (ci, ps, 2*pj+1, 1, 2) in issued
                        a.need(ltags=[('F', ps, 2*pj+1, 1, 2)])
                    dma_a_pre(ci, u, kq)
                ops.append((dl, ea, pre, (lambda u=u, kq=kq: dma_a(ci, u, kq)), None))
        if W2T and ci == 0:
            def tp(i):
                if i == 0:
                    srd(a, R_B, S_W2, S_W2+1, 4718592)
                    if W2T == 1:
                        a(f's_lshl_b32 s{S_TMP+10}, s{S_BB}, 5\ns_add_u32 s{S_TMP+10}, s{S_TMP+10}, s{S_WITHIN}\ns_lshl_b32 s{S_TMP+10}, s{S_TMP+10}, 2\ns_add_u32 s{S_TMP+10}, s{S_TMP+10}, s{S_WAVE}')
                        a(f's_lshl_b32 s{S_TMP+11}, s{S_G}, 8\ns_add_u32 s{S_TMP+10}, s{S_TMP+10}, s{S_TMP+11}\ns_mul_i32 s{S_TMP+10}, s{S_TMP+10}, 4608')
                    else:
                        a(f's_lshl_b32 s{S_TMP+10}, s{S_WITHIN}, 2\ns_add_u32 s{S_TMP+10}, s{S_TMP+10}, s{S_WAVE}')
                        a(f's_lshl_b32 s{S_TMP+11}, s{S_G}, 7\ns_add_u32 s{S_TMP+10}, s{S_TMP+10}, s{S_TMP+11}\ns_mul_i32 s{S_TMP+10}, s{S_TMP+10}, 9216')
                else:
                    a(f's_add_u32 s{S_TMP+10}, s{S_TMP+10}, 4608')
            lastea = max(o[1] for o in ops if (o[4] is None or o[4] < 8))
            for i in range(W2T):
                ops.append((560, lastea + 1, (lambda i=i: tp(i)), (lambda: a.vmem(f'buffer_load_dword v{V_P0}, v{V_PFX}, s[{R_B}:{R_B+3}], s{S_TMP+10} offen')), -1))
            ops = [(o if (o[4] is None or o[4] < 8) else (o[0], max(o[1], lastea + 2)) + o[2:]) for o in ops]
        ops.sort(key=lambda o: o[0] - (WPRI if o[4] is not None else 0))
        cur = 4.0
        rem = list(ops)
        placed = []
        while rem:
            cand = [o for o in rem if o[1] <= cur]
            if not cand:
                cur = float(min(o[1] for o in rem)); continue
            o = cand[0]; rem.remove(o)
            placed.append((int(cur), o)); cur += PACE
        bad = set(o[4] for sl, o in placed if sl > 572)
        assert None not in bad
        for sl, o in placed:
            if o[4] in bad: continue
            if o[0] < 576 and sl > o[0] - 30: sys.stderr.write(f'warn conv{which}: op at {sl} deadline {o[0]}\n')
            put(sl-1, o[2]); put(sl, o[3])
        base = 72
        SCv = V_P0 + 4; SHv = V_P0 + 12
        if which == 1:
            ef = []
            put(72 + 2, lambda: a(f's_mov_b32 s{S_TMP+1}, {F0_OFF}'))
            put(72 + 4, lambda: ef.append(a.vmem(f'buffer_load_dword v{V_EX+16}, v{V_PF2}, {WSR}, s{S_TMP+1} offen {SC}')))
            def chk():
                a.need(vtags=ef)
                a(f'v_cmp_eq_u32 vcc, s{S_E}, v{V_EX+16}\ns_nop 0\ns_cmp_eq_u64 vcc, exec\ns_cbranch_scc0 L_embslow')
                a.label('L_embok')
            put(144 + 20, chk)
            for i, sl in enumerate([int(x) for x in TRK.split(',')] if TRK else []):
                h_, p_ = divmod(i, 2)
                def t0(i=i):
                    if i == 0:
                        srd(a, R_B, S_W2, S_W2+1, 4718592)
                def t1(i=i):
                    if i == 0:
                        a(f's_lshl_b32 s{S_TMP+10}, s{S_BB}, 5\ns_add_u32 s{S_TMP+10}, s{S_TMP+10}, s{S_WITHIN}\ns_lshl_b32 s{S_TMP+10}, s{S_TMP+10}, 2\ns_add_u32 s{S_TMP+10}, s{S_TMP+10}, s{S_WAVE}')
                        a(f's_lshl_b32 s{S_TMP+11}, s{S_G}, 8\ns_add_u32 s{S_TMP+10}, s{S_TMP+10}, s{S_TMP+11}\ns_mul_i32 s{S_TMP+10}, s{S_TMP+10}, 4608')
                def t2(h_=h_, p_=p_):
                    a.vmem(f'buffer_load_dword v{V_P0}, v{V_PFX}, s[{R_B}:{R_B+3}], s{S_TMP+10} offen offset:{p_*2304 + h_*1152}')
                put(sl-4, t0); put(sl-2, t1); put(sl, t2)
            seq = [lambda: a(f's_lshl_b32 s{S_TMP}, s{S_XCD}, 2\ns_add_u32 s{S_TMP}, s{S_TMP}, s{S_OCT}'),
                   lambda: a(f's_lshl_b32 s{S_TMP}, s{S_TMP}, 11\ns_add_u32 s{S_TMP}, s{S_TMP}, {EMBP_OFF}'),
                   lambda: a('v_lshlrev_b32 v5, 7, v3\nv_lshl_add_u32 v5, v4, 4, v5')]
            for o2 in range(2):
                seq.append(lambda o2=o2: ex.append(a.vmem(f'buffer_load_dwordx4 v[{V_EX+4*o2}:{V_EX+4*o2+3}], v5, {WSR}, s{S_TMP} offen offset:{64*o2} {SC}')))
            seq += [lambda: a('v_lshrrev_b32 v5, 1, v4\nv_lshlrev_b32 v5, 14, v5'), lambda: a('v_lshl_add_u32 v5, v3, 4, v5\nv_and_b32 v6, 1, v4'),
                    lambda: a(f'v_lshl_add_u32 v{V_EX+16}, v6, 8, v5\ns_lshl_b32 s{S_TMP}, s{S_BB}, 20'),
                    lambda: a(f's_lshl_b32 s{S_TMP+1}, s{S_OC0}, 11\ns_add_u32 s{S_TMP}, s{S_TMP}, s{S_TMP+1}'),
                    lambda: a(f's_add_u32 s{S_TMP+1}, s{S_Y0}, s{S_WAVE}\ns_lshl_b32 s{S_TMP+1}, s{S_TMP+1}, 9'),
                    lambda: a(f's_add_u32 s{S_O1}, s{S_TMP}, s{S_TMP+1}\ns_add_u32 s{S_O1}, s{S_O1}, {A2_OFF}'),
                    lambda: a(f's_add_u32 s{S_O2}, s{S_O1}, 32768')]
            for i, fn in enumerate(seq): put(144 + 24 + 3*i, fn)
            seq = [lambda: a.need(vtags=ex)]
            for mod in ('quad_perm:[1,0,3,2]', 'quad_perm:[2,3,0,1]', 'row_half_mirror', 'row_mirror'):
                for i in range(8):
                    seq.append(lambda mod=mod, i=i: a(f'v_add_f32_dpp v{V_EX+i}, v{V_EX+i}, v{V_EX+i} {mod} row_mask:0xf bank_mask:0xf'))
            for o2 in range(2):
                for i in range(4):
                    g = V_EX+8+2*o2+i//2; be = V_EX+12+2*o2+i//2; e = o2*4+i
                    if i % 2 == 0:
                        seq.append(lambda g=g, e=e: a(f'v_lshlrev_b32 v{SCv+e}, 16, v{g}')); seq.append(lambda be=be, e=e: a(f'v_lshlrev_b32 v{SHv+e}, 16, v{be}'))
                    else:
                        seq.append(lambda g=g, e=e: a(f'v_and_b32 v{SCv+e}, 0xffff0000, v{g}')); seq.append(lambda be=be, e=e: a(f'v_and_b32 v{SHv+e}, 0xffff0000, v{be}'))
            for i, fn in enumerate(seq): put(72*4 + 10 + 2*i, fn)
        else:
            seq = [lambda: a(f's_mov_b32 s{R_A}, s{S_OUT}\ns_and_b32 s{R_A+1}, s{S_OUT+1}, 0xffff'), lambda: a(f's_mov_b32 s{R_A+2}, 2097152\ns_mov_b32 s{R_A+3}, 0x20000'),
                   lambda: a(f'v_lshlrev_b32 v{V_EX+16}, 11, v3\nv_lshl_add_u32 v{V_EX+16}, v4, 3, v{V_EX+16}'),
                   lambda: a(f's_lshl_b32 s{S_TMP}, s{S_BB}, 20\ns_lshl_b32 s{S_TMP+1}, s{S_OC0}, 11'),
                   lambda: a(f's_add_u32 s{S_TMP}, s{S_TMP}, s{S_TMP+1}\ns_add_u32 s{S_TMP+1}, s{S_Y0}, s{S_WAVE}'),
                   lambda: a(f's_lshl_b32 s{S_TMP+1}, s{S_TMP+1}, 6\ns_add_u32 s{S_O1}, s{S_TMP}, s{S_TMP+1}'),
                   lambda: a(f's_add_u32 s{S_O2}, s{S_O1}, 32768')]
            for o2 in range(2):
                for half in range(2):
                    r = V_EX + (o2*2+half)*2
                    seq.append(lambda r=r, o2=o2, half=half: ex.append(a.vmem(f'buffer_load_dwordx2 v[{r}:{r+1}], v{V_EX+16}, s[{R_X}:{R_X+3}], s{S_O1 if o2 == 0 else S_O2} offen offset:{half*32}')))
            for i, fn in enumerate(seq): put(6 + 3*i, fn)
            seq = [lambda: a.need(vtags=ex)]
            for q in range(8):
                seq.append(lambda q=q: a(f'v_lshlrev_b32 v{V_P0+2*q}, 16, v{V_EX+q}')); seq.append(lambda q=q: a(f'v_and_b32 v{V_P0+2*q+1}, 0xffff0000, v{V_EX+q}'))
            for i, fn in enumerate(seq): put(72*3 + 3*i, fn)
        def poff(o2, ro, half): return (8192 if o2 == 0 else 0) + (ro*2+half)*1024
        def pw(o2, ro, half):
            c = acc(o2, ro, half)
            a.lds(f'ds_write_b128 v{V_PW}, a[{c}:{c+3}] offset:{poff(o2, ro, half)}', tag=('PW', o2))
        def prd(o2, v, half, dst):
            b_ = V_T if v < 2 else V_T+1
            a.lds(f'ds_read_b128 v[{dst}:{dst+3}], v{b_} offset:{(v%2)*WAVE_LDS + poff(o2, 0, half)}', tag=('P', o2, v, half))
        def red_reads(o2):
            outs = []
            for half in range(2):
                for v in range(4):
                    dst = (H + (o2*2+half)*4) if v == 0 else (PL + (half*3 + v-1)*4)
                    outs.append(lambda v=v, half=half, dst=dst: prd(o2, v, half, dst))
            return outs
        SQ = V_T + 8
        def red_adds(o2, pk):
            outs = []
            for half in range(2):
                h = H + (o2*2+half)*4
                extra = (V_EX + 4*o2) if which == 1 else (V_P0 + (o2*2+half)*4)
                for v in range(1, 5):
                    for i in range(0, 4, 2 if pk else 1):
                        def f(half=half, v=v, i=i, h=h, extra=extra):
                            a.need(ltags=[('P', o2, 3, half)])
                            src = (PL + (half*3+v-1)*4 + i) if v < 4 else extra + i
                            if pk: a(f'v_pk_add_f32 v[{h+i}:{h+i+1}], v[{h+i}:{h+i+1}], v[{src}:{src+1}]')
                            else: a(f'v_add_f32 v{h+i}, v{h+i}, v{src}')
                        outs.append(f)
                if which == 1:
                    if pk:
                        for i in range(0, 4, 2):
                            outs.append(lambda h=h, i=i: a(f'v_pk_fma_f32 v[{SQ+2}:{SQ+3}], v[{h+i}:{h+i+1}], v[{h+i}:{h+i+1}], v[{SQ+2}:{SQ+3}]'))
                            outs.append(lambda h=h, i=i: a(f'v_pk_add_f32 v[{SQ}:{SQ+1}], v[{SQ}:{SQ+1}], v[{h+i}:{h+i+1}]'))
                    else:
                        for i in range(4):
                            outs.append(lambda h=h, i=i: a(f'v_fmac_f32 v{SQ+2+i%2}, v{h+i}, v{h+i}'))
                            outs.append(lambda h=h, i=i: a(f'v_add_f32 v{SQ+i%2}, v{SQ+i%2}, v{h+i}'))
                else:
                    o = V_EX + (o2*2+half)*2
                    outs.append(lambda h=h, o=o: a(f'v_cvt_pk_bf16_f32 v{o}, v{h}, v{h+1}\nv_cvt_pk_bf16_f32 v{o+1}, v{h+2}, v{h+3}'))
                    outs.append(lambda o=o, half=half: a.vmem(f'buffer_store_dwordx2 v[{o}:{o+1}], v{V_EX+16}, s[{R_A}:{R_A+3}], s{S_O1 if o2 == 0 else S_O2} offen offset:{half*32} {OUTF}'))
            return outs
        b6 = 72*6; b7 = 72*7
        put(b6, lambda: a(f's_lshl_b32 s{S_TMP}, s{S_WAVE}, 11\ns_add_u32 s{S_TMP}, s{S_TMP}, {A_BASE}'))
        put(b6 + 2, lambda: a(f'v_add_u32 v{V_T}, s{S_TMP}, v{V_L16}\nv_add_u32 v{V_T+1}, {2*WAVE_LDS}, v{V_T}'))
        if which == 1:
            put(b6 + 4, lambda: a(f'v_mov_b32 v{SQ}, 0\nv_mov_b32 v{SQ+1}, 0'))
            put(b6 + 6, lambda: a(f'v_mov_b32 v{SQ+2}, 0\nv_mov_b32 v{SQ+3}, 0'))
        for o2 in range(2):
            for ro in range(4):
                for half in range(2):
                    sl = 72*(6+o2) + 18*ro + 9*half + 8 + 9
                    if sl <= 575 and not (o2 == 1 and ro == 3):
                        put(sl, (lambda o2=o2, ro=ro, half=half: pw(o2, ro, half)))
        def fbar():
            a.need(ltags=[('PW', 0)]); a('s_barrier')
        put(b7 + 14, fbar)
        for i, fn in enumerate(red_reads(0)): put(b7 + 15 + i, fn)
        for i, fn in enumerate(red_adds(0, False)): put(b7 + 26 + (i*7)//8, fn)
        items.sort(key=lambda x: (x[0], x[1]))
        qi = 0
        gs = 0
        for k in range(8):
            if k in (0, 1): stamp()
            if E('PSTAMP') and ci == int(E('PSTAMP'))-1: stamp(232 - A_TS + k)
            s, ob = divmod(k, 2)
            kk = ci*8 + k
            assert kk in permdone
            for ro in range(4):
                for half in range(2):
                    for dy in range(3):
                        for dx in range(3):
                            nb = len(a.L)
                            if dx == 0:
                                while not all((ci, s, ro+dy, half, d2) in issued for d2 in range(3)):
                                    items[qi][2](); qi += 1
                                a.need(ltags=[('F', s, ro+dy, half, d2) for d2 in range(3)])
                            PREW[(ci, gs)] = len(a.L) - nb
                            c = acc(ob, ro, half); w_ = wf(kk, dy*3+dx); f_ = af(ro+dy, half, dx)
                            srcc = '0' if (s == 0 and dy == 0 and dx == 0) else f'a[{c}:{c+3}]'
                            if which == 1:
                                a(f'v_mfma_f32_16x16x32_bf16 a[{c}:{c+3}], v[{w_}:{w_+3}], a[{f_}:{f_+3}], {srcc}')
                            else:
                                a(f'v_mfma_f32_16x16x32_bf16 a[{c}:{c+3}], a[{f_}:{f_+3}], v[{w_}:{w_+3}], {srcc}')
                            used = OLDPREW.get((ci, gs+1), 0)
                            last = (gs == 575) or (gs % 72 == 71 and (kk+1) not in permdone and k < 7)
                            while qi < len(items) and items[qi][0] <= gs:
                                key = (ci, items[qi][1])
                                wexp = OLDW.get(key, 1)
                                if not last and used > 0 and used + wexp > CAP: break
                                if not last and used >= CAP and wexp > 0: break
                                n1 = len(a.L)
                                items[qi][2](); qi += 1
                                wact = sum(wgt(x) for x in a.L[n1:])
                                NEWW[key] = wact
                                used += wact
                            gs += 1
            if k < 7 and not a.L[-1].startswith('v_mfma') and (a.L[-1].startswith('v_bfi') or a.L[-1].startswith('v_alignbit') or a.L[-2].startswith('v_bfi') or a.L[-2].startswith('v_alignbit')): a('s_nop 1')
        assert qi == len(items), (qi, len(items))
        if E('PSTAMP') and ci == int(E('PSTAMP'))-1: stamp(240 - A_TS)
        pw(1, 3, 0)
        a('s_nop 7')
        pw(1, 3, 1)
        a.need(ltags=[('PW', 1)]); a('s_barrier')
        for fn in red_reads(1): fn()
        for fn in red_adds(1, True): fn()
        stamp()
        if which == 1:
            G = V_T + 4
            a(f'v_add_f32 v{SQ}, v{SQ}, v{SQ+1}\nv_add_f32 v{SQ+1}, v{SQ+2}, v{SQ+3}\ns_nop 0')
            red2(a, SQ, SQ+1, S_R1, S_R2)
            a(f'v_mov_b32 v{G+1}, s{S_E}\nv_mov_b32 v{G+3}, s{S_E}\nv_mov_b32 v{G}, s{S_R1}\nv_mov_b32 v{G+2}, s{S_R2}')
            a(f's_lshl_b32 s{S_TMP+6}, s{S_LIN}, 2\ns_add_u32 s{S_TMP+6}, s{S_TMP+6}, s{S_WAVE}')
            def mid3():
                a.vq.append(('pub',))
                if 9 in rawdone and 9 not in permdone:
                    for i in range(36): perm(9, i)
            exchange('L_p3', G,
                     lambda: a(f's_lshl_b32 s{S_TMP+2}, s{S_TMP+6}, 4\ns_add_u32 s{S_TMP+2}, s{S_TMP+2}, {ST2L_OFF}'),
                     lambda: a(f's_lshl_b32 s{S_TMP+3}, s{S_TMP+6}, 7\ns_add_u32 s{S_TMP+3}, s{S_TMP+3}, {ST2G_OFF}'),
                     False, 2, 63,
                     lambda: a(f's_lshl_b32 s{S_TMP}, s{S_XCD}, 11\ns_add_u32 s{S_TMP}, s{S_TMP}, {ST2L_OFF}'),
                     lambda: a(f's_lshl_b32 s{S_TMP}, s{S_XCD}, 14\ns_add_u32 s{S_TMP}, s{S_TMP}, {ST2G_OFF}'),
                     V_T+8, PL, mid3)
            a.vq = []
            stamp()
            M = V_T + 8
            mean_rstd(1.0/131072, M)
            for e in range(0, 8, 2):
                a(f'v_pk_mul_f32 v[{SCv+e}:{SCv+e+1}], v[{SCv+e}:{SCv+e+1}], v[{M+2}:{M+3}]')
                a(f'v_pk_fma_f32 v[{SHv+e}:{SHv+e+1}], v[{SCv+e}:{SCv+e+1}], v[{M}:{M+1}], v[{SHv+e}:{SHv+e+1}]')
            for o2 in range(2):
                Z = H + o2*8
                for half in range(2):
                    for i in range(0, 4, 2):
                        r = Z + half*4 + i
                        a(f'v_pk_fma_f32 v[{r}:{r+1}], v[{r}:{r+1}], v[{SCv+o2*4+i}:{SCv+o2*4+i+1}], v[{SHv+o2*4+i}:{SHv+o2*4+i+1}]')
                silu_pk(a, Z, PL, 8)
                r = PL + 8 + o2*4
                for q in range(4):
                    a(f'v_cvt_pk_bf16_f32 v{r+q}, v{Z+2*q}, v{Z+2*q+1}')
                a('s_nop 1')
                a(f'v_permlane16_swap_b32 v{r}, v{r+2}\nv_permlane16_swap_b32 v{r+1}, v{r+3}')
                a(f'buffer_store_dwordx4 v[{r}:{r+3}], v{V_EX+16}, {WSR}, s{S_O1 if o2 == 0 else S_O2} offen {SC}')
            a.vq = []
            if 8 not in rawdone: w_rawperm(8)
            if 8 not in permdone:
                for i in range(36): perm(8, i)
            if 9 not in rawdone: w_rawperm(9)
            if BND and 10 in wdone and 10 not in rawdone:
                w_rawperm(10, False)
            a('s_waitcnt vmcnt(0)\ns_barrier')
            a.vq = []
            flag_store(F1_OFF)
            a.vq = [('flag',)]
            stamp()
            todo = [kk_ for kk_ in (10, 11, 12) if kk_ not in wdone and (kk_-2) in rawdone and (BND or kk_ < 12)]
            if NOWIN: todo = todo[:max(0, len(todo)-NOWIN)]
            for kk_ in (todo[:-1] if ORDB else todo): w_dma_all(kk_)
            if DLY1: a(f's_sleep {DLY1}')
            flag_poll(F1_OFF, V_PF1, 'L_p4', (lambda: w_dma_all(todo[-1])) if ORDB else None)
            stamp()
    conv(0)
    conv(1)
    if ECHO:
        a('s_waitcnt vmcnt(0)')
        stamp()
        a('s_sub_u32 s94, s94, s100')
        a('s_memrealtime s[100:101]\ns_waitcnt lgkmcnt(0)\ns_add_u32 s94, s94, s100')
        a.label('L_echo')
        a('s_memrealtime s[100:101]\ns_waitcnt lgkmcnt(0)\ns_sub_u32 s95, s94, s100\ns_cmp_gt_i32 s95, 0\ns_cbranch_scc1 L_echo')
    if ts:
        a('s_waitcnt vmcnt(0)')
        stamp()
        a('s_memrealtime s[98:99]\ns_waitcnt lgkmcnt(0)')
        for i in range(16):
            a(f'v_accvgpr_read_b32 v{72+i}, a{A_TS+i}')
        for i in range(4):
            a(f'v_accvgpr_read_b32 v{92+i}, a{A_TS+16+i}')
        a('v_accvgpr_read_b32 v88, a229\nv_mov_b32 v89, s100\nv_mov_b32 v90, s98\nv_mov_b32 v91, 0')
        a(f's_lshl_b32 s{S_TMP}, s2, 9\ns_lshl_b32 s{S_TMP+1}, s{S_WAVE}, 7\ns_add_u32 s{S_TMP}, s{S_TMP}, s{S_TMP+1}\nv_mov_b32 v8, s{S_TMP}')
        srd(a, R_B, S_WS, S_WS+1, 0x40000, TS_OFF)
        a(f'v_cmp_eq_u32 vcc, 0, v2\ns_and_saveexec_b64 s[{S_SAVE}:{S_SAVE+1}], vcc')
        for i in range(6):
            a(f'buffer_store_dwordx4 v[{72+4*i}:{75+4*i}], v8, s[{R_B}:{R_B+3}], 0 offen offset:{16*i}')
        if E('DBGOUT'):
            wg = int(E('DBGOUT'))
            a(f's_cmp_lg_u32 s2, {wg}\ns_cbranch_scc1 L_end\ns_cmp_lg_u32 s{S_WAVE}, 1\ns_cbranch_scc1 L_end')
            srd(a, R_B, S_DBG, S_DBG+1, 256)
            for i in range(14):
                a(f'v_sub_u32 v{72+i}, v{72+i}, v88')
            a('v_sub_u32 v90, v90, v89\nv_mov_b32 v8, 0')
            a(f'buffer_store_dword v90, v8, s[{R_B}:{R_B+3}], 0 offen offset:4')
            for i in range(7):
                a(f'buffer_store_dwordx2 v[{72+2*i}:{73+2*i}], v8, s[{R_B}:{R_B+3}], 0 offen offset:{8+8*i}')
        if E('PSTAMP'):
            for i in range(12):
                a(f'v_accvgpr_read_b32 v{100+i}, a{232+i}')
            srd(a, R_B, S_WS, S_WS+1, 0x40000, TS_OFF + 0x100000)
            for i in range(3):
                a(f'buffer_store_dwordx4 v[{100+4*i}:{103+4*i}], v8, s[{R_B}:{R_B+3}], 0 offen offset:{16*i}')
    a.label('L_end')
    a('s_endpgm')
    a.label('L_embslow')
    a(f's_mov_b32 s{S_TMP+2}, 0')
    a.label('L_embslow2')
    a(f'buffer_load_dword v{V_EX+16}, v{V_PF2}, {WSR}, s{S_TMP+1} offen {SC}')
    a('s_waitcnt vmcnt(0)')
    a(f'v_cmp_eq_u32 vcc, s{S_E}, v{V_EX+16}')
    a(f's_add_u32 s{S_TMP+2}, s{S_TMP+2}, 1')
    a('s_cmp_eq_u64 vcc, exec\ns_cbranch_scc1 L_embok')
    a(f's_cmp_lt_u32 s{S_TMP+2}, 0x40000\ns_cbranch_scc1 L_embslow2')
    a('s_branch L_embok')
    name = 'standalone__adm_resblock__diffusion_kernel'
    return khead(name) + a.text(), kd(name, 256+(248 if ts else 208), 256)

def main():
    ts = '--ts' in sys.argv
    hdr = open('standalone__adm_resblock__diffusion.s.ref').read().split('\n')
    top = [l for l in hdr if l.startswith(';') and '@launch' not in l]
    top += ['; @launch grid=(256,1,1) block=(256,1,1) lds=163840']
    for it in range(4):
        k = gen(ts)
        OLDW.clear(); OLDW.update(NEWW); OLDPREW.clear(); OLDPREW.update(PREW)
    out = '\n'.join(top) + '\n.amdgcn_target "amdgcn-amd-amdhsa--gfx950"\n.text\n'
    out += k[0] + '\n.section .rodata,"a"\n' + k[1] + '\n'
    print(out)

main()
```
